```python
import torch

def _softmax(x, axis=-1):
    return torch.softmax(x, dim=axis)
def _gelu(x):
    return torch.nn.functional.gelu(x, approximate="tanh")
def _silu(x):
    return torch.nn.functional.silu(x)
def _sigmoid(x):
    return torch.sigmoid(x)
def _layernorm(x, axis=-1, eps=1e-5):
    m = x.mean(dim=axis, keepdim=True)
    v = x.var(dim=axis, keepdim=True, unbiased=False)
    return (x - m) / torch.sqrt(v + eps)
def _scatter_add(tgt, idx, src, axis=0):
    return tgt.clone().index_add_(axis, idx, src)
def _segment_sum(src, seg, n):
    out = torch.zeros((n,) + src.shape[1:], dtype=src.dtype)
    return out.index_add_(0, seg, src)
def _pad(x, pw):
    flat = tuple(v for pair in reversed(pw) for v in pair)
    return torch.nn.functional.pad(x, flat)

kernel_name = 'standalone__edge_featured_mpnn_gatedgcn__graph'

def setup_inputs():

    _w = (lambda a: (lambda t: t.to(torch.bfloat16) if t.is_floating_point() else t)(torch.as_tensor(a)))
    N, deg, D, De = 12500, 32, 128, max(4, 1)
    E = N * deg
    return {
        "x": _w((lambda *s: torch.randn(*s, dtype=torch.bfloat16) * 0.4)(N, D)),
        "e_attr": _w((lambda *s: torch.randn(*s, dtype=torch.bfloat16) * 0.8)(E, De)),
        "src": _w((lambda lo, hi, *s: torch.randint(lo, hi, s))(0, N, E).to(torch.int64)),
        "dst": _w((lambda lo, hi, *s: torch.randint(lo, hi, s))(0, N, E).to(torch.int64)),
        "w_a": _w((lambda *s: torch.randn(*s, dtype=torch.bfloat16) * 0.4)(D, D)),
        "w_b": _w((lambda *s: torch.randn(*s, dtype=torch.bfloat16) * 0.4)(D, D)),
        "w_c": _w((lambda *s: torch.randn(*s, dtype=torch.bfloat16) * 0.8)(De, D)),
        "w_u": _w((lambda *s: torch.randn(*s, dtype=torch.bfloat16) * 0.05)(D, D)),
        "w_v": _w((lambda *s: torch.randn(*s, dtype=torch.bfloat16) * 0.05)(D, D)),
    }

def reference(x, e_attr, src, dst, w_a, w_b, w_c, w_u, w_v):
    N, D = x.shape
    hv = x @ w_v
    g = x[dst] @ w_a + x[src] @ w_b + e_attr @ w_c
    eta = _sigmoid(g)
    denom = _segment_sum(eta, dst, N) + 1e-6
    eta_n = eta / denom[dst]
    agg = _segment_sum(eta_n * hv[src], dst, N)
    z = x @ w_u + agg
    relu_z = torch.where(z > 0, z, 0 * z)
    return x + relu_z
```

```python
import re

def regs_of(tok):
    tok = tok.strip()
    tok = re.sub(r'^-', '', tok)
    m = re.match(r'^abs\((.*)\)$', tok) or re.match(r'^\|(.*)\|$', tok)
    if m: tok = m.group(1)
    m = re.match(r'^([vsa])\[(\d+):(\d+)\]$', tok)
    if m: return {f"{m.group(1)}{i}" for i in range(int(m.group(2)), int(m.group(3)) + 1)}
    if re.match(r'^[vsa]\d+$', tok): return {tok}
    if tok in ('vcc',): return {'vcc_lo', 'vcc_hi'}
    if tok in ('exec',): return {'exec_lo', 'exec_hi'}
    if tok in ('vcc_lo', 'vcc_hi', 'exec_lo', 'exec_hi', 'm0'): return {tok}
    return set()

TRANS = ('v_exp_', 'v_log_', 'v_rcp_', 'v_rsq_', 'v_sqrt_', 'v_sin_', 'v_cos_')

class Ins:
    def __init__(self, text):
        self.text = text
        t = text.split(';')[0].strip()
        self.label = t.endswith(':')
        self.directive = t.startswith('.')
        self.op = t.split()[0] if t else ''
        rest = t[len(self.op):].strip()
        ops = [o.strip() for o in re.split(r',(?![^\[]*\])', rest)] if rest else []
        self.mods = ''
        if ops:
            parts = ops[-1].split()
            if len(parts) > 1:
                ops[-1] = parts[0]; self.mods = ' '.join(parts[1:])
        self.ops = ops
        op = self.op
        self.is_mfma = op.startswith('v_mfma')
        self.is_valu = op.startswith('v_') and not self.is_mfma
        self.is_trans = op.startswith(TRANS)
        self.is_salu = op.startswith('s_')
        self.is_ds = op.startswith('ds_')
        self.is_vmem = op.startswith(('buffer_', 'global_', 'flat_', 'scratch_'))
        self.is_dpp = '_dpp' in op or 'row_' in self.mods or 'quad_perm' in self.mods
        self.is_lds_dma = self.is_vmem and (' lds' in ' ' + self.mods or 'load_lds' in op)
        self.w = set(); self.r = set()
        R = [regs_of(o) for o in ops]
        if self.label or self.directive or not op: return
        if self.is_mfma:
            self.w = R[0]; self.A = R[1]; self.B = R[2]; self.C = R[3]; self.r = R[1] | R[2] | R[3]
            self.passes = 8 if '32x32' in op else 4
        elif self.is_valu:
            if op.startswith('v_cmpx'):
                self.w = R[0] | {'exec_lo', 'exec_hi'}; self.r = set().union(*R[1:])
            elif op.startswith(('v_add_co', 'v_sub_co', 'v_addc_co', 'v_subb_co', 'v_subrev_co', 'v_mad_u64')):
                self.w = R[0] | R[1]; self.r = set().union(*R[2:])
            elif 'swap' in op:
                self.w = R[0] | R[1]; self.r = R[0] | R[1]
            else:
                self.w = R[0]; self.r = set().union(*R[1:]) if len(R) > 1 else set()
                if op.startswith(('v_fmac', 'v_dot2c', 'v_writelane')) or 'UNUSED_PRESERVE' in self.mods or self.is_dpp:
                    self.r |= R[0]
        elif self.is_ds:
            if op.startswith(('ds_read', 'ds_bpermute', 'ds_permute', 'ds_swizzle')) or '_rtn' in op:
                self.w = R[0]; self.r = set().union(*R[1:])
            else:
                self.r = set().union(*R)
        elif self.is_vmem:
            if self.is_lds_dma:
                self.r = set().union(*R) | {'m0'}
            elif 'load' in op or ('atomic' in op and 'sc0' in self.mods):
                self.w = R[0]; self.r = set().union(*R[1:])
            else:
                self.r = set().union(*R)
                self.store_data = R[1] if op.startswith('global_') else R[0]
                self.wide = ('x3' in op or 'x4' in op)
        elif self.is_salu:
            if op.startswith(('s_cmp', 's_cbranch', 's_branch', 's_waitcnt', 's_nop', 's_barrier', 's_endpgm', 's_setprio', 's_bitcmp', 's_sleep')):
                self.r = set().union(*R) if R else set()
            else:
                self.w = R[0] if R else set(); self.r = set().union(*R[1:]) if len(R) > 1 else set()
                if 'saveexec' in op: self.w |= {'exec_lo', 'exec_hi'}; self.r |= {'exec_lo', 'exec_hi'}

    def states(self):
        if self.label or self.directive or not self.op: return 0
        if self.op == 's_nop': return int(self.ops[0], 0) + 1
        return 1

def need(p, c):
    n = 0
    vw = {x for x in p.w if x[0] in 'va' and x not in ('vcc_lo', 'vcc_hi')}
    sw = p.w - vw
    if p.is_valu:
        if c.op.startswith(('v_readlane', 'v_readfirstlane')) and vw & c.r: n = max(n, 1)
        if c.is_dpp and vw & c.r: n = max(n, 2)
        if 'permlane' in c.op and vw & c.r: n = max(n, 2)
        if c.is_mfma and vw & c.r: n = max(n, 2)
        if p.is_trans and c.is_valu and not c.is_trans and vw & c.r: n = max(n, 1)
        if sw:
            sread = sw & c.r
            if c.op.startswith('v_cndmask') and not any(o.startswith('s[') for o in c.ops) and sw & {'vcc_lo', 'vcc_hi'}: sread = sread | {'vcc'}
            if c.is_valu and sread: n = max(n, 4 if c.op.startswith(('v_readlane', 'v_writelane')) else 2)
            if c.is_vmem and sread: n = max(n, 5)
            if sw & {'exec_lo', 'exec_hi'}:
                if c.is_dpp: n = max(n, 5)
                if c.is_mfma or c.op.startswith(('v_readlane', 'v_readfirstlane', 'v_writelane')) or 'permlane' in c.op: n = max(n, 4)
        if ('dst_sel:WORD' in p.mods or 'dst_sel:BYTE' in p.mods) and c.is_valu and vw & (c.r | c.w): n = max(n, 1)
        if p.op.startswith('v_dot') and (c.is_valu or c.is_mfma) and vw & (c.r | c.w) and c.op != p.op: n = max(n, 3)
    if p.is_mfma:
        big = {4: 8, 8: 12}[p.passes]
        if c.is_mfma:
            if p.w & (c.A | c.B): n = max(n, big)
            if p.w & c.C and not (p.w == c.C and p.passes == c.passes): n = max(n, {4: 6, 8: 10}[p.passes])
            if p.w & c.w and not (p.w & c.C): n = max(n, {4: 6, 8: 10}[p.passes])
        elif (c.is_valu or c.is_ds or c.is_vmem) and p.w & (c.r | c.w): n = max(n, big)
        if c.is_valu and p.C & c.w: n = max(n, {4: 3, 8: 7}[p.passes])
    if p.is_salu and 'm0' in p.w and (c.is_lds_dma or 'addtid' in c.op): n = max(n, 1)
    if p.is_vmem and getattr(p, 'wide', False) and p.store_data & c.w: n = max(n, 2)
    return n

class Asm:
    def __init__(self): self.lines = []
    def __call__(self, s):
        for l in s.strip('\n').split('\n'):
            l = l.strip()
            if l: self.lines.append(l)
    def finish(self, verbose=False):
        out = []; hist = []; added = 0
        for l in self.lines:
            ins = Ins(l)
            if ins.op and not ins.label and not ins.directive and not l.startswith(';'):
                dist = 0; pad = 0
                for p in reversed(hist):
                    if dist >= 20: break
                    k = need(p, ins)
                    if k > dist: pad = max(pad, k - dist)
                    dist += p.states()
                if pad:
                    added += 1
                    if verbose: print('nop', pad, 'before', l)
                    nop = Ins(f's_nop {pad-1}'); out.append('    ' + nop.text); hist.append(nop)
                hist.append(ins)
                if ins.op in ('s_endpgm', 's_branch'): hist = []
            out.append(l if (ins.label or ins.directive or l.startswith(';')) else '    ' + l)
        return '\n'.join(out) + '\n'
```

```python
import sys, struct, math
from asmlib import Asm

def f2u(x): return struct.unpack('<I', struct.pack('<f', x))[0]

N = 12500; E = 400000
NPB = 98; NB = 128
NC = 256; CH = 1564
RECREG = (CH + NB * 3) * 16
TBL_H = 0x310000
AU_OFF = 0x800000
REC_OFF = 0x1000000
OFFS_OFF = 0x1800000
DIAG_OFF = 0x2000000
NEGL2E = f2u(-math.log2(math.e))
TINY = 0x0d800000
CBITS = (127 - 62) << 23
EPSP = f2u(1e-6 * 2.0 ** 62)

G_WG = 224; S_WG = 256; K1_GRID = G_WG + S_WG; K1_BLOCK = 448; K1_LDS = 61440
K2_GRID = 256; K2_BLOCK = 1024
LMAX = 28
ROWS = 0; PAIRS = 99 * 1024; NPAIR = 1800
CNT = PAIRS + NPAIR * 32; OFFA = CNT + 512; FLAG = OFFA + 512; ZERO = FLAG + 64; K2_LDS = ZERO + 192
FASTMAX = LMAX * 128 - NPB

DIAG = False

def srd(a, s, lo, hi, size, stride=0):
    a(f"s_mov_b32 s{s}, {lo}")
    if stride:
        a(f"s_and_b32 s{s+1}, {hi}, 0xffff\ns_or_b32 s{s+1}, s{s+1}, {stride << 16}")
    else:
        a(f"s_and_b32 s{s+1}, {hi}, 0xffff")
    a(f"s_mov_b32 s{s+2}, {size}\ns_mov_b32 s{s+3}, 0x20000")

def srd_off(a, s, plo, off, size, stride=0):
    a(f"s_add_u32 s{s}, s{plo}, {off}\ns_addc_u32 s{s+1}, s{plo+1}, 0\ns_and_b32 s{s+1}, s{s+1}, 0xffff")
    if stride: a(f"s_or_b32 s{s+1}, s{s+1}, {stride << 16}")
    a(f"s_mov_b32 s{s+2}, {size}\ns_mov_b32 s{s+3}, 0x20000")

def wave_scan(a, v):
    for sh in (1, 2, 4, 8):
        a(f"v_add_u32_dpp v{v}, v{v}, v{v} row_shr:{sh} row_mask:0xf bank_mask:0xf bound_ctrl:1")
    a(f"v_add_u32_dpp v{v}, v{v}, v{v} row_bcast:15 row_mask:0xa bank_mask:0xf")
    a(f"v_add_u32_dpp v{v}, v{v}, v{v} row_bcast:31 row_mask:0xc bank_mask:0xf")

def wave_max(a, v):
    for sh in (1, 2, 4, 8):
        a(f"v_max_u32_dpp v{v}, v{v}, v{v} row_shr:{sh} row_mask:0xf bank_mask:0xf bound_ctrl:1")
    a(f"v_max_u32_dpp v{v}, v{v}, v{v} row_bcast:15 row_mask:0xa bank_mask:0xf")
    a(f"v_max_u32_dpp v{v}, v{v}, v{v} row_bcast:31 row_mask:0xc bank_mask:0xf")

class Stamps:
    def __init__(self, a, base): self.a = a; self.base = base; self.n = 0
    def __call__(self):
        if not DIAG: return
        s = self.base + 2 * self.n; self.n += 1
        self.a(f"s_memrealtime s[{s}:{s+1}]\ns_waitcnt lgkmcnt(0)")
    def dump(self, kern, wg, swave, vt, srdreg):
        if not DIAG: return
        a = self.a
        srd_off(a, srdreg, 26, DIAG_OFF + kern * 0x100000, 0x100000)
        a(f"s_lshl_b32 s3, {wg}, 4\ns_add_u32 s3, s3, {swave}\ns_lshl_b32 s3, s3, 6")
        a(f"s_mov_b64 exec, 1\nv_mov_b32 v{vt}, s3")
        for i in range(self.n):
            s = self.base + 2 * i
            a(f"v_mov_b32 v{vt+1}, s{s}\nbuffer_store_dword v{vt+1}, v{vt}, s[{srdreg}:{srdreg+3}], 0 offen offset:{4*i}\ns_nop 1")

def gen_k1(a):
    st = Stamps(a, 64)
    a("prep_kernel:")
    a(f"s_cmp_ge_u32 s2, {K1_GRID}\ns_cbranch_scc1 K1_END")
    st()
    a("""
    s_load_dwordx16 s[4:19], s[0:1], 0
    s_load_dwordx8 s[20:27], s[0:1], 64
    v_lshrrev_b32 v2, 6, v0
    v_and_b32 v1, 63, v0
    v_readfirstlane_b32 s50, v2
    """)
    a(f"s_cmp_ge_u32 s2, {G_WG}\ns_cbranch_scc1 K1_SORT")
    XL = [8, 24]; ACC = 40; WF = 104; WA = 120
    def acc(t, m, ct): return ACC + ((t * 2 + m) * 4 + ct) * 4
    a("""
    s_lshr_b32 s51, s2, 5
    s_lshl_b32 s51, s51, 3
    s_and_b32 s52, s2, 7
    s_add_u32 s51, s51, s52              ; rb
    s_bfe_u32 s52, s2, 0x10003           ; h
    s_bfe_u32 s53, s2, 0x10004           ; pairsel
    s_mul_i32 s54, s51, 224
    s_lshl_b32 s55, s50, 5
    s_add_u32 s54, s54, s55
    s_lshl_b32 s54, s54, 8               ; R0*256
    v_lshlrev_b32 v2, 4, v1              ; lane*16
    v_add_u32 v2, s54, v2
    v_add_u32 v3, 4096, v2
    v_lshrrev_b32 v4, 3, v1
    v_lshlrev_b32 v4, 8, v4
    v_bfe_u32 v5, v1, 4, 1
    v_lshlrev_b32 v5, 1, v5
    v_and_b32 v6, 7, v1
    v_xor_b32 v5, v5, v6
    v_lshl_add_u32 v5, v5, 4, v4
    s_waitcnt lgkmcnt(0)
    """)
    srd(a, 28, "s4", "s5", N * 256)
    for q in range(4): a(f"buffer_load_dwordx4 v[{XL[0]+4*q}:{XL[0]+4*q+3}], v2, s[28:31], 0 offen offset:{q*1024}")
    for q in range(4): a(f"buffer_load_dwordx4 v[{XL[1]+4*q}:{XL[1]+4*q+3}], v3, s[28:31], 0 offen offset:{q*1024}")
    a("""
    s_cmp_eq_u32 s53, 0
    s_cselect_b32 s40, s14, s12
    s_cselect_b32 s41, s15, s13
    s_cselect_b32 s42, s20, s18
    s_cselect_b32 s43, s21, s19
    s_and_b32 s41, s41, 0xffff
    s_and_b32 s43, s43, 0xffff
    s_mov_b32 s34, 32768
    s_mov_b32 s35, 0x20000
    s_lshl_b32 s56, s52, 7               ; h*128
    """)
    for i in range(5):
        a(f"s_add_u32 s57, s50, {7*i}           ; piece")
        if i == 4: a("s_cmp_ge_u32 s57, 32\ns_cbranch_scc1 K1_DMA_DONE")
        a(f"""
        s_cmp_lt_u32 s57, 16
        s_cselect_b32 s32, s40, s42
        s_cselect_b32 s33, s41, s43
        s_and_b32 s58, s57, 1
        s_lshl_b32 s58, s58, 6
        v_xor_b32 v4, s58, v5
        s_and_b32 s58, s57, 15
        s_lshl_b32 s58, s58, 11
        s_add_u32 s58, s58, s56
        s_lshl_b32 s59, s57, 10
        s_mov_b32 m0, s59
        s_nop 0
        buffer_load_dwordx4 v4, s[32:35], s58 offen lds
        """)
    a("K1_DMA_DONE:")
    a(f"""
    s_mul_i32 s57, s53, {AU_OFF}
    s_mul_i32 s58, s52, {TBL_H}
    s_add_u32 s57, s57, s58
    """)
    srd_off(a, 36, 26, "s57", N * 256)
    a(f"""
    s_lshl_b32 s57, s50, 12
    s_add_u32 s57, s57, 32768            ; XB
    v_lshrrev_b32 v6, 4, v1              ; l>>4
    v_and_b32 v7, 15, v1                 ; l&15
    v_xor_b32 v40, v6, v7
    v_lshlrev_b32 v40, 4, v40            ; ((l&15)^(l>>4))*16
    v_lshl_add_u32 v44, v7, 8, v40       ; i*256 + (kslab^i)*16
    v_lshl_add_u32 v40, v6, 8, v40       ; (l>>4)*256 + ...
    v_add_u32 v40, s57, v40
    v_add_u32 v44, s57, v44
    """)
    for q in range(1, 4): a(f"v_xor_b32 v{40+q}, {64*q}, v40\nv_xor_b32 v{44+q}, {64*q}, v44")
    a(f"""
    v_bfe_u32 v48, v1, 2, 2              ; r4
    v_lshl_add_u32 v49, v6, 3, v48       ; 8*kslab + r4
    v_lshlrev_b32 v49, 7, v49
    v_and_b32 v50, 3, v1                 ; c4
    v_lshl_add_u32 v49, v50, 3, v49
    v_lshrrev_b32 v48, 1, v48            ; (r4>>1)&1
    v_and_b32 v50, 1, v6
    v_lshl_or_b32 v48, v50, 1, v48       ; g'
    v_lshl_add_u32 v{WA}, v48, 5, v49
    """)
    for ct in range(1, 4): a(f"v_xor_b32 v{WA+ct}, {32*ct}, v{WA}")
    a(f"""
    v_lshlrev_b32 v124, 10, v6
    v_lshl_add_u32 v124, v7, 4, v124
    v_add_u32 v124, s54, v124
    v_add_u32 v125, 4096, v124
    s_waitcnt vmcnt(0)
    """)
    st()
    for t in range(2):
        for q in range(4): a(f"ds_write_b128 v{40+q}, v[{XL[t]+4*q}:{XL[t]+4*q+3}] offset:{q*1024}")
        a("s_waitcnt lgkmcnt(0)")
        for ks in range(4): a(f"ds_read_b128 v[{XL[t]+4*ks}:{XL[t]+4*ks+3}], v{44+ks}")
        a("s_waitcnt lgkmcnt(0)")
    a("s_barrier")
    st()
    seq = [(ks, m, ct) for ks in range(4) for m in range(2) for ct in range(4)]
    def rd(s):
        ks, m, ct = seq[s]; b = WF + 4 * (s % 4); o = m * 16384 + ks * 4096
        a(f"ds_read_b64_tr_b16 v[{b}:{b+1}], v{WA+ct} offset:{o}\nds_read_b64_tr_b16 v[{b+2}:{b+3}], v{WA+ct} offset:{o+512}")
    for s in range(3): rd(s)
    for s in range(32):
        if s + 3 < 32: rd(s + 3)
        a(f"s_waitcnt lgkmcnt({2*min(3, 31-s)})")
        ks, m, ct = seq[s]; b = WF + 4 * (s % 4)
        for t in range(2):
            d = acc(t, m, ct); c = "0" if ks == 0 else f"v[{d}:{d+3}]"
            a(f"v_mfma_f32_16x16x32_bf16 v[{d}:{d+3}], v[{XL[t]+4*ks}:{XL[t]+4*ks+3}], v[{b}:{b+3}], {c}")
    st()
    a(f"""
    s_mov_b32 s44, {NEGL2E}
    s_mov_b32 s45, {NEGL2E}
    s_mov_b32 s46, 0x05040100
    s_mov_b32 s47, 0x07060302
    v_mov_b32 v2, {TINY}
    v_mov_b32 v3, {TINY}
    """)
    for t in range(2):
        O = XL[t]
        for rp in (0, 2):
            for ct in range(4):
                h = acc(t, 0, ct) + rp; l = acc(t, 1, ct) + rp
                a(f"""
                v_pk_fma_f32 v[{h}:{h+1}], v[{h}:{h+1}], s[44:45], v[2:3]
                v_cvt_pk_bf16_f32 v{l}, v{l}, v{l+1}
                v_sub_u32_sdwa v{h}, v{h}, v{l} dst_sel:DWORD dst_unused:UNUSED_PAD src0_sel:DWORD src1_sel:WORD_0
                v_sub_u32_sdwa v{h+1}, v{h+1}, v{l} dst_sel:DWORD dst_unused:UNUSED_PAD src0_sel:DWORD src1_sel:WORD_1
                v_cvt_pk_bf16_f32 v{h}, v{h}, v{h+1}
                v_perm_b32 v{O+4*rp+ct}, v{h}, v{l}, s46
                v_perm_b32 v{O+4*(rp+1)+ct}, v{h}, v{l}, s47
                """)
            for r in (rp, rp + 1):
                a(f"buffer_store_dwordx4 v[{O+4*r}:{O+4*r+3}], v{124+t}, s[36:39], 0 offen offset:{r*256}")
    st()
    if DIAG:
        a("s_waitcnt vmcnt(0)"); st(); st.dump(0, "s2", "s50", 2, 60)
    a("s_endpgm")
    st = Stamps(a, 66); st.n = 0
    IMG = 1024
    a("K1_SORT:")
    a(f"""
    s_sub_u32 s51, s2, {G_WG}
    s_and_b32 s52, s51, 7
    s_lshl_b32 s52, s52, 5
    s_lshr_b32 s51, s51, 3
    s_add_u32 s51, s51, s52              ; chunk c
    s_mul_i32 s52, s51, {CH}
    v_lshl_add_u32 v2, v0, 2, s52        ; e0
    v_mov_b32 v8, 0
    v_lshlrev_b32 v9, 2, v0
    v_cmp_gt_u32 vcc, 128, v0
    s_and_saveexec_b64 s[48:49], vcc
    ds_write_b32 v9, v8
    s_mov_b64 exec, -1
    s_mov_b32 s53, {E}
    v_cmp_gt_u32 vcc, {CH//4}, v0
    v_cmp_gt_u32 s[48:49], s53, v2
    s_and_b64 s[48:49], s[48:49], vcc
    v_lshlrev_b32 v3, 2, v2
    v_lshlrev_b32 v4, 3, v2
    s_waitcnt lgkmcnt(0)
    """)
    srd(a, 28, "s10", "s11", E * 4)
    srd(a, 32, "s8", "s9", E * 4)
    srd(a, 36, "s6", "s7", E * 8)
    a(f"""
    s_mov_b64 exec, s[48:49]
    buffer_load_dwordx4 v[8:11], v3, s[28:31], 0 offen        ; dst
    buffer_load_dwordx4 v[12:15], v3, s[32:35], 0 offen       ; src
    buffer_load_dwordx4 v[16:19], v4, s[36:39], 0 offen       ; e
    buffer_load_dwordx4 v[20:23], v4, s[36:39], 0 offen offset:16
    s_mul_i32 s53, s51, {RECREG}
    s_add_u32 s53, s53, {REC_OFF}
    """)
    srd_off(a, 40, 26, "s53", 0)
    srd(a, 44, "s26", "s27", DIAG_OFF)
    a(f"""
    s_mov_b32 s54, 42800
    s_mov_b32 s55, {NPB}
    v_mov_b32 v5, 16
    s_barrier
    s_waitcnt vmcnt(3)
    """)
    st()
    for i in range(4):
        a(f"""
        v_mul_u32_u24 v{24+i}, s54, v{8+i}
        v_lshrrev_b32 v{24+i}, 22, v{24+i}           ; bucket
        v_mul_u32_u24 v{37+2*i}, s55, v{24+i}
        v_lshlrev_b32 v{24+i}, 2, v{24+i}
        ds_add_rtn_u32 v{28+i}, v{24+i}, v5
        v_sub_u32 v{37+2*i}, v{8+i}, v{37+2*i}
        v_lshlrev_b32 v{37+2*i}, 10, v{37+2*i}       ; node*1024
        """)
    a("s_waitcnt vmcnt(2)")
    for i in range(4): a(f"v_mov_b32 v{36+2*i}, v{12+i}")
    a("""
    s_mov_b64 exec, -1
    v_lshlrev_b32 v6, 3, v1
    s_waitcnt lgkmcnt(0)
    s_barrier
    ds_read_b64 v[44:45], v6
    s_waitcnt lgkmcnt(0)
    v_add_u32 v46, 63, v44
    v_add_u32 v47, 63, v45
    v_and_b32 v46, -64, v46
    v_and_b32 v47, -64, v47
    v_add_u32 v47, v46, v47
    v_mov_b32 v48, v47
    """)
    wave_scan(a, 48)
    a(f"""
    v_sub_u32 v50, v48, v47              ; excl
    v_readlane_b32 s42, v48, 63
    v_add_u32 v51, v50, v46
    v_add_u32 v52, {IMG}, v50
    v_add_u32 v53, {IMG}, v51
    ds_write_b64 v6, v[52:53] offset:512
    s_mov_b64 exec, s[48:49]
    """)
    for i in range(4): a(f"ds_read_b32 v{32+i}, v{24+i} offset:512")
    a("s_waitcnt vmcnt(0) lgkmcnt(0)")
    for i in range(4):
        a(f"v_add_u32 v{32+i}, v{32+i}, v{28+i}\nds_write2_b64 v{32+i}, v[{16+2*i}:{17+2*i}], v[{36+2*i}:{37+2*i}] offset0:0 offset1:1")
    a(f"""
    s_mov_b64 exec, -1
    s_cmp_lg_u32 s50, 0
    s_cbranch_scc1 K1_NOINFO
    v_lshrrev_b32 v50, 6, v50
    v_lshrrev_b32 v51, 6, v51
    v_lshl_or_b32 v50, v44, 12, v50
    v_lshl_or_b32 v51, v45, 12, v51
    s_lshl_b32 s53, s51, 2
    s_add_u32 s53, s53, {OFFS_OFF}
    v_lshlrev_b32 v7, 11, v1
    v_add_u32 v7, s53, v7
    buffer_store_dword v50, v7, s[44:47], 0 offen
    buffer_store_dword v51, v7, s[44:47], 0 offen offset:1024
    s_cmp_lg_u32 s51, 0
    s_cbranch_scc1 K1_NOINFO
    v_mov_b32 v50, 0x7f000000
    v_lshlrev_b32 v7, 2, v1
    v_add_u32 v7, {N*256}, v7
    v_add_u32 v51, {TBL_H}, v7
    buffer_store_dword v50, v7, s[44:47], 0 offen
    buffer_store_dword v50, v51, s[44:47], 0 offen
    K1_NOINFO:
    v_lshlrev_b32 v7, 4, v0
    s_waitcnt lgkmcnt(0)
    s_barrier
    """)
    st()
    for i in range(5):
        a(f"ds_read_b128 v[{8+4*i}:{11+4*i}], v7 offset:{IMG + i*K1_BLOCK*16}")
    for i in range(1, 5): a(f"v_add_u32 v{40+i}, {i*K1_BLOCK*16}, v7")
    for i in range(5):
        a(f"s_waitcnt lgkmcnt({4-i})")
        a(f"buffer_store_dwordx4 v[{8+4*i}:{11+4*i}], v{7 if i == 0 else 40+i}, s[40:43], 0 offen")
    st()
    if DIAG:
        a("s_waitcnt vmcnt(0)"); st(); st.base = 64; st.n += 1; st.dump(0, "s2", "s50", 2, 60)
    a("K1_END:\ns_endpgm")

def gen_k2(a):
    st = Stamps(a, 84)
    S_REC, S_INFO, S_AU, S_TBL, S_RAW, S_WC, S_X, S_OUT = 28, 32, 36, 40, 44, 48, 52, 56
    MK = 60
    sH, sB, sW, sL, sP, sNB, sRM, sT = 76, 77, 78, 79, 80, 81, 82, 83
    M0_, M1_, PAT, TMP = 4, 6, 8, 10
    REC = 32
    RNK = 64
    AU = 72
    vRem, vRecA, vOne = 80, 81, 82
    CA = 84
    LD = 32
    T = 64; V = 72; D = 80; ND = 84; W = 88; NUM = 92; DEN = 96; CEA = 100; EE = 104
    IA, IB = 108, 110
    NN = 112
    vRow, vTmp, vPair, vE, vEs, vJ4 = 114, 115, 116, 117, 118, 119
    WC = 120; CC = 122; SEL = 124
    XR = 8
    vXo = 12
    vCntA = 13
    a("agg_kernel:")
    a(f"s_cmp_ge_u32 s2, {K2_GRID}\ns_cbranch_scc1 K2_END")
    st()
    a(f"""
    s_load_dwordx16 s[4:19], s[0:1], 0
    s_load_dwordx8 s[20:27], s[0:1], 64
    v_lshrrev_b32 v2, 6, v0
    v_and_b32 v1, 63, v0
    v_readfirstlane_b32 s{sW}, v2
    s_bfe_u32 s{sH}, s2, 0x10002
    s_lshr_b32 s{sB}, s2, 3
    s_lshl_b32 s{sB}, s{sB}, 2
    s_and_b32 s3, s2, 3
    s_add_u32 s{sB}, s{sB}, s3
    v_lshlrev_b32 v14, 4, v0              ; t*16
    v_lshrrev_b32 v2, 2, v0               ; segment
    v_lshlrev_b32 v3, 2, v2
    v_lshlrev_b32 v4, 4, v1
    s_mul_i32 s3, s{sB}, {NPB*256}
    v_add_u32 v5, s3, v14
    v_add_u32 v6, 16384, v5
    s_lshl_b32 s{sT}, s{sH}, 7
    v_lshl_add_u32 v7, v1, 1, s{sT}
    v_lshrrev_b32 v{vXo}, 3, v0
    v_lshlrev_b32 v{vXo}, 8, v{vXo}
    v_and_b32 v15, 7, v0
    v_lshl_add_u32 v{vXo}, v15, 4, v{vXo}
    s_add_u32 s3, s3, s{sT}
    v_add_u32 v{vXo}, s3, v{vXo}
    s_lshl_b32 s3, s{sB}, 10
    s_add_u32 s3, s3, {OFFS_OFF}
    s_waitcnt lgkmcnt(0)
    """)
    srd_off(a, S_INFO, 26, "s3", 1024)
    a(f"""
    buffer_load_dword v{vRem}, v3, s[{S_INFO}:{S_INFO+3}], 0 offen
    buffer_load_dwordx4 v[24:27], v4, s[{S_INFO}:{S_INFO+3}], 0 offen
    s_mul_i32 s{sT}, s{sH}, {TBL_H}
    s_add_u32 s3, s{sT}, {AU_OFF}
    """)
    srd_off(a, S_AU, 26, "s3", N * 256)
    srd(a, S_WC, "s16", "s17", 1024)
    a(f"""
    buffer_load_dwordx4 v[{AU}:{AU+3}], v5, s[{S_AU}:{S_AU+3}], 0 offen
    buffer_load_dwordx4 v[{AU+4}:{AU+7}], v6, s[{S_AU}:{S_AU+3}], 0 offen
    """)
    for k in range(4): a(f"buffer_load_ushort v{28+k}, v7, s[{S_WC}:{S_WC+3}], 0 offen offset:{256*k}")
    srd_off(a, S_REC, 26, REC_OFF, NC * RECREG)
    srd_off(a, S_TBL, 26, f"s{sT}", N + 1, stride=256)
    srd_off(a, S_RAW, 26, f"s{sT}", (N + 1) * 256)
    srd(a, S_X, "s4", "s5", N * 256)
    srd(a, S_OUT, "s22", "s23", N * 256)
    a(f"""
    v_mov_b32 v16, 0
    v_mov_b32 v17, 0
    v_mov_b32 v18, 0
    v_mov_b32 v19, 0
    v_mov_b32 v20, 0
    v_mov_b32 v21, 0
    v_mov_b32 v22, {N}
    v_mov_b32 v23, {NPB*1024}
    v_lshrrev_b32 v84, 5, v0
    v_lshlrev_b32 v84, 10, v84
    v_and_b32 v85, 31, v0
    v_lshl_add_u32 v84, v85, 4, v84
    v_add_u32 v85, 65536, v84
    v_add_u32 v86, {PAIRS}, v14
    v_add_u32 v87, {CNT}, v14
    ds_write_b128 v84, v[16:19]
    ds_write_b128 v84, v[16:19] offset:32768
    ds_write_b128 v85, v[16:19]
    ds_write_b128 v86, v[20:23]
    ds_write_b128 v86, v[20:23] offset:16384
    ds_write_b128 v86, v[20:23] offset:32768
    v_cmp_gt_u32 vcc, {NPAIR*2 - 3072}, v0
    s_and_saveexec_b64 s[{MK}:{MK+1}], vcc
    ds_write_b128 v86, v[20:23] offset:49152
    v_cmp_gt_u32 vcc, 96, v0
    s_and_b64 exec, exec, vcc
    ds_write_b128 v85, v[16:19] offset:32768
    v_cmp_gt_u32 vcc, {(K2_LDS-CNT)//16}, v0
    s_and_b64 exec, exec, vcc
    ds_write_b128 v87, v[16:19]
    v_cmp_gt_u32 vcc, 16, v0
    s_and_b64 exec, exec, vcc
    v_mov_b32 v16, 1.0
    v_mov_b32 v17, 1.0
    v_mov_b32 v18, 1.0
    v_mov_b32 v19, 1.0
    v_add_u32 v87, {NPB*1024+512}, v14
    ds_write_b128 v87, v[16:19]
    s_mov_b64 exec, -1
    s_mov_b32 s12, 0
    s_mov_b32 s3, {RECREG}
    v_mul_u32_u24 v{vRecA}, s3, v2
    v_and_b32 v15, 3, v0                  ; sub
    v_lshl_add_u32 v{vRecA}, v15, 4, v{vRecA}
    s_lshr_b32 s3, s2, 3
    s_mul_i32 s3, s3, 782
    v_add_u32 v2, s3, v0
    v_lshlrev_b32 v2, 7, v2
    v_cmp_gt_u32 vcc, 782, v0
    v_mov_b32 v3, -1
    v_cndmask_b32 v2, v3, v2, vcc
    v_mov_b32 v{vOne}, 16
    v_lshlrev_b32 v{vCntA}, 3, v1
    v_add_u32 v{vCntA}, {CNT}, v{vCntA}
    s_waitcnt vmcnt(6)
    """)
    st()
    a(f"""
    v_and_b32 v3, 0xffff, v{vRem}
    v_lshrrev_b32 v{vRem}, 16, v{vRem}
    v_lshl_add_u32 v{vRecA}, v3, 6, v{vRecA}
    v_sub_u32 v{vRem}, v{vRem}, v15
    """)
    def rec_loads():
        for k in range(8): a(f"v_cmp_lt_i32 s[{MK+2*k}:{MK+2*k+1}], {4*k}, v{vRem}")
        for k in range(8):
            a(f"s_mov_b64 exec, s[{MK+2*k}:{MK+2*k+1}]\nbuffer_load_dwordx4 v[{REC+4*k}:{REC+4*k+3}], v{vRecA}, s[{S_REC}:{S_REC+3}], 0 offen offset:{64*k}")
        a("s_mov_b64 exec, -1")
    rec_loads()
    a(f"""
    buffer_load_dwordx4 v[{XR}:{XR+3}], v{vXo}, s[{S_X}:{S_X+3}], 0 offen
    buffer_load_dword v83, v2, s[{S_RAW}:{S_RAW+3}], 0 offen
    v_lshrrev_b32 v24, 16, v24
    v_lshrrev_b32 v25, 16, v25
    v_lshrrev_b32 v26, 16, v26
    v_lshrrev_b32 v27, 16, v27
    v_max3_u32 v2, v24, v25, v26
    v_add3_u32 v3, v24, v25, v26
    v_max_u32 v2, v2, v27
    v_add_u32 v3, v3, v27
    """)
    wave_scan(a, 3)
    a(f"""
    v_cmp_lt_u32 vcc, 32, v2
    v_readlane_b32 s3, v3, 63
    s_mov_b32 s{sNB}, 1
    s_cmp_gt_u32 s3, {FASTMAX}
    s_cbranch_scc1 K2_SLOWMODE
    s_cbranch_vccz K2_MODE_DONE
    K2_SLOWMODE:
    """)
    wave_max(a, 2)
    a(f"""
    v_readlane_b32 s3, v2, 63
    s_add_u32 s3, s3, 11
    s_mul_i32 s3, s3, 43691
    s_lshr_b32 s{sNB}, s3, 19             ; ceil(max/12)
    """)
    for k in range(3, 8): a(f"s_mov_b64 s[{MK+2*k}:{MK+2*k+1}], 0")
    a(f"""
    K2_MODE_DONE:
    v_lshrrev_b32 v2, 4, v0
    v_lshlrev_b32 v2, 10, v2
    v_and_b32 v3, 15, v0
    v_lshl_add_u32 v5, v3, 2, v2          ; row + 4j
    v_lshl_add_u32 v6, v3, 4, v2          ; row + 16j
    v_add_u32 v7, 65536, v5
    v_add_u32 v14, 65536, v6
    s_mov_b32 s3, {f2u(60.0)}
    s_mov_b32 s{sT}, {f2u(-62.0)}
    s_waitcnt vmcnt(14)
    v_max3_f32 v2, |v{AU}|, |v{AU+1}|, |v{AU+2}|
    v_max3_f32 v2, v2, |v{AU+3}|, |v{AU+4}|
    v_max3_f32 v2, v2, |v{AU+5}|, |v{AU+6}|
    v_max_f32 v2, v2, |v{AU+7}|
    v_cmp_lt_f32 s[14:15], s3, v2
    """)
    for i in range(2):
        if i == 1: a(f"v_cmp_gt_u32 vcc, {NPB*16-1024}, v0\ns_and_saveexec_b64 s[{TMP}:{TMP+1}], vcc")
        for r in range(4): a(f"v_add_f32 v{16+r}, s{sT}, v{AU+4*i+r}")
        for r in range(4): a(f"v_exp_f32 v{16+r}, v{16+r}")
        for r in range(4): a(f"v_lshlrev_b32 v{20+r}, 16, v{AU+4*i+r}")
        a(f"ds_write_b128 v{6 if i == 0 else 14}, v[16:19] offset:512")
        for r in range(4): a(f"ds_write_b32 v{5 if i == 0 else 7}, v{20+r} offset:{768+64*r}")
    a(f"""
    s_mov_b64 exec, -1
    s_mov_b32 s3, {NEGL2E}
    s_waitcnt vmcnt(10)
    """)
    for k in range(4): a(f"v_lshlrev_b32 v{28+k}, 16, v{28+k}\nv_mul_f32 v{28+k}, s3, v{28+k}")
    a(f"""
    v_cvt_pk_bf16_f32 v{WC}, v28, v29
    v_cvt_pk_bf16_f32 v{WC+1}, v30, v31
    v_mov_b32 v{CC}, {CBITS}
    v_mov_b32 v{CC+1}, {CBITS}
    v_lshrrev_b32 v2, 4, v1               ; l>>4
    v_bfe_u32 v3, v1, 2, 2                ; (l>>2)&3
    v_and_b32 v16, 3, v1
    v_mov_b32 v17, 0x3f80
    v_cmp_eq_u32 vcc, v2, v3
    v_cndmask_b32 v17, 0, v17, vcc
    """)
    for r in range(4): a(f"v_cmp_eq_u32 vcc, {r}, v16\nv_cndmask_b32 v{SEL+r}, 0, v17, vcc")
    a(f"""
    v_and_b32 v{vJ4}, 15, v1
    v_lshlrev_b32 v{IA+1}, 4, v{vJ4}
    v_lshlrev_b32 v{vJ4}, 2, v{vJ4}
    v_mov_b32 v{IB+1}, v{IA+1}
    K2_BATCH:
    v_mov_b32 v2, {FLAG}
    s_waitcnt lgkmcnt(0)
    s_barrier
    s_mov_b64 exec, s[14:15]
    ds_write_b32 v2, v{vOne}
    s_mov_b64 s[14:15], 0
    s_waitcnt vmcnt(2)
    """)
    st()
    for k in range(8):
        a(f"""
        s_mov_b64 exec, s[{MK+2*k}:{MK+2*k+1}]
        s_cbranch_execz K2_AT_DONE
        v_lshrrev_b32 v{CA+k}, 8, v{REC+4*k+3}
        v_add_u32 v{CA+k}, {CNT}, v{CA+k}
        ds_add_rtn_u32 v{RNK+k}, v{CA+k}, v{vOne}
        """)
    a(f"""
    K2_AT_DONE:
    s_mov_b64 exec, -1
    v_mov_b32 v16, {FLAG}
    s_waitcnt lgkmcnt(0)
    s_barrier
    """)
    st()
    a(f"""
    ds_read_b64 v[2:3], v{vCntA}
    ds_read_b32 v16, v16
    s_waitcnt lgkmcnt(0)
    v_add_u32 v2, 16, v2
    v_add_u32 v3, 16, v3
    v_and_b32 v2, -32, v2
    v_and_b32 v3, -32, v3
    v_add_u32 v3, v2, v3
    v_mov_b32 v4, v3
    v_readfirstlane_b32 s{sRM}, v16
    """)
    wave_scan(a, 4)
    a(f"""
    v_sub_u32 v16, v4, v3
    v_readlane_b32 s{sL}, v4, 63
    v_add_u32 v16, {PAIRS}, v16
    v_add_u32 v17, v16, v2
    ds_write_b64 v{vCntA}, v[16:17] offset:512
    s_add_u32 s{sL}, s{sL}, {63*32}
    s_lshr_b32 s{sL}, s{sL}, 11
    """)
    for k in range(8):
        a(f"s_mov_b64 exec, s[{MK+2*k}:{MK+2*k+1}]\ns_cbranch_execz K2_RD_DONE\nds_read_b32 v{CA+k}, v{CA+k} offset:512")
    a("K2_RD_DONE:\ns_waitcnt lgkmcnt(0)")
    for k in range(8):
        a(f"""
        s_mov_b64 exec, s[{MK+2*k}:{MK+2*k+1}]
        s_cbranch_execz K2_SC_DONE
        v_add_u32 v{CA+k}, v{CA+k}, v{RNK+k}
        ds_write_b128 v{CA+k}, v[{REC+4*k}:{REC+4*k+3}]
        """)
    a(f"""
    K2_SC_DONE:
    s_mov_b64 exec, -1
    s_cmp_eq_u32 s{sRM}, 0
    s_cbranch_scc1 K2_NORM
    s_cmp_eq_u32 s{sRM}, 16
    s_cbranch_scc0 K2_NORM
    ds_write_b128 v6, v[{AU}:{AU+3}] offset:512
    v_cmp_gt_u32 vcc, {NPB*16-1024}, v0
    s_and_saveexec_b64 s[{TMP}:{TMP+1}], vcc
    ds_write_b128 v14, v[{AU+4}:{AU+7}] offset:512
    s_mov_b64 exec, -1
    K2_NORM:
    s_lshl_b32 s3, s{sW}, 2
    s_lshl_b32 s{sT}, s{sL}, 5            ; L*32
    v_lshrrev_b32 v2, 4, v1
    v_bfe_u32 v3, v1, 2, 2
    v_and_b32 v16, 3, v1
    v_cmp_eq_u32 vcc, v2, v16
    v_add_u32 v2, s3, v2
    v_add_u32 v3, s3, v3
    v_mul_u32_u24 v2, s{sT}, v2
    v_mul_u32_u24 v3, s{sT}, v3
    v_add_u32 v{vPair}, {PAIRS}, v2
    v_add_u32 v3, {PAIRS}, v3
    v_mov_b32 v2, {ZERO}
    v_cndmask_b32 v{vE}, v2, v3, vcc
    v_mov_b32 v2, 128
    v_cndmask_b32 v{vEs}, 0, v2, vcc
    v_lshl_add_u32 v2, v{vJ4}, 3, v{vPair} ; + i*32
    v_add_u32 v2, 12, v2
    """)
    for i in range(8): a(f"v_mov_b32 v{T+2*i+1}, v{IA+1}")
    for i in range(8): a(f"v_mov_b32 v{NUM+i}, 0")
    a(f"""
    s_mov_b32 s{PAT}, 0x00010001
    s_mov_b32 s{PAT+1}, 0x00010001
    s_waitcnt lgkmcnt(0)
    s_barrier
    """)
    st()
    a(f"""
    s_cmp_eq_u32 s{sL}, 0
    s_cbranch_scc1 K2_LOOP_DONE
    """)
    for p in range(4):
        a(f"ds_read_b32 v{T+4*p}, v{vPair} offset:{32*p+8}\nds_read_b32 v{T+4*p+2}, v{vPair} offset:{32*p+24}")
    a(f"""
    ds_read_b32 v{vTmp}, v{vPair} offset:12
    ds_read2_b32 v[16:17], v2 offset0:0 offset1:8
    ds_read2_b32 v[18:19], v2 offset0:128 offset1:136
    ds_read2_b64 v[{EE}:{EE+3}], v{vE} offset0:0 offset1:2
    ds_read_b32 v{IA}, v{vPair} offset:{32*4+8}
    ds_read_b32 v{IB}, v{vPair} offset:{32*4+24}
    ds_read_b32 v{NN+1}, v{vPair} offset:{32+12}
    s_mov_b32 s{S_TBL+2}, {N+1}
    s_waitcnt lgkmcnt(7)
    """)
    for p in range(4):
        a(f"buffer_load_dwordx4 v[{LD+8*p}:{LD+8*p+3}], v[{T+4*p}:{T+4*p+1}], s[{S_TBL}:{S_TBL+3}], 0 idxen offen")
        a(f"buffer_load_dwordx4 v[{LD+8*p+4}:{LD+8*p+7}], v[{T+4*p+2}:{T+4*p+3}], s[{S_TBL}:{S_TBL+3}], 0 idxen offen")
    a(f"""
    s_waitcnt lgkmcnt(4)
    v_add_u32 v{vRow}, v{vTmp}, v{vJ4}
    v_add_u32 v{vTmp}, v{vTmp}, v{IA+1}
    ds_read_b128 v[{CEA}:{CEA+3}], v{vTmp} offset:512
    v_cmp_ne_u32 s[{M0_}:{M0_+1}], v16, v17
    v_cmp_ne_u32 s[{M1_}:{M1_+1}], v18, v19
    s_sub_u32 s3, s{sL}, 1
    s_and_b32 s{sT}, s3, 15
    s_lshl_b64 s[{TMP}:{TMP+1}], s[{PAT}:{PAT+1}], s{sT}
    s_cmp_lt_u32 s3, 16
    s_cbranch_scc1 K2_LAST_LO
    s_or_b64 s[{M1_}:{M1_+1}], s[{M1_}:{M1_+1}], s[{TMP}:{TMP+1}]
    s_branch K2_LAST_DONE
    K2_LAST_LO:
    s_or_b64 s[{M0_}:{M0_+1}], s[{M0_}:{M0_+1}], s[{TMP}:{TMP+1}]
    K2_LAST_DONE:
    s_mov_b32 s{sP}, 0
    s_waitcnt vmcnt(6) lgkmcnt(0)
    v_mfma_f32_16x16x16_bf16 v[{T}:{T+3}], v[{EE}:{EE+1}], v[{WC}:{WC+1}], v[{LD}:{LD+3}]
    v_mfma_f32_16x16x16_bf16 v[{T+4}:{T+7}], v[{EE+2}:{EE+3}], v[{WC}:{WC+1}], v[{LD+4}:{LD+7}]
    s_nop 1
    ds_read2_b64 v[{EE}:{EE+3}], v{vE} offset0:4 offset1:6
    s_nop 4
    s_waitcnt lgkmcnt(0)
    """)
    st()
    a(f"s_cmp_lg_u32 s{sRM}, 0\ns_cbranch_scc1 K2_LOOP_1")
    def pk(op, d, *srcs, mod=''):
        return f"v_pk_{op}_f32 v[{d}:{d+1}], " + ", ".join(f"v[{s}:{s+1}]" for s in srcs) + mod
    for rm in range(2):
        a(f".p2align 6\nK2_LOOP_{rm}:") if rm == 0 else a(f"K2_LOOP_{rm}:")
        for u in range(4):
            la = LD + 8 * u; lb = la + 4; na = LD + 8 * ((u + 1) % 4); nb = na + 4
            nn_cur = NN + ((u + 1) & 1); nn_nxt = NN + (u & 1)
            if rm:
                a("s_waitcnt lgkmcnt(0)")
                for i in range(4): a(pk('add', T + 2 * i, T + 2 * i, CEA + (2 * i) % 4))
            a(f"""
            v_mfma_f32_16x16x32_bf16 v[{V}:{V+3}], v[{SEL}:{SEL+3}], v[{la}:{la+3}], 0
            v_exp_f32 v{T}, v{T}
            v_exp_f32 v{T+1}, v{T+1}
            v_mfma_f32_16x16x32_bf16 v[{V+4}:{V+7}], v[{SEL}:{SEL+3}], v[{lb}:{lb+3}], 0
            v_exp_f32 v{T+2}, v{T+2}
            s_add_u32 s3, s{sP}, 4
            s_cmp_lt_u32 s3, s{sL}
            s_cselect_b32 s{S_TBL+2}, {N+1}, 0
            buffer_load_dwordx4 v[{la}:{la+3}], v[{IA}:{IA+1}], s[{S_TBL}:{S_TBL+3}], 0 idxen offen
            buffer_load_dwordx4 v[{lb}:{lb+3}], v[{IB}:{IB+1}], s[{S_TBL}:{S_TBL+3}], 0 idxen offen
            ds_read_b32 v{IA}, v{vPair} offset:{32*(u+5)+8}
            ds_read_b32 v{IB}, v{vPair} offset:{32*(u+5)+24}
            ds_read_b32 v{nn_nxt}, v{vPair} offset:{32*(u+2)+12}
            """)
            for r in range(3, 8): a(f"v_exp_f32 v{T+r}, v{T+r}")
            a("s_waitcnt lgkmcnt(3)")
            for i in range(4):
                a(pk('fma', T + 2 * i, T + 2 * i, CC if rm else CEA + (2 * i) % 4, CC, mod=' clamp'))
            for i in (0, 2): a(pk('mul', D + i, T + i, T + 4 + i))
            for i in (0, 2): a(pk('add', ND + i, T + i, T + 4 + i))
            for i in (0, 2): a(pk('mul', W + i, V + i, T + 4 + i))
            for i in (0, 2): a(pk('fma', W + i, V + 4 + i, T + i, W + i))
            a(f"""
            s_waitcnt vmcnt(6)
            v_mfma_f32_16x16x16_bf16 v[{T}:{T+3}], v[{EE}:{EE+1}], v[{WC}:{WC+1}], v[{na}:{na+3}]
            v_rcp_f32 v{D}, v{D}
            v_rcp_f32 v{D+1}, v{D+1}
            v_mfma_f32_16x16x16_bf16 v[{T+4}:{T+7}], v[{EE+2}:{EE+3}], v[{WC}:{WC+1}], v[{nb}:{nb+3}]
            v_rcp_f32 v{D+2}, v{D+2}
            v_rcp_f32 v{D+3}, v{D+3}
            ds_read2_b64 v[{EE}:{EE+3}], v{vE} offset0:{4*(u+2)} offset1:{4*(u+2)+2}
            """)
            for i in (0, 2): a(pk('fma', DEN + i, ND + i, D + i, DEN + i))
            for i in (0, 2): a(pk('fma', NUM + i, W + i, D + i, NUM + i))
            if u == 3: a(f"v_add_u32 v{vPair}, 128, v{vPair}\nv_add_u32 v{vE}, v{vEs}, v{vE}")
            a(f"""
            s_and_b64 s[{TMP}:{TMP+1}], s[{M0_}:{M0_+1}], s[{PAT}:{PAT+1}]
            s_waitcnt lgkmcnt(0)
            s_cbranch_scc0 K2_NF_{rm}_{u}
            s_mul_i32 exec_lo, s{TMP}, 0xffff
            s_mul_i32 exec_hi, s{TMP+1}, 0xffff
            """)
            for r in range(4): a(f"ds_add_f32 v{vRow}, v{NUM+r} offset:{64*r}")
            for r in range(4): a(f"ds_add_f32 v{vRow}, v{DEN+r} offset:{256+64*r}")
            a(f"""
            v_add_u32 v{vTmp}, v{nn_cur}, v{IA+1}
            v_add_u32 v{vRow}, v{nn_cur}, v{vJ4}
            ds_read_b128 v[{CEA}:{CEA+3}], v{vTmp} offset:512
            """)
            for i in range(4): a(f"v_pk_mov_b32 v[{NUM+2*i}:{NUM+2*i+1}], 0, 0")
            a(f"""
            s_mov_b64 exec, -1
            K2_NF_{rm}_{u}:
            s_lshr_b64 s[{M0_}:{M0_+1}], s[{M0_}:{M0_+1}], 1
            s_add_u32 s{sP}, s{sP}, 1
            """)
            if u == 3: a(f"s_cmp_eq_u32 s{sP}, 16\ns_cselect_b64 s[{M0_}:{M0_+1}], s[{M1_}:{M1_+1}], s[{M0_}:{M0_+1}]")
            a(f"s_cmp_lt_u32 s{sP}, s{sL}")
            a(f"s_cbranch_scc0 K2_LOOP_DONE" if u < 3 else f"s_cbranch_scc1 K2_LOOP_{rm}")
        if rm == 0: a("s_branch K2_LOOP_DONE")
    a("K2_LOOP_DONE:")
    st()
    a(f"""
    s_sub_u32 s{sNB}, s{sNB}, 1
    s_cmp_eq_u32 s{sNB}, 0
    s_cbranch_scc1 K2_FINAL
    s_waitcnt vmcnt(0) lgkmcnt(0)
    s_barrier
    v_lshrrev_b32 v2, 2, v0
    v_lshlrev_b32 v3, 2, v2
    buffer_load_dword v{vRem}, v3, s[{S_INFO}:{S_INFO+3}], 0 offen
    s_mov_b32 s3, {RECREG}
    v_mul_u32_u24 v{vRecA}, s3, v2
    v_and_b32 v15, 3, v0
    v_lshl_add_u32 v{vRecA}, v15, 4, v{vRecA}
    v_mov_b32 v{vOne}, 16
    v_add_u32 v15, 12, v15
    v_add_u32 v15, s12, v15
    s_add_u32 s12, s12, 12
    s_lshl_b32 s3, s12, 4
    v_add_u32 v{vRecA}, s3, v{vRecA}
    v_mov_b32 v16, 0
    v_mov_b32 v17, 0
    v_mov_b32 v18, 0
    v_mov_b32 v19, 0
    v_mov_b32 v20, 0
    v_mov_b32 v21, 0
    v_mov_b32 v22, {N}
    v_mov_b32 v23, {NPB*1024}
    v_lshlrev_b32 v5, 4, v0
    v_add_u32 v4, {PAIRS}, v5
    v_add_u32 v5, {CNT}, v5
    ds_write_b128 v4, v[20:23]
    ds_write_b128 v4, v[20:23] offset:16384
    ds_write_b128 v4, v[20:23] offset:32768
    v_cmp_gt_u32 vcc, {NPAIR*2 - 3072}, v0
    s_and_saveexec_b64 s[{TMP}:{TMP+1}], vcc
    ds_write_b128 v4, v[20:23] offset:49152
    v_cmp_gt_u32 vcc, 32, v0
    s_and_b64 exec, exec, vcc
    ds_write_b128 v5, v[16:19]
    s_mov_b64 exec, -1
    s_cmp_eq_u32 s{sRM}, 0
    s_cbranch_scc1 K2_NB_NOFLAG
    v_mov_b32 v4, {FLAG}
    v_mov_b32 v5, 17
    ds_write_b32 v4, v5
    K2_NB_NOFLAG:
    s_waitcnt vmcnt(0)
    v_and_b32 v3, 0xffff, v{vRem}
    v_lshrrev_b32 v{vRem}, 16, v{vRem}
    v_lshl_add_u32 v{vRecA}, v3, 6, v{vRecA}
    v_sub_u32 v{vRem}, v{vRem}, v15
    """)
    for k in range(3): a(f"v_cmp_lt_i32 s[{MK+2*k}:{MK+2*k+1}], {4*k}, v{vRem}")
    for k in range(3):
        a(f"s_mov_b64 exec, s[{MK+2*k}:{MK+2*k+1}]\nbuffer_load_dwordx4 v[{REC+4*k}:{REC+4*k+3}], v{vRecA}, s[{S_REC}:{S_REC+3}], 0 offen offset:{64*k}")
    a("s_mov_b64 exec, -1\ns_waitcnt vmcnt(0)\ns_branch K2_BATCH")
    a(f"""
    K2_FINAL:
    v_lshrrev_b32 v2, 3, v0
    v_lshlrev_b32 v2, 10, v2
    v_and_b32 v3, 7, v0
    v_lshl_add_u32 v2, v3, 5, v2
    v_mov_b32 v4, {EPSP}
    v_mov_b32 v5, {EPSP}
    v_cmp_gt_u32 vcc, {NPB*8}, v0
    s_waitcnt lgkmcnt(0)
    s_barrier
    """)
    st()
    a(f"""
    s_and_b64 exec, exec, vcc
    s_cbranch_execz K2_END2
    ds_read_b128 v[40:43], v2 offset:256
    ds_read_b128 v[44:47], v2 offset:272
    ds_read_b128 v[32:35], v2
    ds_read_b128 v[36:39], v2 offset:16
    ds_read_b128 v[48:51], v2 offset:768
    ds_read_b128 v[52:55], v2 offset:784
    s_waitcnt vmcnt(0)
    """)
    for i in range(4):
        a(f"v_lshlrev_b32 v{56+2*i}, 16, v{XR+i}\nv_and_b32 v{57+2*i}, 0xffff0000, v{XR+i}")
    a("s_waitcnt lgkmcnt(4)")
    for i in range(4): a(pk('add', 40 + 2 * i, 40 + 2 * i, 4))
    for i in range(8): a(f"v_rcp_f32 v{40+i}, v{40+i}")
    a("s_waitcnt lgkmcnt(0)")
    for i in range(4): a(pk('fma', 32 + 2 * i, 32 + 2 * i, 40 + 2 * i, 48 + 2 * i))
    for i in range(8): a(f"v_max_f32 v{32+i}, 0, v{32+i}")
    for i in range(4): a(pk('add', 32 + 2 * i, 32 + 2 * i, 56 + 2 * i))
    for i in range(4): a(f"v_cvt_pk_bf16_f32 v{40+i}, v{32+2*i}, v{33+2*i}")
    a(f"buffer_store_dwordx4 v[40:43], v{vXo}, s[{S_OUT}:{S_OUT+3}], 0 offen")
    a("K2_END2:")
    if DIAG:
        a("s_waitcnt vmcnt(0)"); st(); st.dump(1, "s2", f"s{sW}", 2, S_REC)
    a("K2_END:\ns_endpgm")

HEADER = open('standalone__edge_featured_mpnn_gatedgcn__graph.s.ref').read().split('; Override launch')[0]

def kd(name, vgpr, sgpr):
    return f""".amdhsa_kernel {name}
  .amdhsa_next_free_vgpr {vgpr}
  .amdhsa_next_free_sgpr {sgpr}
  .amdhsa_accum_offset {(vgpr + 3) // 4 * 4}
  .amdhsa_group_segment_fixed_size 0
  .amdhsa_kernarg_size 96
  .amdhsa_user_sgpr_count 2
  .amdhsa_user_sgpr_kernarg_segment_ptr 1
  .amdhsa_system_sgpr_workgroup_id_x 1
.end_amdhsa_kernel
"""

def build(verbose=False):
    out = HEADER
    out += "; Two launches: prep_kernel (node GEMMs -> gather tables, edge partition by destination bucket),\n"
    out += "; agg_kernel (per bucket / feature half: gates, normalised aggregation, output).\n"
    out += f"; @launch kernel=prep_kernel grid=({K1_GRID},1,1) block=({K1_BLOCK},1,1) lds={K1_LDS}\n"
    out += f"; @launch kernel=agg_kernel grid=({K2_GRID},1,1) block=({K2_BLOCK},1,1) lds={K2_LDS}\n"
    out += '.amdgcn_target "amdgcn-amd-amdhsa--gfx950"\n.text\n'
    for name, g in (("prep_kernel", gen_k1), ("agg_kernel", gen_k2)):
        a = Asm(); g(a)
        out += f".globl {name}\n.p2align 8\n.type {name},@function\n" + a.finish(verbose)
    out += '.section .rodata,"a"\n.p2align 6\n' + kd("prep_kernel", 128, 96) + '.p2align 6\n' + kd("agg_kernel", 128, 102)
    return out

if __name__ == '__main__':
    args = sys.argv[1:]
    if '--diag' in args: DIAG = True; args.remove('--diag')
    v = '-v' in args
    if v: args.remove('-v')
    open(args[0], 'w').write(build(v))
```

```python
import sys, struct, math
from asmlib import Asm

def f2u(x): return struct.unpack('<I', struct.pack('<f', x))[0]

N = 12500; E = 400000
NPB = 98; NB = 128
NC = 256; CH = 1564
RECREG = (CH + NB * 3) * 16
TBL_H = 0x310000
AU_OFF = 0x800000
REC_OFF = 0x1000000
OFFS_OFF = 0x1800000
DIAG_OFF = 0x2000000
NEGL2E = f2u(-math.log2(math.e))
TINY = 0x0d800000
CBITS = (127 - 62) << 23
EPSP = f2u(1e-6 * 2.0 ** 62)

G_WG = 224; S_WG = 256; K1_GRID = G_WG + S_WG; K1_BLOCK = 448; K1_LDS = 61440
K2_GRID = 256; K2_BLOCK = 1024
LMAX = 28
ROWS = 0; PAIRS = 99 * 1024; NPAIR = 1800
CNT = PAIRS + NPAIR * 32; OFFA = CNT + 512; FLAG = OFFA + 512; ZERO = FLAG + 64; K2_LDS = ZERO + 192
FASTMAX = LMAX * 128 - NPB

DIAG = False
OPT = {}

def srd(a, s, lo, hi, size, stride=0):
    a(f"s_mov_b32 s{s}, {lo}")
    if stride:
        a(f"s_and_b32 s{s+1}, {hi}, 0xffff\ns_or_b32 s{s+1}, s{s+1}, {stride << 16}")
    else:
        a(f"s_and_b32 s{s+1}, {hi}, 0xffff")
    a(f"s_mov_b32 s{s+2}, {size}\ns_mov_b32 s{s+3}, 0x20000")

def srd_off(a, s, plo, off, size, stride=0):
    a(f"s_add_u32 s{s}, s{plo}, {off}\ns_addc_u32 s{s+1}, s{plo+1}, 0\ns_and_b32 s{s+1}, s{s+1}, 0xffff")
    if stride: a(f"s_or_b32 s{s+1}, s{s+1}, {stride << 16}")
    a(f"s_mov_b32 s{s+2}, {size}\ns_mov_b32 s{s+3}, 0x20000")

def wave_scan(a, v):
    for sh in (1, 2, 4, 8):
        a(f"v_add_u32_dpp v{v}, v{v}, v{v} row_shr:{sh} row_mask:0xf bank_mask:0xf bound_ctrl:1")
    a(f"v_add_u32_dpp v{v}, v{v}, v{v} row_bcast:15 row_mask:0xa bank_mask:0xf")
    a(f"v_add_u32_dpp v{v}, v{v}, v{v} row_bcast:31 row_mask:0xc bank_mask:0xf")

def wave_max(a, v):
    for sh in (1, 2, 4, 8):
        a(f"v_max_u32_dpp v{v}, v{v}, v{v} row_shr:{sh} row_mask:0xf bank_mask:0xf bound_ctrl:1")
    a(f"v_max_u32_dpp v{v}, v{v}, v{v} row_bcast:15 row_mask:0xa bank_mask:0xf")
    a(f"v_max_u32_dpp v{v}, v{v}, v{v} row_bcast:31 row_mask:0xc bank_mask:0xf")

class Stamps:
    def __init__(self, a, base): self.a = a; self.base = base; self.n = 0
    def __call__(self):
        if not DIAG: return
        s = self.base + self.n; self.n += 1
        assert s < 100
        op = 's_memtime' if OPT.get('CYC') else 's_memrealtime'
        self.a(f"{op} s[100:101]\ns_waitcnt lgkmcnt(0)\ns_mov_b32 s{s}, s100")
    def dump(self, kern, wg, swave, vt, srdreg):
        if not DIAG: return
        a = self.a
        srd_off(a, srdreg, 26, DIAG_OFF + kern * 0x100000, 0x100000)
        a(f"s_lshl_b32 s3, {wg}, 4\ns_add_u32 s3, s3, {swave}\ns_lshl_b32 s3, s3, 6")
        a(f"s_mov_b64 exec, 1\nv_mov_b32 v{vt}, s3")
        for i in range(self.n):
            s = self.base + i
            a(f"v_mov_b32 v{vt+1}, s{s}\nbuffer_store_dword v{vt+1}, v{vt}, s[{srdreg}:{srdreg+3}], 0 offen offset:{4*i}\ns_nop 1")

def gen_k1(a):
    st = Stamps(a, 64)
    a("prep_kernel:")
    a(f"s_cmp_ge_u32 s2, {K1_GRID}\ns_cbranch_scc1 K1_END")
    st()
    a("""
    s_load_dwordx16 s[4:19], s[0:1], 0
    s_load_dwordx8 s[20:27], s[0:1], 64
    v_lshrrev_b32 v2, 6, v0
    v_and_b32 v1, 63, v0
    v_readfirstlane_b32 s50, v2
    """)
    a(f"s_cmp_ge_u32 s2, {G_WG}\ns_cbranch_scc1 K1_SORT")
    XL = [8, 24]; ACC = 40; WF = 104; WA = 120
    def acc(t, m, ct): return ACC + ((t * 2 + m) * 4 + ct) * 4
    a("""
    s_lshr_b32 s51, s2, 5
    s_lshl_b32 s51, s51, 3
    s_and_b32 s52, s2, 7
    s_add_u32 s51, s51, s52              ; rb
    s_bfe_u32 s52, s2, 0x10003           ; h
    s_bfe_u32 s53, s2, 0x10004           ; pairsel
    s_mul_i32 s54, s51, 224
    s_lshl_b32 s55, s50, 5
    s_add_u32 s54, s54, s55
    s_lshl_b32 s54, s54, 8               ; R0*256
    v_lshlrev_b32 v2, 4, v1              ; lane*16
    v_add_u32 v2, s54, v2
    v_add_u32 v3, 4096, v2
    v_lshrrev_b32 v4, 3, v1
    v_lshlrev_b32 v4, 8, v4
    v_bfe_u32 v5, v1, 4, 1
    v_lshlrev_b32 v5, 1, v5
    v_and_b32 v6, 7, v1
    v_xor_b32 v5, v5, v6
    v_lshl_add_u32 v5, v5, 4, v4
    s_waitcnt lgkmcnt(0)
    """)
    srd(a, 28, "s4", "s5", N * 256)
    for q in range(4): a(f"buffer_load_dwordx4 v[{XL[0]+4*q}:{XL[0]+4*q+3}], v2, s[28:31], 0 offen offset:{q*1024}")
    for q in range(4): a(f"buffer_load_dwordx4 v[{XL[1]+4*q}:{XL[1]+4*q+3}], v3, s[28:31], 0 offen offset:{q*1024}")
    a("""
    s_cmp_eq_u32 s53, 0
    s_cselect_b32 s40, s14, s12
    s_cselect_b32 s41, s15, s13
    s_cselect_b32 s42, s20, s18
    s_cselect_b32 s43, s21, s19
    s_and_b32 s41, s41, 0xffff
    s_and_b32 s43, s43, 0xffff
    s_mov_b32 s34, 32768
    s_mov_b32 s35, 0x20000
    s_lshl_b32 s56, s52, 7               ; h*128
    """)
    for i in range(5):
        a(f"s_add_u32 s57, s50, {7*i}           ; piece")
        if i == 4: a("s_cmp_ge_u32 s57, 32\ns_cbranch_scc1 K1_DMA_DONE")
        a(f"""
        s_cmp_lt_u32 s57, 16
        s_cselect_b32 s32, s40, s42
        s_cselect_b32 s33, s41, s43
        s_and_b32 s58, s57, 1
        s_lshl_b32 s58, s58, 6
        v_xor_b32 v4, s58, v5
        s_and_b32 s58, s57, 15
        s_lshl_b32 s58, s58, 11
        s_add_u32 s58, s58, s56
        s_lshl_b32 s59, s57, 10
        s_mov_b32 m0, s59
        s_nop 0
        buffer_load_dwordx4 v4, s[32:35], s58 offen lds
        """)
    a("K1_DMA_DONE:")
    a(f"""
    s_mul_i32 s57, s53, {AU_OFF}
    s_mul_i32 s58, s52, {TBL_H}
    s_add_u32 s57, s57, s58
    """)
    srd_off(a, 36, 26, "s57", N * 256)
    a(f"""
    s_lshl_b32 s57, s50, 12
    s_add_u32 s57, s57, 32768            ; XB
    v_lshrrev_b32 v6, 4, v1              ; l>>4
    v_and_b32 v7, 15, v1                 ; l&15
    v_xor_b32 v40, v6, v7
    v_lshlrev_b32 v40, 4, v40            ; ((l&15)^(l>>4))*16
    v_lshl_add_u32 v44, v7, 8, v40       ; i*256 + (kslab^i)*16
    v_lshl_add_u32 v40, v6, 8, v40       ; (l>>4)*256 + ...
    v_add_u32 v40, s57, v40
    v_add_u32 v44, s57, v44
    """)
    for q in range(1, 4): a(f"v_xor_b32 v{40+q}, {64*q}, v40\nv_xor_b32 v{44+q}, {64*q}, v44")
    a(f"""
    v_bfe_u32 v48, v1, 2, 2              ; r4
    v_lshl_add_u32 v49, v6, 3, v48       ; 8*kslab + r4
    v_lshlrev_b32 v49, 7, v49
    v_and_b32 v50, 3, v1                 ; c4
    v_lshl_add_u32 v49, v50, 3, v49
    v_lshrrev_b32 v48, 1, v48            ; (r4>>1)&1
    v_and_b32 v50, 1, v6
    v_lshl_or_b32 v48, v50, 1, v48       ; g'
    v_lshl_add_u32 v{WA}, v48, 5, v49
    """)
    for ct in range(1, 4): a(f"v_xor_b32 v{WA+ct}, {32*ct}, v{WA}")
    a(f"""
    v_lshlrev_b32 v124, 10, v6
    v_lshl_add_u32 v124, v7, 4, v124
    v_add_u32 v124, s54, v124
    v_add_u32 v125, 4096, v124
    s_waitcnt vmcnt(0)
    """)
    st()
    for t in range(2):
        for q in range(4): a(f"ds_write_b128 v{40+q}, v[{XL[t]+4*q}:{XL[t]+4*q+3}] offset:{q*1024}")
        a("s_waitcnt lgkmcnt(0)")
        for ks in range(4): a(f"ds_read_b128 v[{XL[t]+4*ks}:{XL[t]+4*ks+3}], v{44+ks}")
        a("s_waitcnt lgkmcnt(0)")
    a("s_barrier")
    st()
    seq = [(ks, m, ct) for ks in range(4) for m in range(2) for ct in range(4)]
    def rd(s):
        ks, m, ct = seq[s]; b = WF + 4 * (s % 4); o = m * 16384 + ks * 4096
        a(f"ds_read_b64_tr_b16 v[{b}:{b+1}], v{WA+ct} offset:{o}\nds_read_b64_tr_b16 v[{b+2}:{b+3}], v{WA+ct} offset:{o+512}")
    for s in range(3): rd(s)
    for s in range(32):
        if s + 3 < 32: rd(s + 3)
        a(f"s_waitcnt lgkmcnt({2*min(3, 31-s)})")
        ks, m, ct = seq[s]; b = WF + 4 * (s % 4)
        for t in range(2):
            d = acc(t, m, ct); c = "0" if ks == 0 else f"v[{d}:{d+3}]"
            a(f"v_mfma_f32_16x16x32_bf16 v[{d}:{d+3}], v[{XL[t]+4*ks}:{XL[t]+4*ks+3}], v[{b}:{b+3}], {c}")
    st()
    a(f"""
    s_mov_b32 s44, {NEGL2E}
    s_mov_b32 s45, {NEGL2E}
    s_mov_b32 s46, 0x05040100
    s_mov_b32 s47, 0x07060302
    v_mov_b32 v2, {TINY}
    v_mov_b32 v3, {TINY}
    """)
    for t in range(2):
        O = XL[t]
        for rp in (0, 2):
            for ct in range(4):
                h = acc(t, 0, ct) + rp; l = acc(t, 1, ct) + rp
                a(f"""
                v_pk_fma_f32 v[{h}:{h+1}], v[{h}:{h+1}], s[44:45], v[2:3]
                v_cvt_pk_bf16_f32 v{l}, v{l}, v{l+1}
                v_sub_u32_sdwa v{h}, v{h}, v{l} dst_sel:DWORD dst_unused:UNUSED_PAD src0_sel:DWORD src1_sel:WORD_0
                v_sub_u32_sdwa v{h+1}, v{h+1}, v{l} dst_sel:DWORD dst_unused:UNUSED_PAD src0_sel:DWORD src1_sel:WORD_1
                v_cvt_pk_bf16_f32 v{h}, v{h}, v{h+1}
                v_perm_b32 v{O+4*rp+ct}, v{h}, v{l}, s46
                v_perm_b32 v{O+4*(rp+1)+ct}, v{h}, v{l}, s47
                """)
            for r in (rp, rp + 1):
                a(f"buffer_store_dwordx4 v[{O+4*r}:{O+4*r+3}], v{124+t}, s[36:39], 0 offen offset:{r*256}")
    st()
    if DIAG:
        a("s_waitcnt vmcnt(0)"); st(); st.dump(0, "s2", "s50", 2, 60)
    a("s_endpgm")
    st = Stamps(a, 65); st.n = 0
    IMG = 1024
    a("K1_SORT:")
    a(f"""
    s_sub_u32 s51, s2, {G_WG}
    s_and_b32 s52, s51, 7
    s_lshl_b32 s52, s52, 5
    s_lshr_b32 s51, s51, 3
    s_add_u32 s51, s51, s52              ; chunk c
    s_mul_i32 s52, s51, {CH}
    v_lshl_add_u32 v2, v0, 2, s52        ; e0
    v_mov_b32 v8, 0
    v_lshlrev_b32 v9, 2, v0
    v_cmp_gt_u32 vcc, 128, v0
    s_and_saveexec_b64 s[48:49], vcc
    ds_write_b32 v9, v8
    s_mov_b64 exec, -1
    s_mov_b32 s53, {E}
    v_cmp_gt_u32 vcc, {CH//4}, v0
    v_cmp_gt_u32 s[48:49], s53, v2
    s_and_b64 s[48:49], s[48:49], vcc
    v_lshlrev_b32 v3, 2, v2
    v_lshlrev_b32 v4, 3, v2
    s_waitcnt lgkmcnt(0)
    """)
    srd(a, 28, "s10", "s11", E * 4)
    srd(a, 32, "s8", "s9", E * 4)
    srd(a, 36, "s6", "s7", E * 8)
    a(f"""
    s_mov_b64 exec, s[48:49]
    buffer_load_dwordx4 v[8:11], v3, s[28:31], 0 offen        ; dst
    buffer_load_dwordx4 v[12:15], v3, s[32:35], 0 offen       ; src
    buffer_load_dwordx4 v[16:19], v4, s[36:39], 0 offen       ; e
    buffer_load_dwordx4 v[20:23], v4, s[36:39], 0 offen offset:16
    s_mul_i32 s53, s51, {RECREG}
    s_add_u32 s53, s53, {REC_OFF}
    """)
    srd_off(a, 40, 26, "s53", 0)
    srd(a, 44, "s26", "s27", DIAG_OFF)
    a(f"""
    s_mov_b32 s54, 42800
    s_mov_b32 s55, {NPB}
    v_mov_b32 v5, 16
    s_barrier
    s_waitcnt vmcnt(3)
    """)
    st()
    for i in range(4):
        a(f"""
        v_mul_u32_u24 v{24+i}, s54, v{8+i}
        v_lshrrev_b32 v{24+i}, 22, v{24+i}           ; bucket
        v_mul_u32_u24 v{37+2*i}, s55, v{24+i}
        v_lshlrev_b32 v{24+i}, 2, v{24+i}
        ds_add_rtn_u32 v{28+i}, v{24+i}, v5
        v_sub_u32 v{37+2*i}, v{8+i}, v{37+2*i}
        v_lshlrev_b32 v{37+2*i}, 10, v{37+2*i}       ; node*1024
        """)
    a("s_waitcnt vmcnt(2)")
    for i in range(4): a(f"v_lshlrev_b32 v{36+2*i}, 8, v{12+i}")
    a("""
    s_mov_b64 exec, -1
    v_lshlrev_b32 v6, 3, v1
    s_waitcnt lgkmcnt(0)
    s_barrier
    ds_read_b64 v[44:45], v6
    s_waitcnt lgkmcnt(0)
    v_add_u32 v46, 63, v44
    v_add_u32 v47, 63, v45
    v_and_b32 v46, -64, v46
    v_and_b32 v47, -64, v47
    v_add_u32 v47, v46, v47
    v_mov_b32 v48, v47
    """)
    wave_scan(a, 48)
    a(f"""
    v_sub_u32 v50, v48, v47              ; excl
    v_readlane_b32 s42, v48, 63
    v_add_u32 v51, v50, v46
    v_add_u32 v52, {IMG}, v50
    v_add_u32 v53, {IMG}, v51
    ds_write_b64 v6, v[52:53] offset:512
    s_mov_b64 exec, s[48:49]
    """)
    for i in range(4): a(f"ds_read_b32 v{32+i}, v{24+i} offset:512")
    a("s_waitcnt vmcnt(0) lgkmcnt(0)")
    for i in range(4):
        a(f"v_add_u32 v{32+i}, v{32+i}, v{28+i}\nds_write2_b64 v{32+i}, v[{16+2*i}:{17+2*i}], v[{36+2*i}:{37+2*i}] offset0:0 offset1:1")
    a(f"""
    s_mov_b64 exec, -1
    s_cmp_lg_u32 s50, 0
    s_cbranch_scc1 K1_NOINFO
    v_lshrrev_b32 v50, 6, v50
    v_lshrrev_b32 v51, 6, v51
    v_lshl_or_b32 v50, v44, 12, v50
    v_lshl_or_b32 v51, v45, 12, v51
    s_lshl_b32 s53, s51, 2
    s_add_u32 s53, s53, {OFFS_OFF}
    v_lshlrev_b32 v7, 11, v1
    v_add_u32 v7, s53, v7
    buffer_store_dword v50, v7, s[44:47], 0 offen
    buffer_store_dword v51, v7, s[44:47], 0 offen offset:1024
    s_cmp_lg_u32 s51, 0
    s_cbranch_scc1 K1_NOINFO
    v_mov_b32 v50, 0x7f000000
    v_lshlrev_b32 v7, 2, v1
    v_add_u32 v7, {N*256}, v7
    v_add_u32 v51, {TBL_H}, v7
    buffer_store_dword v50, v7, s[44:47], 0 offen
    buffer_store_dword v50, v51, s[44:47], 0 offen
    K1_NOINFO:
    v_lshlrev_b32 v7, 4, v0
    s_waitcnt lgkmcnt(0)
    s_barrier
    """)
    st()
    for i in range(5):
        a(f"ds_read_b128 v[{8+4*i}:{11+4*i}], v7 offset:{IMG + i*K1_BLOCK*16}")
    for i in range(1, 5): a(f"v_add_u32 v{40+i}, {i*K1_BLOCK*16}, v7")
    for i in range(5):
        a(f"s_waitcnt lgkmcnt({4-i})")
        a(f"buffer_store_dwordx4 v[{8+4*i}:{11+4*i}], v{7 if i == 0 else 40+i}, s[40:43], 0 offen")
    st()
    if DIAG:
        a("s_waitcnt vmcnt(0)"); st(); st.base = 64; st.n += 1; st.dump(0, "s2", "s50", 2, 60)
    a("K1_END:\ns_endpgm")

def gen_k2(a0):
    a = a0
    st = Stamps(a, 84)
    S_REC, S_INFO, S_AU, S_TBL, S_RAW, S_WC, S_X, S_OUT = 28, 32, 36, 40, 44, 48, 52, 56
    MK = 60
    sH, sB, sW, sL, sP, sNB, sRM, sT = 76, 77, 78, 79, 80, 81, 82, 83
    M0_, M1_, PAT, TMP = 4, 6, 8, 10
    REC = 32
    RNK = 64
    AU = 72
    vRem, vRecA, vOne = 80, 81, 82
    CA = 84
    LD = 32
    T = 64; V = 72; D = 80; ND = 84; W = 88; NUM = 92; DEN = 96; CEA = 100; EE = 104
    IA, IB = 108, 110
    NN = 112
    vRow, vTmp, vPair, vE, vEs, vJ4 = 114, 115, 116, 117, 118, 119
    WC = 120; CC = 122; SEL = 124
    XR = 8
    vXo = 12
    vCntA = 13
    a("agg_kernel:")
    a(f"s_cmp_ge_u32 s2, {K2_GRID}\ns_cbranch_scc1 K2_END")
    st()
    a(f"""
    s_load_dwordx16 s[4:19], s[0:1], 0
    s_load_dwordx8 s[20:27], s[0:1], 64
    v_lshrrev_b32 v2, 6, v0
    v_and_b32 v1, 63, v0
    v_readfirstlane_b32 s{sW}, v2
    s_bfe_u32 s{sH}, s2, 0x10002
    s_lshr_b32 s{sB}, s2, 3
    s_lshl_b32 s{sB}, s{sB}, 2
    s_and_b32 s3, s2, 3
    s_add_u32 s{sB}, s{sB}, s3
    v_lshlrev_b32 v14, 4, v0              ; t*16
    v_lshrrev_b32 v2, 2, v0               ; segment
    v_lshlrev_b32 v3, 2, v2
    v_lshlrev_b32 v4, 4, v1
    s_mul_i32 s3, s{sB}, {NPB*256}
    v_add_u32 v5, s3, v14
    v_add_u32 v6, 16384, v5
    s_lshl_b32 s{sT}, s{sH}, 7
    v_lshl_add_u32 v7, v1, 1, s{sT}
    v_lshrrev_b32 v{vXo}, 3, v0
    v_lshlrev_b32 v{vXo}, 8, v{vXo}
    v_and_b32 v15, 7, v0
    v_lshl_add_u32 v{vXo}, v15, 4, v{vXo}
    s_add_u32 s3, s3, s{sT}
    v_add_u32 v{vXo}, s3, v{vXo}
    s_lshl_b32 s3, s{sB}, 10
    s_add_u32 s3, s3, {OFFS_OFF}
    s_waitcnt lgkmcnt(0)
    """)
    srd_off(a, S_INFO, 26, "s3", 1024)
    a(f"""
    buffer_load_dword v{vRem}, v3, s[{S_INFO}:{S_INFO+3}], 0 offen
    buffer_load_dwordx4 v[24:27], v4, s[{S_INFO}:{S_INFO+3}], 0 offen
    s_mul_i32 s{sT}, s{sH}, {TBL_H}
    s_add_u32 s3, s{sT}, {AU_OFF}
    """)
    srd_off(a, S_AU, 26, "s3", N * 256)
    srd(a, S_WC, "s16", "s17", 1024)
    a(f"""
    buffer_load_dwordx4 v[{AU}:{AU+3}], v5, s[{S_AU}:{S_AU+3}], 0 offen
    buffer_load_dwordx4 v[{AU+4}:{AU+7}], v6, s[{S_AU}:{S_AU+3}], 0 offen
    """)
    for k in range(4): a(f"buffer_load_ushort v{28+k}, v7, s[{S_WC}:{S_WC+3}], 0 offen offset:{256*k}")
    srd_off(a, S_REC, 26, REC_OFF, NC * RECREG)
    srd_off(a, S_TBL, 26, f"s{sT}", (N + 1) * 256)
    srd_off(a, S_RAW, 26, f"s{sT}", (N + 1) * 256)
    srd(a, S_X, "s4", "s5", N * 256)
    srd(a, S_OUT, "s22", "s23", N * 256)
    a(f"""
    v_mov_b32 v16, 0
    v_mov_b32 v17, 0
    v_mov_b32 v18, 0
    v_mov_b32 v19, 0
    v_mov_b32 v20, 0
    v_mov_b32 v21, 0
    v_mov_b32 v22, {N*256}
    v_mov_b32 v23, {NPB*1024}
    v_lshrrev_b32 v84, 5, v0
    v_lshlrev_b32 v84, 10, v84
    v_and_b32 v85, 31, v0
    v_lshl_add_u32 v84, v85, 4, v84
    v_add_u32 v85, 65536, v84
    v_add_u32 v86, {PAIRS}, v14
    v_add_u32 v87, {CNT}, v14
    ds_write_b128 v84, v[16:19]
    ds_write_b128 v84, v[16:19] offset:32768
    ds_write_b128 v85, v[16:19]
    ds_write_b128 v86, v[20:23]
    ds_write_b128 v86, v[20:23] offset:16384
    ds_write_b128 v86, v[20:23] offset:32768
    v_cmp_gt_u32 vcc, {NPAIR*2 - 3072}, v0
    s_and_saveexec_b64 s[{MK}:{MK+1}], vcc
    ds_write_b128 v86, v[20:23] offset:49152
    v_cmp_gt_u32 vcc, 96, v0
    s_and_b64 exec, exec, vcc
    ds_write_b128 v85, v[16:19] offset:32768
    v_cmp_gt_u32 vcc, {(K2_LDS-CNT)//16}, v0
    s_and_b64 exec, exec, vcc
    ds_write_b128 v87, v[16:19]
    v_cmp_gt_u32 vcc, 16, v0
    s_and_b64 exec, exec, vcc
    v_mov_b32 v16, 1.0
    v_mov_b32 v17, 1.0
    v_mov_b32 v18, 1.0
    v_mov_b32 v19, 1.0
    v_add_u32 v87, {NPB*1024+512}, v14
    ds_write_b128 v87, v[16:19]
    s_mov_b64 exec, -1
    s_mov_b32 s12, 0
    s_mov_b32 s3, {RECREG}
    v_mul_u32_u24 v{vRecA}, s3, v2
    v_and_b32 v15, 3, v0                  ; sub
    v_lshl_add_u32 v{vRecA}, v15, 4, v{vRecA}
    s_lshr_b32 s3, s2, 3
    s_mul_i32 s3, s3, 782
    v_add_u32 v2, s3, v0
    v_lshlrev_b32 v2, 7, v2
    v_cmp_gt_u32 vcc, 782, v0
    v_mov_b32 v3, -1
    v_cndmask_b32 v2, v3, v2, vcc
    v_mov_b32 v{vOne}, 16
    v_lshlrev_b32 v{vCntA}, 3, v1
    v_add_u32 v{vCntA}, {CNT}, v{vCntA}
    s_waitcnt vmcnt(6)
    """)
    st()
    a(f"""
    v_and_b32 v3, 0xffff, v{vRem}
    v_lshrrev_b32 v{vRem}, 16, v{vRem}
    v_lshl_add_u32 v{vRecA}, v3, 6, v{vRecA}
    v_sub_u32 v{vRem}, v{vRem}, v15
    """)
    def rec_loads():
        for k in range(8): a(f"v_cmp_lt_i32 s[{MK+2*k}:{MK+2*k+1}], {4*k}, v{vRem}")
        for k in range(8):
            a(f"s_mov_b64 exec, s[{MK+2*k}:{MK+2*k+1}]\nbuffer_load_dwordx4 v[{REC+4*k}:{REC+4*k+3}], v{vRecA}, s[{S_REC}:{S_REC+3}], 0 offen offset:{64*k}")
        a("s_mov_b64 exec, -1")
    rec_loads()
    if OPT.get('WAITREC'):
        a("s_waitcnt vmcnt(0)"); st()
    if OPT.get('NOTOUCH'): a("v_mov_b32 v2, -1")
    a(f"""
    buffer_load_dwordx4 v[{XR}:{XR+3}], v{vXo}, s[{S_X}:{S_X+3}], 0 offen
    buffer_load_dword v83, v2, s[{S_RAW}:{S_RAW+3}], 0 offen
    v_lshrrev_b32 v24, 16, v24
    v_lshrrev_b32 v25, 16, v25
    v_lshrrev_b32 v26, 16, v26
    v_lshrrev_b32 v27, 16, v27
    v_max3_u32 v2, v24, v25, v26
    v_add3_u32 v3, v24, v25, v26
    v_max_u32 v2, v2, v27
    v_add_u32 v3, v3, v27
    """)
    wave_scan(a, 3)
    a(f"""
    v_cmp_lt_u32 vcc, 32, v2
    v_readlane_b32 s3, v3, 63
    s_mov_b32 s{sNB}, 1
    s_cmp_gt_u32 s3, {FASTMAX}
    s_cbranch_scc1 K2_SLOWMODE
    s_cbranch_vccz K2_MODE_DONE
    K2_SLOWMODE:
    """)
    wave_max(a, 2)
    a(f"""
    v_readlane_b32 s3, v2, 63
    s_add_u32 s3, s3, 11
    s_mul_i32 s3, s3, 43691
    s_lshr_b32 s{sNB}, s3, 19             ; ceil(max/12)
    """)
    for k in range(3, 8): a(f"s_mov_b64 s[{MK+2*k}:{MK+2*k+1}], 0")
    a(f"""
    K2_MODE_DONE:
    v_lshrrev_b32 v2, 4, v0
    v_lshlrev_b32 v2, 10, v2
    v_and_b32 v3, 15, v0
    v_lshl_add_u32 v5, v3, 2, v2          ; row + 4j
    v_lshl_add_u32 v6, v3, 4, v2          ; row + 16j
    v_add_u32 v7, 65536, v5
    v_add_u32 v14, 65536, v6
    s_mov_b32 s3, {f2u(60.0)}
    s_mov_b32 s{sT}, {f2u(-62.0)}
    s_waitcnt vmcnt(14)
    v_max3_f32 v2, |v{AU}|, |v{AU+1}|, |v{AU+2}|
    v_max3_f32 v2, v2, |v{AU+3}|, |v{AU+4}|
    v_max3_f32 v2, v2, |v{AU+5}|, |v{AU+6}|
    v_max_f32 v2, v2, |v{AU+7}|
    v_cmp_lt_f32 s[14:15], s3, v2
    """)
    for i in range(2):
        if i == 1: a(f"v_cmp_gt_u32 vcc, {NPB*16-1024}, v0\ns_and_saveexec_b64 s[{TMP}:{TMP+1}], vcc")
        for r in range(4): a(f"v_add_f32 v{16+r}, s{sT}, v{AU+4*i+r}")
        for r in range(4): a(f"v_exp_f32 v{16+r}, v{16+r}")
        for r in range(4): a(f"v_lshlrev_b32 v{20+r}, 16, v{AU+4*i+r}")
        a(f"ds_write_b128 v{6 if i == 0 else 14}, v[16:19] offset:512")
        for r in range(4): a(f"ds_write_b32 v{5 if i == 0 else 7}, v{20+r} offset:{768+64*r}")
    a(f"""
    s_mov_b64 exec, -1
    s_mov_b32 s3, {NEGL2E}
    s_waitcnt vmcnt(10)
    """)
    for k in range(4): a(f"v_lshlrev_b32 v{28+k}, 16, v{28+k}\nv_mul_f32 v{28+k}, s3, v{28+k}")
    a(f"""
    v_cvt_pk_bf16_f32 v{WC}, v28, v29
    v_cvt_pk_bf16_f32 v{WC+1}, v30, v31
    v_mov_b32 v{CC}, {CBITS}
    v_mov_b32 v{CC+1}, {CBITS}
    v_lshrrev_b32 v2, 4, v1               ; l>>4
    v_bfe_u32 v3, v1, 2, 2                ; (l>>2)&3
    v_and_b32 v16, 3, v1
    v_mov_b32 v17, 0x3f80
    v_cmp_eq_u32 vcc, v2, v3
    v_cndmask_b32 v17, 0, v17, vcc
    """)
    for r in range(4): a(f"v_cmp_eq_u32 vcc, {r}, v16\nv_cndmask_b32 v{SEL+r}, 0, v17, vcc")
    a(f"""
    v_and_b32 v{vJ4}, 15, v1
    v_lshlrev_b32 v{IA+1}, 4, v{vJ4}
    v_lshlrev_b32 v{vJ4}, 2, v{vJ4}
    v_mov_b32 v{IB+1}, v{IA+1}
    K2_BATCH:
    v_mov_b32 v2, {FLAG}
    s_waitcnt lgkmcnt(0)
    s_barrier
    s_mov_b64 exec, s[14:15]
    ds_write_b32 v2, v{vOne}
    s_mov_b64 s[14:15], 0
    s_waitcnt vmcnt(2)
    """)
    st()
    for k in range(8):
        a(f"""
        s_mov_b64 exec, s[{MK+2*k}:{MK+2*k+1}]
        s_cbranch_execz K2_AT_DONE
        v_lshrrev_b32 v{CA+k}, 8, v{REC+4*k+3}
        v_add_u32 v{CA+k}, {CNT}, v{CA+k}
        ds_add_rtn_u32 v{RNK+k}, v{CA+k}, v{vOne}
        """)
    a(f"""
    K2_AT_DONE:
    s_mov_b64 exec, -1
    v_mov_b32 v16, {FLAG}
    s_waitcnt lgkmcnt(0)
    s_barrier
    """)
    st()
    a(f"""
    ds_read_b64 v[2:3], v{vCntA}
    ds_read_b32 v16, v16
    s_waitcnt lgkmcnt(0)
    v_add_u32 v2, 16, v2
    v_add_u32 v3, 16, v3
    v_and_b32 v2, -32, v2
    v_and_b32 v3, -32, v3
    v_add_u32 v3, v2, v3
    v_mov_b32 v4, v3
    v_readfirstlane_b32 s{sRM}, v16
    """)
    wave_scan(a, 4)
    a(f"""
    v_sub_u32 v16, v4, v3
    v_readlane_b32 s{sL}, v4, 63
    v_add_u32 v16, {PAIRS}, v16
    v_add_u32 v17, v16, v2
    ds_write_b64 v{vCntA}, v[16:17] offset:512
    s_add_u32 s{sL}, s{sL}, {63*32}
    s_lshr_b32 s{sL}, s{sL}, 11
    """)
    for k in range(8):
        a(f"s_mov_b64 exec, s[{MK+2*k}:{MK+2*k+1}]\ns_cbranch_execz K2_RD_DONE\nds_read_b32 v{CA+k}, v{CA+k} offset:512")
    a("K2_RD_DONE:\ns_waitcnt lgkmcnt(0)")
    for k in range(8):
        a(f"""
        s_mov_b64 exec, s[{MK+2*k}:{MK+2*k+1}]
        s_cbranch_execz K2_SC_DONE
        v_add_u32 v{CA+k}, v{CA+k}, v{RNK+k}
        ds_write_b128 v{CA+k}, v[{REC+4*k}:{REC+4*k+3}]
        """)
    a(f"""
    K2_SC_DONE:
    s_mov_b64 exec, -1
    s_cmp_eq_u32 s{sRM}, 0
    s_cbranch_scc1 K2_NORM
    s_cmp_eq_u32 s{sRM}, 16
    s_cbranch_scc0 K2_NORM
    ds_write_b128 v6, v[{AU}:{AU+3}] offset:512
    v_cmp_gt_u32 vcc, {NPB*16-1024}, v0
    s_and_saveexec_b64 s[{TMP}:{TMP+1}], vcc
    ds_write_b128 v14, v[{AU+4}:{AU+7}] offset:512
    s_mov_b64 exec, -1
    K2_NORM:
    s_lshl_b32 s3, s{sW}, 2
    s_lshl_b32 s{sT}, s{sL}, 5            ; L*32
    v_lshrrev_b32 v2, 4, v1
    v_bfe_u32 v3, v1, 2, 2
    v_and_b32 v16, 3, v1
    v_cmp_eq_u32 vcc, v2, v16
    v_add_u32 v2, s3, v2
    v_add_u32 v3, s3, v3
    v_mul_u32_u24 v2, s{sT}, v2
    v_mul_u32_u24 v3, s{sT}, v3
    v_add_u32 v{vPair}, {PAIRS}, v2
    v_add_u32 v3, {PAIRS}, v3
    v_mov_b32 v2, {ZERO}
    v_cndmask_b32 v{vE}, v2, v3, vcc
    v_mov_b32 v2, 128
    v_cndmask_b32 v{vEs}, 0, v2, vcc
    v_lshl_add_u32 v2, v{vJ4}, 3, v{vPair} ; + i*32
    v_add_u32 v2, 12, v2
    """)
    for i in range(8): a(f"v_mov_b32 v{NUM+i}, 0")
    a(f"""
    s_mov_b32 s{PAT}, 0x00010001
    s_mov_b32 s{PAT+1}, 0x00010001
    s_waitcnt lgkmcnt(0)
    s_barrier
    """)
    st()
    a(f"""
    s_cmp_eq_u32 s{sL}, 0
    s_cbranch_scc1 K2_LOOP_DONE
    """)
    for p in range(4):
        a(f"ds_read_b32 v{T+4*p}, v{vPair} offset:{32*p+8}\nds_read_b32 v{T+4*p+2}, v{vPair} offset:{32*p+24}")
    a(f"""
    ds_read_b32 v{vTmp}, v{vPair} offset:12
    ds_read2_b32 v[16:17], v2 offset0:0 offset1:8
    ds_read2_b32 v[18:19], v2 offset0:128 offset1:136
    ds_read2_b64 v[{EE}:{EE+3}], v{vE} offset0:0 offset1:2
    ds_read_b32 v{IA}, v{vPair} offset:{32*4+8}
    ds_read_b32 v{IB}, v{vPair} offset:{32*4+24}
    ds_read_b32 v{NN+1}, v{vPair} offset:{32+12}
    s_mov_b32 s{S_TBL+2}, {(N+1)*256}
    s_waitcnt lgkmcnt(7)
    """)
    for p in range(4):
        a(f"v_add_u32 v{T+4*p}, v{T+4*p}, v{IA+1}\nv_add_u32 v{T+4*p+2}, v{T+4*p+2}, v{IA+1}")
        a(f"buffer_load_dwordx4 v[{LD+8*p}:{LD+8*p+3}], v{T+4*p}, s[{S_TBL}:{S_TBL+3}], 0 offen")
        a(f"buffer_load_dwordx4 v[{LD+8*p+4}:{LD+8*p+7}], v{T+4*p+2}, s[{S_TBL}:{S_TBL+3}], 0 offen")
    a(f"""
    s_waitcnt lgkmcnt(4)
    v_add_u32 v{vRow}, v{vTmp}, v{vJ4}
    v_add_u32 v{vTmp}, v{vTmp}, v{IA+1}
    ds_read_b128 v[{CEA}:{CEA+3}], v{vTmp} offset:512
    v_cmp_ne_u32 s[{M0_}:{M0_+1}], v16, v17
    v_cmp_ne_u32 s[{M1_}:{M1_+1}], v18, v19
    s_sub_u32 s3, s{sL}, 1
    s_and_b32 s{sT}, s3, 15
    s_lshl_b64 s[{TMP}:{TMP+1}], s[{PAT}:{PAT+1}], s{sT}
    s_cmp_lt_u32 s3, 16
    s_cbranch_scc1 K2_LAST_LO
    s_or_b64 s[{M1_}:{M1_+1}], s[{M1_}:{M1_+1}], s[{TMP}:{TMP+1}]
    s_branch K2_LAST_DONE
    K2_LAST_LO:
    s_or_b64 s[{M0_}:{M0_+1}], s[{M0_}:{M0_+1}], s[{TMP}:{TMP+1}]
    K2_LAST_DONE:
    s_mov_b32 s{sP}, 0
    s_waitcnt vmcnt(6) lgkmcnt(0)
    v_mfma_f32_16x16x16_bf16 v[{T}:{T+3}], v[{EE}:{EE+1}], v[{WC}:{WC+1}], v[{LD}:{LD+3}]
    v_mfma_f32_16x16x16_bf16 v[{T+4}:{T+7}], v[{EE+2}:{EE+3}], v[{WC}:{WC+1}], v[{LD+4}:{LD+7}]
    s_nop 1
    ds_read2_b64 v[{EE}:{EE+3}], v{vE} offset0:4 offset1:6
    s_nop 4
    s_waitcnt lgkmcnt(0)
    """)
    st()
    a(f"s_cmp_lg_u32 s{sRM}, 0\ns_cbranch_scc1 K2_LOOP_1")
    def pk(op, d, *srcs, mod=''):
        return f"v_pk_{op}_f32 v[{d}:{d+1}], " + ", ".join(f"v[{s}:{s+1}]" for s in srcs) + mod
    a_real = a
    def a(txt):
        out = []
        for l in txt.strip('\n').split('\n'):
            t = l.strip()
            if OPT.get('XLDS') and t.startswith('ds_read') : continue
            if OPT.get('XVMEM') and t.startswith('buffer_load'): continue
            if OPT.get('XFLUSH') and t.startswith('s_cbranch_scc0 K2_NF'): t = t.replace('s_cbranch_scc0', 's_branch')
            if OPT.get('XWAIT') and t.startswith('s_waitcnt'): continue
            if OPT.get('XMFMA') and t.startswith('v_mfma'): continue
            if OPT.get('XPK') and t.startswith('v_pk_') and 'mov' not in t: continue
            if OPT.get('XTRANS') and t.startswith(('v_exp', 'v_rcp')): continue
            out.append(t)
        a_real('\n'.join(out))
    for rm in range(2):
        a(f".p2align 6\nK2_LOOP_{rm}:") if rm == 0 else a(f"K2_LOOP_{rm}:")
        for u in range(4):
            la = LD + 8 * u; lb = la + 4; na = LD + 8 * ((u + 1) % 4); nb = na + 4
            nn_cur = NN + ((u + 1) & 1); nn_nxt = NN + (u & 1)
            if rm:
                a("s_waitcnt lgkmcnt(0)")
                for i in range(4): a(pk('add', T + 2 * i, T + 2 * i, CEA + (2 * i) % 4))
            P1 = "s_setprio 2" if OPT.get('PRIO') else ""
            P0 = "s_setprio 0" if OPT.get('PRIO') else ""
            a(f"""
            {P1}
            v_mfma_f32_16x16x32_bf16 v[{V}:{V+3}], v[{SEL}:{SEL+3}], v[{la}:{la+3}], 0
            v_exp_f32 v{T}, v{T}
            v_exp_f32 v{T+1}, v{T+1}
            v_mfma_f32_16x16x32_bf16 v[{V+4}:{V+7}], v[{SEL}:{SEL+3}], v[{lb}:{lb+3}], 0
            v_exp_f32 v{T+2}, v{T+2}
            s_add_u32 s3, s{sP}, 4
            s_cmp_lt_u32 s3, s{sL}
            s_cselect_b32 s{S_TBL+2}, {0 if OPT.get('NOGATHER') else (N+1)*256}, 0
            v_add_u32 v{IA}, v{IA}, v{IA+1}
            v_add_u32 v{IB}, v{IB}, v{IA+1}
            buffer_load_dwordx4 v[{la}:{la+3}], v{IA}, s[{S_TBL}:{S_TBL+3}], 0 offen
            buffer_load_dwordx4 v[{lb}:{lb+3}], v{IB}, s[{S_TBL}:{S_TBL+3}], 0 offen
            ds_read_b32 v{IA}, v{vPair} offset:{32*(u+5)+8}
            ds_read_b32 v{IB}, v{vPair} offset:{32*(u+5)+24}
            ds_read_b32 v{nn_nxt}, v{vPair} offset:{32*(u+2)+12}
            """)
            for r in range(3, 8): a(f"v_exp_f32 v{T+r}, v{T+r}")
            a(P0)
            a("s_waitcnt lgkmcnt(3)")
            for i in range(4):
                a(pk('fma', T + 2 * i, T + 2 * i, CC if rm else CEA + (2 * i) % 4, CC, mod=' clamp'))
            for i in (0, 2): a(pk('mul', D + i, T + i, T + 4 + i))
            for i in (0, 2): a(pk('add', ND + i, T + i, T + 4 + i))
            for i in (0, 2): a(pk('mul', W + i, V + i, T + 4 + i))
            for i in (0, 2): a(pk('fma', W + i, V + 4 + i, T + i, W + i))
            a(f"""
            s_waitcnt vmcnt(6)
            {P1}
            v_mfma_f32_16x16x16_bf16 v[{T}:{T+3}], v[{EE}:{EE+1}], v[{WC}:{WC+1}], v[{na}:{na+3}]
            v_rcp_f32 v{D}, v{D}
            v_rcp_f32 v{D+1}, v{D+1}
            v_mfma_f32_16x16x16_bf16 v[{T+4}:{T+7}], v[{EE+2}:{EE+3}], v[{WC}:{WC+1}], v[{nb}:{nb+3}]
            v_rcp_f32 v{D+2}, v{D+2}
            v_rcp_f32 v{D+3}, v{D+3}
            {P0}
            ds_read2_b64 v[{EE}:{EE+3}], v{vE} offset0:{4*(u+2)} offset1:{4*(u+2)+2}
            """)
            for i in (0, 2): a(pk('fma', DEN + i, ND + i, D + i, DEN + i))
            for i in (0, 2): a(pk('fma', NUM + i, W + i, D + i, NUM + i))
            if u == 3: a(f"v_add_u32 v{vPair}, 128, v{vPair}\nv_add_u32 v{vE}, v{vEs}, v{vE}")
            a(f"""
            s_and_b64 s[{TMP}:{TMP+1}], s[{M0_}:{M0_+1}], s[{PAT}:{PAT+1}]
            s_waitcnt lgkmcnt(0)
            s_cbranch_scc0 K2_NF_{rm}_{u}
            s_mul_i32 exec_lo, s{TMP}, 0xffff
            s_mul_i32 exec_hi, s{TMP+1}, 0xffff
            """)
            op = 'ds_write_b32' if OPT.get('NOADD') else 'ds_add_f32'
            for r in range(4): a(f"{op} v{vRow}, v{NUM+r} offset:{64*r}")
            for r in range(4): a(f"{op} v{vRow}, v{DEN+r} offset:{256+64*r}")
            a(f"""
            v_add_u32 v{vTmp}, v{nn_cur}, v{IA+1}
            v_add_u32 v{vRow}, v{nn_cur}, v{vJ4}
            ds_read_b128 v[{CEA}:{CEA+3}], v{vTmp} offset:512
            """)
            for i in range(4): a(f"v_pk_mov_b32 v[{NUM+2*i}:{NUM+2*i+1}], 0, 0")
            a(f"""
            s_mov_b64 exec, -1
            K2_NF_{rm}_{u}:
            s_lshr_b64 s[{M0_}:{M0_+1}], s[{M0_}:{M0_+1}], 1
            s_add_u32 s{sP}, s{sP}, 1
            """)
            if u == 3: a(f"s_cmp_eq_u32 s{sP}, 16\ns_cselect_b64 s[{M0_}:{M0_+1}], s[{M1_}:{M1_+1}], s[{M0_}:{M0_+1}]")
            a(f"s_cmp_lt_u32 s{sP}, s{sL}")
            a(f"s_cbranch_scc0 K2_LOOP_DONE" if u < 3 else f"s_cbranch_scc1 K2_LOOP_{rm}")
        if rm == 0: a("s_branch K2_LOOP_DONE")
    a = a_real
    a("K2_LOOP_DONE:")
    st()
    a(f"""
    s_sub_u32 s{sNB}, s{sNB}, 1
    s_cmp_eq_u32 s{sNB}, 0
    s_cbranch_scc1 K2_FINAL
    s_waitcnt vmcnt(0) lgkmcnt(0)
    s_barrier
    v_lshrrev_b32 v2, 2, v0
    v_lshlrev_b32 v3, 2, v2
    buffer_load_dword v{vRem}, v3, s[{S_INFO}:{S_INFO+3}], 0 offen
    s_mov_b32 s3, {RECREG}
    v_mul_u32_u24 v{vRecA}, s3, v2
    v_and_b32 v15, 3, v0
    v_lshl_add_u32 v{vRecA}, v15, 4, v{vRecA}
    v_mov_b32 v{vOne}, 16
    v_add_u32 v15, 12, v15
    v_add_u32 v15, s12, v15
    s_add_u32 s12, s12, 12
    s_lshl_b32 s3, s12, 4
    v_add_u32 v{vRecA}, s3, v{vRecA}
    v_mov_b32 v16, 0
    v_mov_b32 v17, 0
    v_mov_b32 v18, 0
    v_mov_b32 v19, 0
    v_mov_b32 v20, 0
    v_mov_b32 v21, 0
    v_mov_b32 v22, {N*256}
    v_mov_b32 v23, {NPB*1024}
    v_lshlrev_b32 v5, 4, v0
    v_add_u32 v4, {PAIRS}, v5
    v_add_u32 v5, {CNT}, v5
    ds_write_b128 v4, v[20:23]
    ds_write_b128 v4, v[20:23] offset:16384
    ds_write_b128 v4, v[20:23] offset:32768
    v_cmp_gt_u32 vcc, {NPAIR*2 - 3072}, v0
    s_and_saveexec_b64 s[{TMP}:{TMP+1}], vcc
    ds_write_b128 v4, v[20:23] offset:49152
    v_cmp_gt_u32 vcc, 32, v0
    s_and_b64 exec, exec, vcc
    ds_write_b128 v5, v[16:19]
    s_mov_b64 exec, -1
    s_cmp_eq_u32 s{sRM}, 0
    s_cbranch_scc1 K2_NB_NOFLAG
    v_mov_b32 v4, {FLAG}
    v_mov_b32 v5, 17
    ds_write_b32 v4, v5
    K2_NB_NOFLAG:
    s_waitcnt vmcnt(0)
    v_and_b32 v3, 0xffff, v{vRem}
    v_lshrrev_b32 v{vRem}, 16, v{vRem}
    v_lshl_add_u32 v{vRecA}, v3, 6, v{vRecA}
    v_sub_u32 v{vRem}, v{vRem}, v15
    """)
    for k in range(3): a(f"v_cmp_lt_i32 s[{MK+2*k}:{MK+2*k+1}], {4*k}, v{vRem}")
    for k in range(3):
        a(f"s_mov_b64 exec, s[{MK+2*k}:{MK+2*k+1}]\nbuffer_load_dwordx4 v[{REC+4*k}:{REC+4*k+3}], v{vRecA}, s[{S_REC}:{S_REC+3}], 0 offen offset:{64*k}")
    a("s_mov_b64 exec, -1\ns_waitcnt vmcnt(0)\ns_branch K2_BATCH")
    a(f"""
    K2_FINAL:
    v_lshrrev_b32 v2, 3, v0
    v_lshlrev_b32 v2, 10, v2
    v_and_b32 v3, 7, v0
    v_lshl_add_u32 v2, v3, 5, v2
    v_mov_b32 v4, {EPSP}
    v_mov_b32 v5, {EPSP}
    v_cmp_gt_u32 vcc, {NPB*8}, v0
    s_waitcnt lgkmcnt(0)
    s_barrier
    """)
    st()
    a(f"""
    s_and_b64 exec, exec, vcc
    s_cbranch_execz K2_END2
    ds_read_b128 v[40:43], v2 offset:256
    ds_read_b128 v[44:47], v2 offset:272
    ds_read_b128 v[32:35], v2
    ds_read_b128 v[36:39], v2 offset:16
    ds_read_b128 v[48:51], v2 offset:768
    ds_read_b128 v[52:55], v2 offset:784
    s_waitcnt vmcnt(0)
    """)
    for i in range(4):
        a(f"v_lshlrev_b32 v{56+2*i}, 16, v{XR+i}\nv_and_b32 v{57+2*i}, 0xffff0000, v{XR+i}")
    a("s_waitcnt lgkmcnt(4)")
    for i in range(4): a(pk('add', 40 + 2 * i, 40 + 2 * i, 4))
    for i in range(8): a(f"v_rcp_f32 v{40+i}, v{40+i}")
    a("s_waitcnt lgkmcnt(0)")
    for i in range(4): a(pk('fma', 32 + 2 * i, 32 + 2 * i, 40 + 2 * i, 48 + 2 * i))
    for i in range(8): a(f"v_max_f32 v{32+i}, 0, v{32+i}")
    for i in range(4): a(pk('add', 32 + 2 * i, 32 + 2 * i, 56 + 2 * i))
    for i in range(4): a(f"v_cvt_pk_bf16_f32 v{40+i}, v{32+2*i}, v{33+2*i}")
    a(f"buffer_store_dwordx4 v[40:43], v{vXo}, s[{S_OUT}:{S_OUT+3}], 0 offen")
    a("K2_END2:")
    if DIAG:
        a("s_waitcnt vmcnt(0)"); st(); st.dump(1, "s2", f"s{sW}", 2, S_REC)
    a("K2_END:\ns_endpgm")

HEADER = open('standalone__edge_featured_mpnn_gatedgcn__graph.s.ref').read().split('; Override launch')[0]

def kd(name, vgpr, sgpr):
    return f""".amdhsa_kernel {name}
  .amdhsa_next_free_vgpr {vgpr}
  .amdhsa_next_free_sgpr {sgpr}
  .amdhsa_accum_offset {(vgpr + 3) // 4 * 4}
  .amdhsa_group_segment_fixed_size 0
  .amdhsa_kernarg_size 96
  .amdhsa_user_sgpr_count 2
  .amdhsa_user_sgpr_kernarg_segment_ptr 1
  .amdhsa_system_sgpr_workgroup_id_x 1
.end_amdhsa_kernel
"""

def build(verbose=False):
    out = HEADER
    out += "; Two launches: prep_kernel (node GEMMs -> gather tables, edge partition by destination bucket),\n"
    out += "; agg_kernel (per bucket / feature half: gates, normalised aggregation, output).\n"
    out += f"; @launch kernel=prep_kernel grid=({K1_GRID},1,1) block=({K1_BLOCK},1,1) lds={K1_LDS}\n"
    out += f"; @launch kernel=agg_kernel grid=({K2_GRID},1,1) block=({K2_BLOCK},1,1) lds={K2_LDS}\n"
    for i in range(OPT.get('EMPTY', 0)):
        out += f"; @launch kernel=empty_kernel grid=(1,1,1) block=(64,1,1) lds=0\n"
    out += '.amdgcn_target "amdgcn-amd-amdhsa--gfx950"\n.text\n'
    for name, g in (("prep_kernel", gen_k1), ("agg_kernel", gen_k2)):
        a = Asm(); g(a)
        out += f".globl {name}\n.p2align 8\n.type {name},@function\n" + a.finish(verbose)
    if OPT.get('EMPTY'): out += ".globl empty_kernel\n.p2align 8\n.type empty_kernel,@function\nempty_kernel:\n    s_endpgm\n"
    out += '.section .rodata,"a"\n.p2align 6\n' + kd("prep_kernel", 128, 102 if DIAG else 64) + '.p2align 6\n' + kd("agg_kernel", 128, 102)
    if OPT.get('EMPTY'): out += '.p2align 6\n' + kd("empty_kernel", 8, 16)
    return out

if __name__ == '__main__':
    args = sys.argv[1:]
    if '--diag' in args: DIAG = True; args.remove('--diag')
    for x in list(args):
        if x.startswith('-D'):
            k, _, val = x[2:].partition('='); OPT[k] = int(val or 1); args.remove(x)
    v = '-v' in args
    if v: args.remove('-v')
    open(args[0], 'w').write(build(v))
```

```python
import sys, struct, math
from asmlib import Asm

def f2u(x): return struct.unpack('<I', struct.pack('<f', x))[0]

N = 12500; E = 400000
NPB = 98; NB = 128
NC = 128; CH = 3128; HCH = CH // 2
RECREG = CH * 12
TBL_H = 0x310000
REC_OFF = 0x800000
OFFS_OFF = 0x1000000
SCR_OFF = 0x1100000
DIAG_OFF = 0x2800000
NEGL2E = f2u(-math.log2(math.e))
TINY = 0x0d800000
CBITS = (127 - 62) << 23
EPSP = f2u(1e-6 * 2.0 ** 62)

G_WG = 112; S_WG = 128; K1_GRID = G_WG + S_WG; K1_BLOCK = 448; K1_LDS = 32768 + 7 * 8192
K2_GRID = 256; K2_BLOCK = 1024
LMAX = 28; RST = 784
HEAD = 77824; EARR = HEAD + 32768; NPOS = LMAX * 128 + 128; SARR = EARR + NPOS * 8
CNT = SARR + NPOS * 4; OFFA = CNT + 512; DESC = OFFA + 512; ZROW = DESC + 512; FLAG = ZROW + 512; K2_LDS = FLAG + 16
FASTMAX = LMAX * 128 - NPB
NR = 7

assert RST == NPB * 8
DIAG = False
OPT = {}

def srd(a, s, lo, hi, size):
    a(f"s_mov_b32 s{s}, {lo}\ns_and_b32 s{s+1}, {hi}, 0xffff\ns_mov_b32 s{s+2}, {size}\ns_mov_b32 s{s+3}, 0x20000")

def srd_off(a, s, plo, off, size):
    a(f"s_add_u32 s{s}, s{plo}, {off}\ns_addc_u32 s{s+1}, s{plo+1}, 0\ns_and_b32 s{s+1}, s{s+1}, 0xffff")
    a(f"s_mov_b32 s{s+2}, {size}\ns_mov_b32 s{s+3}, 0x20000")

def wave_red(a, v, op):
    for sh in (1, 2, 4, 8):
        a(f"v_{op}_dpp v{v}, v{v}, v{v} row_shr:{sh} row_mask:0xf bank_mask:0xf bound_ctrl:1")
    a(f"v_{op}_dpp v{v}, v{v}, v{v} row_bcast:15 row_mask:0xa bank_mask:0xf")
    a(f"v_{op}_dpp v{v}, v{v}, v{v} row_bcast:31 row_mask:0xc bank_mask:0xf")

def pk(op, d, *srcs, mod=''):
    return f"v_pk_{op}_f32 v[{d}:{d+1}], " + ", ".join(s if isinstance(s, str) else f"v[{s}:{s+1}]" for s in srcs) + mod

def pack_pair(a, h, l, o0, o1, sel0, sel1):
    a(f"""
    v_cvt_pk_bf16_f32 v{l}, v{l}, v{l+1}
    v_sub_u32_sdwa v{h}, v{h}, v{l} dst_sel:DWORD dst_unused:UNUSED_PAD src0_sel:DWORD src1_sel:WORD_0
    v_sub_u32_sdwa v{h+1}, v{h+1}, v{l} dst_sel:DWORD dst_unused:UNUSED_PAD src0_sel:DWORD src1_sel:WORD_1
    v_cvt_pk_bf16_f32 v{h}, v{h}, v{h+1}
    v_perm_b32 v{o0}, v{h}, v{l}, {sel0}
    v_perm_b32 v{o1}, v{h}, v{l}, {sel1}
    """)

class Stamps:
    def __init__(self, a, base): self.a = a; self.base = base; self.n = 0
    def __call__(self):
        if not DIAG: return
        s = self.base + self.n; self.n += 1
        assert s < 100
        op = 's_memtime' if OPT.get('CYC') else 's_memrealtime'
        self.a(f"{op} s[100:101]\ns_waitcnt lgkmcnt(0)\ns_mov_b32 s{s}, s100")
    def dump(self, kern, wg, swave, vt, srdreg):
        if not DIAG: return
        a = self.a
        srd_off(a, srdreg, 26, DIAG_OFF + kern * 0x100000, 0x100000)
        a(f"s_lshl_b32 s3, {wg}, 4\ns_add_u32 s3, s3, {swave}\ns_lshl_b32 s3, s3, 6")
        a(f"s_mov_b64 exec, 1\nv_mov_b32 v{vt}, s3")
        for i in range(self.n):
            a(f"v_mov_b32 v{vt+1}, s{self.base+i}\nbuffer_store_dword v{vt+1}, v{vt}, s[{srdreg}:{srdreg+3}], 0 offen offset:{4*i}\ns_nop 1")

def w_lane_off(a, d, t0, t1):
    a(f"""
    v_lshrrev_b32 v{t0}, 3, v1
    v_lshlrev_b32 v{t0}, 8, v{t0}
    v_bfe_u32 v{d}, v1, 4, 1
    v_lshlrev_b32 v{d}, 1, v{d}
    v_and_b32 v{t1}, 7, v1
    v_xor_b32 v{d}, v{d}, v{t1}
    v_lshl_add_u32 v{d}, v{d}, 4, v{t0}
    """)

def w_frag_off(a, d, t0, t1, vg):
    a(f"""
    v_bfe_u32 v{t0}, v1, 2, 2
    v_lshl_add_u32 v{d}, v{vg}, 3, v{t0}
    v_lshlrev_b32 v{d}, 7, v{d}
    v_and_b32 v{t1}, 3, v1
    v_lshl_add_u32 v{d}, v{t1}, 3, v{d}
    v_lshrrev_b32 v{t0}, 1, v{t0}
    v_and_b32 v{t1}, 1, v{vg}
    v_lshl_or_b32 v{t0}, v{t1}, 1, v{t0}
    v_lshl_add_u32 v{d}, v{t0}, 5, v{d}
    """)

def gen_k1(a):
    st = Stamps(a, 64)
    a("prep_kernel:")
    a(f"s_cmp_ge_u32 s2, {K1_GRID}\ns_cbranch_scc1 K1_END")
    st()
    a("""
    s_load_dwordx16 s[4:19], s[0:1], 0
    s_load_dwordx8 s[20:27], s[0:1], 64
    v_lshrrev_b32 v2, 6, v0
    v_and_b32 v1, 63, v0
    v_readfirstlane_b32 s50, v2
    """)
    a(f"s_cmp_ge_u32 s2, {G_WG}\ns_cbranch_scc1 K1_SORT")
    XF = [8, 24]; ACC = 40; WF = 104; WA = 120
    def acc(t, m, ct): return ACC + ((t * 2 + m) * 4 + ct) * 4
    a("""
    s_lshr_b32 s51, s2, 4
    s_lshl_b32 s51, s51, 3
    s_and_b32 s52, s2, 7
    s_add_u32 s51, s51, s52
    s_bfe_u32 s52, s2, 0x10003
    s_mul_i32 s54, s51, 224
    s_lshl_b32 s55, s50, 5
    s_add_u32 s54, s54, s55
    s_lshl_b32 s54, s54, 8               ; R0*256
    s_lshl_b32 s55, s50, 13
    s_add_u32 s55, s55, 32768
    v_lshrrev_b32 v6, 4, v1              ; l>>4
    v_and_b32 v7, 15, v1                 ; l&15
    v_xor_b32 v2, v6, v7
    v_lshlrev_b32 v2, 4, v2              ; ((l&15)^(l>>4))*16
    v_lshl_add_u32 v124, v7, 8, v2
    v_lshl_add_u32 v2, v6, 8, v2
    v_add_u32 v3, s54, v2
    """)
    for q in range(1, 4): a(f"v_xor_b32 v{40+q}, {64*q}, v3")
    w_lane_off(a, 5, 4, 48)
    a("s_waitcnt lgkmcnt(0)")
    srd(a, 28, "s4", "s5", N * 256)
    for q in range(8):
        src = 3 if q % 4 == 0 else 40 + q % 4
        if q == 4:
            a("v_add_u32 v3, 4096, v3")
            for k in range(1, 4): a(f"v_add_u32 v{40+k}, 4096, v{40+k}")
            a("s_add_u32 s55, s55, 4096")
        if q % 4 == 0: a("s_mov_b32 m0, s55\ns_nop 0")
        a(f"buffer_load_dwordx4 v{src}, s[28:31], 0 offen offset:{(q%4)*1024} lds")
    a("""
    s_sub_u32 s55, s55, 4096
    s_and_b32 s41, s15, 0xffff
    s_and_b32 s43, s21, 0xffff
    s_mov_b32 s34, 32768
    s_mov_b32 s35, 0x20000
    s_lshl_b32 s56, s52, 7               ; h*128
    """)
    for i in range(5):
        a(f"s_add_u32 s57, s50, {7*i}           ; piece")
        if i == 4: a("s_cmp_ge_u32 s57, 32\ns_cbranch_scc1 K1_DMA_DONE")
        a(f"""
        s_cmp_lt_u32 s57, 16
        s_cselect_b32 s32, s14, s20
        s_cselect_b32 s33, s41, s43
        s_and_b32 s58, s57, 1
        s_lshl_b32 s58, s58, 6
        v_xor_b32 v4, s58, v5
        s_and_b32 s58, s57, 15
        s_lshl_b32 s58, s58, 11
        s_add_u32 s58, s58, s56
        s_lshl_b32 s59, s57, 10
        s_mov_b32 m0, s59
        s_nop 0
        buffer_load_dwordx4 v4, s[32:35], s58 offen lds
        """)
    a("K1_DMA_DONE:")
    a(f"s_mul_i32 s57, s52, {TBL_H}")
    srd_off(a, 36, 26, "s57", N * 256)
    w_frag_off(a, WA, 48, 49, 6)
    for ct in range(1, 4): a(f"v_xor_b32 v{WA+ct}, {32*ct}, v{WA}")
    a("v_add_u32 v124, s55, v124\nv_add_u32 v2, s55, v2")
    for k in range(1, 4): a(f"v_xor_b32 v{124+k}, {64*k}, v124")
    a(f"""
    v_lshlrev_b32 v3, 4, v1
    v_add_u32 v3, s54, v3
    s_mov_b32 s44, {NEGL2E}
    s_mov_b32 s45, {NEGL2E}
    s_mov_b32 s46, 0x05040100
    s_mov_b32 s47, 0x07060302
    v_mov_b32 v4, {TINY}
    v_mov_b32 v5, {TINY}
    s_waitcnt vmcnt(0)
    """)
    st()
    for t in range(2):
        for ks in range(4): a(f"ds_read_b128 v[{XF[t]+4*ks}:{XF[t]+4*ks+3}], v{124+ks} offset:{t*4096}")
    a("s_barrier")
    st()
    seq = [(ks, m, ct) for ks in range(4) for m in range(2) for ct in range(4)]
    def rd(s):
        ks, m, ct = seq[s]; b = WF + 4 * (s % 4); o = m * 16384 + ks * 4096
        a(f"ds_read_b64_tr_b16 v[{b}:{b+1}], v{WA+ct} offset:{o}\nds_read_b64_tr_b16 v[{b+2}:{b+3}], v{WA+ct} offset:{o+512}")
    for s in range(3): rd(s)
    for s in range(32):
        if s + 3 < 32: rd(s + 3)
        a(f"s_waitcnt lgkmcnt({2*min(3, 31-s)})")
        ks, m, ct = seq[s]; b = WF + 4 * (s % 4)
        for t in range(2):
            d = acc(t, m, ct); c = "0" if ks == 0 else f"v[{d}:{d+3}]"
            a(f"v_mfma_f32_16x16x32_bf16 v[{d}:{d+3}], v[{b}:{b+3}], v[{XF[t]+4*ks}:{XF[t]+4*ks+3}], {c}")
    st()
    for k in range(1, 4): a(f"v_xor_b32 v{WA+k}, {64*k}, v2")
    a("v_add_u32 v7, 4096, v3")
    for t in range(2):
        for ct in range(4):
            O = XF[t] + 4 * ct
            for rp in (0, 2):
                h = acc(t, 0, ct) + rp; l = acc(t, 1, ct) + rp
                a(pk('fma', h, h, "s[44:45]", 4))
                pack_pair(a, h, l, O + rp, O + rp + 1, "s46", "s47")
            a(f"ds_write_b128 v{124+ct}, v[{O}:{O+3}] offset:{t*4096}")
        a("s_waitcnt lgkmcnt(0)")
        for q in range(4): a(f"ds_read_b128 v[{XF[t]+4*q}:{XF[t]+4*q+3}], v{2 if q == 0 else WA+q} offset:{t*4096+q*1024}")
        if t == 1:
            pass
    for t in range(2):
        for q in range(4):
            if t == 1: a(f"s_waitcnt lgkmcnt({3-q})")
            a(f"buffer_store_dwordx4 v[{XF[t]+4*q}:{XF[t]+4*q+3}], v{3 if t == 0 else 7}, s[36:39], 0 offen offset:{q*1024}")
    st()
    if DIAG:
        a("s_waitcnt vmcnt(0)"); st(); st.dump(0, "s2", "s50", 2, 60)
    a("s_endpgm")
    st = Stamps(a, 65)
    IMG = 1024
    DST = 8; SRC = 16; EA = 24; BK = 40; RK = 48; SN = 56
    a("K1_SORT:")
    a(f"""
    s_sub_u32 s51, s2, {G_WG}
    s_and_b32 s52, s51, 7
    s_lshl_b32 s52, s52, 4
    s_lshr_b32 s51, s51, 3
    s_add_u32 s51, s51, s52              ; chunk c
    s_mul_i32 s52, s51, {CH}
    v_lshl_add_u32 v2, v0, 2, s52
    v_add_u32 v3, {HCH}, v2
    s_mov_b32 s53, {E}
    v_cmp_gt_u32 vcc, {HCH//4}, v0
    v_cmp_gt_u32 s[48:49], s53, v2
    v_cmp_gt_u32 s[56:57], s53, v3
    s_and_b64 s[48:49], s[48:49], vcc
    s_and_b64 s[56:57], s[56:57], vcc
    v_lshlrev_b32 v4, 3, v2
    v_lshlrev_b32 v5, 3, v3
    v_lshlrev_b32 v2, 2, v2
    v_lshlrev_b32 v3, 2, v3
    s_sub_u32 s58, s53, s52
    s_min_u32 s58, s58, {CH}
    s_mul_i32 s58, s58, 12
    s_waitcnt lgkmcnt(0)
    """)
    srd(a, 28, "s10", "s11", E * 4)
    a(f"buffer_load_dwordx4 v[{DST}:{DST+3}], v2, s[28:31], 0 offen\nbuffer_load_dwordx4 v[{DST+4}:{DST+7}], v3, s[28:31], 0 offen")
    srd(a, 32, "s8", "s9", E * 4)
    a(f"buffer_load_dwordx4 v[{SRC}:{SRC+3}], v2, s[32:35], 0 offen\nbuffer_load_dwordx4 v[{SRC+4}:{SRC+7}], v3, s[32:35], 0 offen")
    srd(a, 36, "s6", "s7", E * 8)
    for g in range(2):
        for k in range(2): a(f"buffer_load_dwordx4 v[{EA+8*g+4*k}:{EA+8*g+4*k+3}], v{4+g}, s[36:39], 0 offen offset:{16*k}")
    a(f"""
    v_mov_b32 v6, 0
    v_lshlrev_b32 v7, 2, v0
    v_cmp_gt_u32 vcc, 128, v0
    s_and_saveexec_b64 s[60:61], vcc
    ds_write_b32 v7, v6
    s_mov_b64 exec, -1
    s_mul_i32 s53, s51, {RECREG}
    s_add_u32 s53, s53, {REC_OFF}
    """)
    srd_off(a, 40, 26, "s53", "s58")
    srd(a, 44, "s26", "s27", SCR_OFF)
    a(f"""
    s_mov_b32 s54, 42800
    s_mov_b32 s55, {NPB}
    v_mov_b32 v5, 12
    v_lshlrev_b32 v6, 3, v1
    s_waitcnt lgkmcnt(0)
    s_barrier
    s_waitcnt vmcnt(6)
    """)
    st()
    for g in range(2):
        a(f"s_mov_b64 exec, s[{48 if g == 0 else 56}:{49 if g == 0 else 57}]")
        for i in range(4 * g, 4 * g + 4):
            a(f"""
            v_mul_u32_u24 v{BK+i}, s54, v{DST+i}
            v_lshrrev_b32 v{BK+i}, 22, v{BK+i}           ; bucket
            v_mul_u32_u24 v{SN+i}, s55, v{BK+i}
            v_lshlrev_b32 v{BK+i}, 2, v{BK+i}
            ds_add_rtn_u32 v{RK+i}, v{BK+i}, v5
            v_sub_u32 v{SN+i}, v{DST+i}, v{SN+i}
            """)
    a("s_mov_b64 exec, -1\ns_waitcnt vmcnt(4)")
    for i in range(8): a(f"v_lshl_or_b32 v{SN+i}, v{SRC+i}, 8, v{SN+i}")
    a("""
    s_waitcnt lgkmcnt(0)
    s_barrier
    ds_read_b64 v[64:65], v6
    s_waitcnt lgkmcnt(0)
    v_add_u32 v67, v64, v65
    v_mov_b32 v68, v67
    """)
    wave_red(a, 68, "add_u32")
    a(f"""
    v_sub_u32 v70, v68, v67
    v_add_u32 v71, v70, v64
    v_add_u32 v72, {IMG}, v70
    v_add_u32 v73, {IMG}, v71
    ds_write_b64 v6, v[72:73] offset:512
    """)
    for g in range(2):
        a(f"s_mov_b64 exec, s[{48 if g == 0 else 56}:{49 if g == 0 else 57}]")
        for i in range(4 * g, 4 * g + 4): a(f"ds_read_b32 v{BK+i}, v{BK+i} offset:512")
    a("s_waitcnt vmcnt(0)")
    for g in range(2):
        a(f"s_mov_b64 exec, s[{48 if g == 0 else 56}:{49 if g == 0 else 57}]")
        for i in range(4 * g, 4 * g + 4):
            a(f"""
            s_waitcnt lgkmcnt({min(15, 7 - i + 2 * i)})
            v_add_u32 v{BK+i}, v{BK+i}, v{RK+i}
            ds_write2_b32 v{BK+i}, v{EA+2*i}, v{EA+2*i+1} offset0:0 offset1:1
            ds_write_b32 v{BK+i}, v{SN+i} offset:8
            """)
    a(f"""
    s_mov_b64 exec, -1
    s_cmp_lg_u32 s50, 6
    s_cbranch_scc1 K1_NOINFO
    v_lshl_or_b32 v70, v64, 16, v70
    v_lshl_or_b32 v71, v65, 16, v71
    s_lshl_b32 s53, s51, 2
    s_add_u32 s53, s53, {OFFS_OFF}
    v_lshlrev_b32 v7, 10, v1
    v_add_u32 v7, s53, v7
    buffer_store_dword v70, v7, s[44:47], 0 offen
    buffer_store_dword v71, v7, s[44:47], 0 offen offset:512
    s_cmp_lg_u32 s51, 0
    s_cbranch_scc1 K1_NOINFO
    v_mov_b32 v70, 0x7f000000
    v_lshlrev_b32 v7, 2, v1
    v_add_u32 v7, {N*256}, v7
    v_add_u32 v71, {TBL_H}, v7
    buffer_store_dword v70, v7, s[44:47], 0 offen
    buffer_store_dword v70, v71, s[44:47], 0 offen
    K1_NOINFO:
    v_lshlrev_b32 v7, 4, v0
    s_waitcnt lgkmcnt(0)
    s_barrier
    """)
    st()
    NCP = (RECREG + K1_BLOCK * 16 - 1) // (K1_BLOCK * 16)
    for i in range(NCP): a(f"ds_read_b128 v[{8+4*i}:{11+4*i}], v7 offset:{IMG + i*K1_BLOCK*16}")
    for i in range(1, NCP): a(f"v_add_u32 v{40+i}, {i*K1_BLOCK*16}, v7")
    for i in range(NCP):
        a(f"s_waitcnt lgkmcnt({NCP-1-i})")
        a(f"buffer_store_dwordx4 v[{8+4*i}:{11+4*i}], v{7 if i == 0 else 40+i}, s[40:43], 0 offen")
    st()
    if DIAG:
        a("s_waitcnt vmcnt(0)"); st(); st.base = 64; st.n += 1; st.dump(0, "s2", "s50", 2, 60)
    a("K1_END:\ns_endpgm")

def gen_k2(a):
    st = Stamps(a, 84)
    S_REC, S_INFO, S_W, S_TBL, S_RAW, S_WC, S_X, S_OUT = 28, 32, 36, 40, 44, 48, 52, 56
    MK = 60
    sH, sB, sW, sL, sRem, sNB, sRM, sT = 76, 77, 78, 79, 80, 81, 82, 83
    sBase, sRST, sMsk, sCnt = 74, 75, 12, 13
    M0_, M1_, PAT, TMP, RMM = 4, 6, 8, 10, 14
    REC = 32
    CA = 60
    XF = 68; WF = 84; ACC = 100
    vRem, vRecA, vOne = 116, 117, 118
    LD = 32; T = 64; V = 72; D = 80; ND = 84; W = 88; NUM = 92; DEN = 96; CEA = 100; EE = 104; R = 108
    IA, IB, vRow, vS = 116, 117, 118, 119
    vE, vEs, vJ16 = 20, 21, 22
    WC = 24; CC = 26; SEL = 28
    XR = 8; vXo = 12; vCntA = 13; vCe = 14; vTch = 23
    a("agg_kernel:")
    a(f"s_cmp_ge_u32 s2, {K2_GRID}\ns_cbranch_scc1 K2_END")
    st()
    a(f"""
    s_load_dwordx16 s[4:19], s[0:1], 0
    s_load_dwordx8 s[20:27], s[0:1], 64
    v_lshrrev_b32 v2, 6, v0
    v_and_b32 v1, 63, v0
    v_readfirstlane_b32 s{sW}, v2
    s_bfe_u32 s{sH}, s2, 0x10002
    s_lshr_b32 s{sB}, s2, 3
    s_lshl_b32 s{sB}, s{sB}, 2
    s_and_b32 s3, s2, 3
    s_add_u32 s{sB}, s{sB}, s3            ; bucket
    v_lshrrev_b32 v2, 3, v0
    v_lshlrev_b32 v3, 2, v2
    v_lshlrev_b32 v4, 3, v1
    s_mul_i32 s{sT}, s{sB}, {NPB*256}
    v_lshrrev_b32 v6, 4, v1               ; l>>4
    v_and_b32 v7, 15, v1                  ; l&15
    v_xor_b32 v16, v6, v7
    v_lshlrev_b32 v16, 4, v16
    v_lshl_add_u32 v17, v7, 8, v16
    v_lshl_add_u32 v16, v6, 8, v16
    s_and_b32 s3, s{sW}, 1
    s_lshl_b32 s3, s3, 7
    v_xor_b32 v16, s3, v16
    s_lshl_b32 s3, s{sW}, 11
    s_add_u32 s3, s3, s{sT}
    v_add_u32 v16, s3, v16
    v_xor_b32 v18, 64, v16
    """)
    w_lane_off(a, 5, 19, 15)
    a(f"""
    v_xor_b32 v19, 64, v5
    v_and_b32 v15, 7, v0                  ; sub
    v_lshlrev_b32 v{vXo}, 8, v2
    v_lshl_add_u32 v{vXo}, v15, 4, v{vXo}
    s_lshl_b32 s3, s{sH}, 7
    s_add_u32 s{sT}, s{sT}, s3
    v_add_u32 v{vXo}, s{sT}, v{vXo}
    v_lshlrev_b32 v{vJ16}, 4, v7
    v_lshlrev_b32 v{WC}, 3, v7
    v_lshl_add_u32 v{WC}, v6, 1, v{WC}
    v_add_u32 v{WC}, s3, v{WC}            ; w_c offset: (h*64 + 4j + r')*2
    s_lshl_b32 s3, s{sB}, 9
    s_add_u32 s3, s3, {OFFS_OFF}
    s_waitcnt lgkmcnt(0)
    """)
    srd_off(a, S_INFO, 26, "s3", 512)
    a(f"""
    buffer_load_dword v{vRem}, v3, s[{S_INFO}:{S_INFO+3}], 0 offen
    buffer_load_dwordx2 v[120:121], v4, s[{S_INFO}:{S_INFO+3}], 0 offen
    """)
    srd(a, S_X, "s4", "s5", N * 256)
    a(f"""
    s_lshl_b32 s3, s{sW}, 11
    s_add_u32 s3, s3, {EARR}
    s_mov_b32 m0, s3
    s_cmp_lt_u32 s{sW}, 8
    buffer_load_dwordx4 v16, s[{S_X}:{S_X+3}], 0 offen lds
    buffer_load_dwordx4 v18, s[{S_X}:{S_X+3}], 0 offen offset:1024 lds
    s_cselect_b32 s{S_W}, s12, s18
    s_cselect_b32 s{S_W+1}, s13, s19
    s_and_b32 s{S_W+1}, s{S_W+1}, 0xffff
    s_mov_b32 s{S_W+2}, 32768
    s_mov_b32 s{S_W+3}, 0x20000
    s_lshl_b32 s3, s{sW}, 11
    s_add_u32 s3, s3, {HEAD}
    s_mov_b32 m0, s3
    s_and_b32 s3, s{sW}, 7
    s_lshl_b32 s3, s3, 12
    s_lshl_b32 s{sT}, s{sH}, 7
    s_add_u32 s3, s3, s{sT}
    buffer_load_dwordx4 v5, s[{S_W}:{S_W+3}], s3 offen lds
    s_add_u32 s3, s3, 1024
    buffer_load_dwordx4 v19, s[{S_W}:{S_W+3}], s3 offen offset:1024 lds
    """)
    srd(a, S_WC, "s16", "s17", 1024)
    for k in range(4): a(f"buffer_load_ushort v{124+k}, v{WC}, s[{S_WC}:{S_WC+3}], 0 offen offset:{256*k}")
    a(f"buffer_load_dwordx4 v[{XR}:{XR+3}], v{vXo}, s[{S_X}:{S_X+3}], 0 offen")
    a(f"s_mul_i32 s{sT}, s{sH}, {TBL_H}")
    srd_off(a, S_REC, 26, REC_OFF, NC * RECREG)
    srd_off(a, S_TBL, 26, f"s{sT}", (N + 1) * 256)
    srd_off(a, S_RAW, 26, f"s{sT}", (N + 1) * 256)
    srd(a, S_OUT, "s22", "s23", N * 256)
    a(f"""
    v_mov_b32 v68, 0
    v_mov_b32 v69, 0
    v_mov_b32 v70, 0
    v_mov_b32 v71, 0
    v_mov_b32 v72, 1.0
    v_mov_b32 v73, 1.0
    v_mov_b32 v74, 1.0
    v_mov_b32 v75, 1.0
    v_lshlrev_b32 v3, 4, v0
    v_add_u32 v4, {CNT}, v3
    v_add_u32 v3, {NPB*RST+512}, v3
    v_cmp_gt_u32 vcc, {(K2_LDS-CNT)//16}, v0
    s_and_saveexec_b64 s[{MK}:{MK+1}], vcc
    ds_write_b128 v4, v[68:71]
    v_cmp_gt_u32 vcc, 16, v0
    s_and_b64 exec, exec, vcc
    ds_write_b128 v3, v[72:75]
    s_mov_b64 exec, -1
    s_mov_b32 s{sBase}, 0
    s_mov_b32 s{sRST}, {RST}
    s_mov_b32 s{sMsk}, 0xffffff00
    s_mov_b32 s{sCnt}, {CNT}
    s_mov_b32 s3, {RECREG}
    v_mul_u32_u24 v{vRecA}, s3, v2
    v_mul_u32_u24 v15, 12, v15            ; sub*12
    v_add_u32 v{vRecA}, v{vRecA}, v15
    s_lshr_b32 s3, s2, 3
    s_mul_i32 s3, s3, 782
    v_add_u32 v{vTch}, s3, v0
    v_lshlrev_b32 v{vTch}, 7, v{vTch}
    v_cmp_gt_u32 vcc, 782, v0
    v_mov_b32 v3, -1
    v_cndmask_b32 v{vTch}, v3, v{vTch}, vcc
    v_mov_b32 v{vOne}, 4
    v_lshlrev_b32 v{vCntA}, 3, v1
    v_add_u32 v{vCntA}, {CNT}, v{vCntA}
    s_waitcnt vmcnt(9)
    """)
    st()
    a(f"""
    v_and_b32 v3, 0xffff, v{vRem}
    v_lshrrev_b32 v{vRem}, 16, v{vRem}
    v_add_u32 v{vRecA}, v3, v{vRecA}
    v_sub_u32 v{vRem}, v{vRem}, v15
    """)
    def rec_loads(n):
        for k in range(n):
            if 96 * k <= 64: a(f"v_cmp_lt_i32 s[{MK+2*k}:{MK+2*k+1}], {96*k}, v{vRem}")
            else: a(f"v_cmp_lt_i32 vcc, {96*k}, v{vRem}\ns_mov_b64 s[{MK+2*k}:{MK+2*k+1}], vcc")
        for k in range(n):
            a(f"s_mov_b64 exec, s[{MK+2*k}:{MK+2*k+1}]\nbuffer_load_dwordx3 v[{REC+4*k}:{REC+4*k+2}], v{vRecA}, s[{S_REC}:{S_REC+3}], 0 offen offset:{96*k}")
        a("s_mov_b64 exec, -1")
    rec_loads(NR)
    a(f"""
    v_lshrrev_b32 v120, 16, v120
    v_lshrrev_b32 v121, 16, v121
    v_max_u32 v2, v120, v121
    v_add_u32 v3, v120, v121
    """)
    wave_red(a, 3, "add_u32")
    a(f"""
    v_cmp_lt_u32 vcc, {NR*96}, v2
    v_readlane_b32 s3, v3, 63
    s_mov_b32 s{sNB}, 1
    s_cmp_gt_u32 s3, {FASTMAX*12}
    s_cbranch_scc1 K2_SLOWMODE
    s_cbranch_vccz K2_MODE_DONE
    K2_SLOWMODE:
    """)
    wave_red(a, 2, "max_u32")
    a(f"""
    v_readlane_b32 s3, v2, 63
    s_add_u32 s3, s3, 287
    s_mul_i32 s3, s3, 14564
    s_lshr_b32 s{sNB}, s3, 22
    """)
    for k in range(3, NR): a(f"s_mov_b64 s[{MK+2*k}:{MK+2*k+1}], 0")
    a(f"""
    K2_MODE_DONE:
    s_lshr_b32 s3, s{sW}, 1
    s_lshl_b32 s{sT}, s3, 12
    s_add_u32 s{sT}, s{sT}, {EARR}
    """)
    for k in range(1, 4): a(f"v_xor_b32 v{120+k}, {64*k}, v17")
    a(f"v_add_u32 v120, s{sT}, v17")
    for k in range(1, 4): a(f"v_add_u32 v{120+k}, s{sT}, v{120+k}")
    w_frag_off(a, 16, 2, 3, 6)
    a(f"""
    s_and_b32 s{sT}, s{sW}, 1
    s_lshl_b32 s{sT}, s{sT}, 6
    v_xor_b32 v16, s{sT}, v16
    v_xor_b32 v17, 32, v16
    v_add_u32 v16, {HEAD}, v16
    v_add_u32 v17, {HEAD}, v17
    s_lshl_b32 s3, s3, 4
    v_add_u32 v2, s3, v7                  ; node
    v_cmp_gt_u32 vcc, {NPB}, v2
    s_mov_b64 s[{TMP}:{TMP+1}], vcc
    v_mul_u32_u24 v{vCe}, s{sRST}, v2
    v_lshl_add_u32 v{vCe}, v6, 4, v{vCe}
    s_lshl_b32 s{sT}, s{sT}, 1
    v_add_u32 v{vCe}, s{sT}, v{vCe}
    s_mov_b32 s16, {NEGL2E}
    s_mov_b32 s17, {NEGL2E}
    s_mov_b32 s18, 0x05040100
    s_mov_b32 s19, 0x07060302
    s_mov_b64 s[{RMM}:{RMM+1}], 0
    s_waitcnt vmcnt({5+NR}) lgkmcnt(0)
    s_barrier
    """)
    st()
    a(f"s_cmp_ge_u32 s{sW}, 14\ns_cbranch_scc1 K2_NOGEMM")
    for ks in range(4): a(f"ds_read_b128 v[{XF+4*ks}:{XF+4*ks+3}], v{120+ks}")
    seq = [(ks, m, c) for ks in range(4) for m in range(2) for c in range(2)]
    def rd(s):
        ks, m, c = seq[s]; b = WF + 4 * (s % 4); o = m * 16384 + ks * 4096
        a(f"ds_read_b64_tr_b16 v[{b}:{b+1}], v{16+c} offset:{o}\nds_read_b64_tr_b16 v[{b+2}:{b+3}], v{16+c} offset:{o+512}")
    for s in range(3): rd(s)
    for s in range(16):
        if s + 3 < 16: rd(s + 3)
        a(f"s_waitcnt lgkmcnt({2*min(3, 15-s)})")
        ks, m, c = seq[s]; b = WF + 4 * (s % 4); d = ACC + (m * 2 + c) * 4
        a(f"v_mfma_f32_16x16x32_bf16 v[{d}:{d+3}], v[{b}:{b+3}], v[{XF+4*ks}:{XF+4*ks+3}], {'0' if ks == 0 else 'v[%d:%d]' % (d, d+3)}")
    a(f"""
    v_mov_b32 v2, {TINY}
    v_mov_b32 v3, {TINY}
    v_mov_b32 v4, {f2u(-62.0)}
    v_mov_b32 v5, {f2u(-62.0)}
    s_mov_b32 s3, {f2u(60.0)}
    """)
    for i in range(4): a(pk('fma', ACC + 2 * i, ACC + 2 * i, "s[16:17]", 2))
    for i in range(4): a(pk('add', XF + 2 * i, ACC + 2 * i, 4))
    for i in range(8): a(f"v_exp_f32 v{XF+i}, v{XF+i}")
    a(f"""
    v_max3_f32 v2, |v{ACC}|, |v{ACC+1}|, |v{ACC+2}|
    v_max3_f32 v3, |v{ACC+3}|, |v{ACC+4}|, |v{ACC+5}|
    v_max3_f32 v2, v2, |v{ACC+6}|, |v{ACC+7}|
    v_max_f32 v2, v2, v3
    v_cmp_lt_f32 s[{RMM}:{RMM+1}], s3, v2
    """)
    for i in range(4): a(f"v_mov_b32 v{XF+8+2*i}, v{ACC+8+2*i}\nv_mov_b32 v{XF+9+2*i}, v{ACC+9+2*i}")
    for i in range(4): pack_pair(a, XF + 2 * i, XF + 8 + 2 * i, WF + 2 * i, WF + 2 * i + 1, "s18", "s19")
    a(f"""
    s_mov_b64 exec, s[{TMP}:{TMP+1}]
    ds_write_b128 v{vCe}, v[{WF}:{WF+3}] offset:512
    ds_write_b128 v{vCe}, v[{WF+4}:{WF+7}] offset:576
    v_mov_b32 v2, {FLAG}
    s_mov_b64 exec, s[{RMM}:{RMM+1}]
    ds_write_b32 v2, v{vOne}
    s_mov_b64 exec, -1
    K2_NOGEMM:
    s_mov_b32 s3, {NEGL2E}
    s_waitcnt vmcnt({1+NR})
    """)
    for k in range(4): a(f"v_lshlrev_b32 v{124+k}, 16, v{124+k}\nv_mul_f32 v{124+k}, s3, v{124+k}")
    a(f"""
    v_cvt_pk_bf16_f32 v{WC}, v124, v125
    v_cvt_pk_bf16_f32 v{WC+1}, v126, v127
    v_mov_b32 v{CC}, {CBITS}
    v_mov_b32 v{CC+1}, {CBITS}
    v_bfe_u32 v3, v1, 2, 2                ; (l>>2)&3
    v_and_b32 v16, 3, v1
    v_mov_b32 v17, 0x3f80
    v_cmp_eq_u32 vcc, v6, v3
    v_cndmask_b32 v17, 0, v17, vcc
    """)
    for r in range(4): a(f"v_cmp_eq_u32 vcc, {r}, v16\nv_cndmask_b32 v{SEL+r}, 0, v17, vcc")
    a(f"""
    s_waitcnt vmcnt(0)
    """)
    st()
    if not OPT.get('NOTOUCH'): a(f"buffer_load_dword v{vTch}, v{vTch}, s[{S_RAW}:{S_RAW+3}], 0 offen")
    a("K2_BATCH:")
    for k in range(NR):
        a(f"""
        s_mov_b64 exec, s[{MK+2*k}:{MK+2*k+1}]
        s_cbranch_execz K2_AT_DONE
        v_and_b32 v{CA+k}, 0x7f, v{REC+4*k+2}
        v_lshl_add_u32 v{CA+k}, v{CA+k}, 2, s{sCnt}
        ds_add_rtn_u32 v{REC+4*k+3}, v{CA+k}, v{vOne}
        """)
    a(f"""
    K2_AT_DONE:
    s_mov_b64 exec, -1
    v_mov_b32 v16, {FLAG}
    s_waitcnt lgkmcnt(0)
    s_barrier
    """)
    st()
    a(f"""
    ds_read_b64 v[2:3], v{vCntA}
    ds_read_b32 v16, v16
    s_waitcnt lgkmcnt(0)
    v_add_u32 v4, 4, v2
    v_add_u32 v5, 4, v3
    v_and_b32 v4, -8, v4
    v_and_b32 v5, -8, v5
    v_add_u32 v18, v4, v5
    v_mov_b32 v19, v18
    v_readfirstlane_b32 s{sRM}, v16
    """)
    wave_red(a, 19, "add_u32")
    a(f"""
    v_sub_u32 v16, v19, v18
    v_readlane_b32 s{sT}, v19, 63
    v_add_u32 v16, {SARR}, v16
    v_add_u32 v17, v16, v4
    ds_write_b64 v{vCntA}, v[16:17] offset:512
    s_add_u32 s{sL}, s{sT}, 511
    s_lshr_b32 s{sL}, s{sL}, 9
    """)
    for k in range(NR):
        a(f"s_mov_b64 exec, s[{MK+2*k}:{MK+2*k+1}]\ns_cbranch_execz K2_RD_DONE\nds_read_b32 v{CA+k}, v{CA+k} offset:512")
    a(f"""
    K2_RD_DONE:
    s_mov_b64 exec, -1
    s_mov_b32 s3, {(EARR - 2*SARR) & 0xffffffff}
    v_mov_b32 v120, 0
    v_mov_b32 v121, 0
    v_mov_b32 v122, {N*256 + NPB}
    s_cmp_ge_u32 s{sW}, 13
    s_cbranch_scc0 K2_NOAUX
    s_cmp_eq_u32 s{sW}, 15
    s_cbranch_scc1 K2_AUX15
    s_sub_u32 s{sRem}, s{sW}, 13
    s_lshl_b32 s{sRem}, s{sRem}, 8
    s_add_u32 s{sRem}, s{sRem}, s{sT}
    s_add_u32 s{sRem}, s{sRem}, {SARR}
    v_lshl_add_u32 v123, v1, 2, s{sRem}
    ds_write_b32 v123, v122
    v_lshl_add_u32 v123, v123, 1, s3
    ds_write_b64 v123, v[120:121]
    s_branch K2_NOAUX
    K2_AUX15:
    """)
    for i in range(2):
        a(f"""
        v_and_b32 v123, 4, v{2+i}
        v_cmp_ne_u32 vcc, 0, v123
        v_add_u32 v123, v{16+i}, v{2+i}
        s_mov_b64 exec, vcc
        ds_write_b32 v123, v122
        v_lshl_add_u32 v123, v123, 1, s3
        ds_write_b64 v123, v[120:121]
        s_mov_b64 exec, -1
        """)
    a(f"""
    s_max_u32 s{sRem}, s{sL}, 1
    v_cvt_f32_u32 v120, s{sRem}
    v_rcp_f32 v120, v120
    v_subrev_u32 v16, {SARR}, v16
    v_subrev_u32 v17, {SARR}, v17
    v_mul_f32 v120, {f2u(2.0**20)}, v120
    v_lshrrev_b32 v16, 3, v16
    v_lshrrev_b32 v17, 3, v17
    v_cvt_u32_f32 v120, v120
    v_lshrrev_b32 v19, 3, v19
    v_add_u32 v120, 2, v120
    s_sub_u32 s{sRem}, s{sRem}, 1
    """)
    for i, q in enumerate((16, 17, 19)):
        a(f"v_add_u32 v{121+i}, s{sRem}, v{q}\nv_mul_lo_u32 v{121+i}, v{121+i}, v120\nv_lshrrev_b32 v{121+i}, 20, v{121+i}")
    a(f"v_lshlrev_b32 v18, 1, v1\nv_mul_u32_u24 v18, s{sRST}, v18\nv_mov_b32 v120, {ZROW}")
    for i, (q0, q1) in enumerate(((16, 17), (17, 19))):
        a(f"""
        v_mul_u32_u24 v4, s{sL}, v{121+i}
        v_cmp_ne_u32 vcc, v4, v{q0}
        v_cmp_ne_u32 s[{TMP}:{TMP+1}], v{q0}, v{q1}
        s_and_b64 vcc, vcc, s[{TMP}:{TMP+1}]
        v_sub_u32 v5, v{122+i}, v{121+i}
        v_cndmask_b32 v4, v120, v18, vcc
        v_lshl_or_b32 v4, v{121+i}, 18, v4
        v_lshl_or_b32 v{2+i}, v5, 25, v4
        v_add_u32 v18, {RST}, v18
        """)
    a(f"""
    ds_write_b64 v{vCntA}, v[2:3] offset:1024
    K2_NOAUX:
    s_waitcnt lgkmcnt(0)
    """)
    for k in range(NR):
        a(f"""
        s_mov_b64 exec, s[{MK+2*k}:{MK+2*k+1}]
        s_cbranch_execz K2_SC_DONE
        v_add_u32 v{CA+k}, v{CA+k}, v{REC+4*k+3}
        v_lshl_add_u32 v{REC+4*k+3}, v{CA+k}, 1, s3
        ds_write_b32 v{CA+k}, v{REC+4*k+2}
        ds_write_b64 v{REC+4*k+3}, v[{REC+4*k}:{REC+4*k+1}]
        """)
    a(f"""
    K2_SC_DONE:
    s_mov_b64 exec, -1
    s_cmp_eq_u32 s{sRM}, 4
    s_cbranch_scc0 K2_NORM
    s_cmp_ge_u32 s{sW}, 14
    s_cbranch_scc1 K2_NORM
    """)
    for i in range(4): pack_pair(a, ACC + 2 * i, ACC + 8 + 2 * i, WF + 2 * i, WF + 2 * i + 1, "s18", "s19")
    a(f"""
    s_lshr_b32 s3, s{sW}, 1
    s_lshl_b32 s3, s3, 4
    v_add_u32 v2, s3, v7
    v_cmp_gt_u32 vcc, {NPB}, v2
    s_mov_b64 exec, vcc
    ds_write_b128 v{vCe}, v[{WF}:{WF+3}] offset:512
    ds_write_b128 v{vCe}, v[{WF+4}:{WF+7}] offset:576
    s_mov_b64 exec, -1
    K2_NORM:
    s_lshl_b32 s3, s{sW}, 2
    s_lshl_b32 s{sT}, s{sL}, 3            ; L*8
    v_bfe_u32 v3, v1, 2, 2
    v_and_b32 v16, 3, v1
    v_cmp_eq_u32 vcc, v6, v16
    v_add_u32 v2, s3, v6
    v_add_u32 v3, s3, v3
    v_lshlrev_b32 v{vRow}, 9, v2
    v_mul_u32_u24 v2, s{sT}, v2
    v_mul_u32_u24 v3, s{sT}, v3
    v_add_u32 v{vS}, {SARR}, v2
    v_lshlrev_b32 v3, 1, v3
    v_add_u32 v3, {EARR}, v3
    v_mov_b32 v2, {ZROW}
    v_cndmask_b32 v{vE}, v2, v3, vcc
    v_mov_b32 v2, 64
    v_cndmask_b32 v{vEs}, 0, v2, vcc
    v_lshl_add_u32 v2, v7, 3, v{vS}
    v_add_u32 v{vRow}, v{vRow}, v{vJ16}
    v_add_u32 v{vRow}, {HEAD}, v{vRow}
    """)
    for i in range(8): a(f"v_mov_b32 v{NUM+i}, 0")
    a(f"""
    s_mov_b32 s{PAT}, 0x00010001
    s_mov_b32 s{PAT+1}, 0x00010001
    s_waitcnt lgkmcnt(0)
    s_barrier
    """)
    st()
    a(f"s_cmp_eq_u32 s{sL}, 0\ns_cbranch_scc1 K2_LOOP_DONE")
    a(f"ds_read_b64 v[{T}:{T+1}], v{vS}")
    for p in range(1, 4): a(f"ds_read_b64 v[{R+2*p}:{R+2*p+1}], v{vS} offset:{8*p}")
    a(f"""
    ds_read2_b32 v[16:17], v2 offset0:0 offset1:2
    ds_read2_b32 v[18:19], v2 offset0:32 offset1:34
    ds_read_b128 v[{EE}:{EE+3}], v{vE}
    ds_read_b64 v[{R}:{R+1}], v{vS} offset:32
    s_mov_b32 s{S_TBL+2}, {(N+1)*256}
    s_waitcnt lgkmcnt(4)
    """)
    for p in range(4):
        s0 = T if p == 0 else R + 2 * p
        a(f"""
        v_and_or_b32 v{V+2*p}, v{s0}, s{sMsk}, v{vJ16}
        v_and_or_b32 v{V+2*p+1}, v{s0+1}, s{sMsk}, v{vJ16}
        buffer_load_dwordx4 v[{LD+8*p}:{LD+8*p+3}], v{V+2*p}, s[{S_TBL}:{S_TBL+3}], 0 offen
        buffer_load_dwordx4 v[{LD+8*p+4}:{LD+8*p+7}], v{V+2*p+1}, s[{S_TBL}:{S_TBL+3}], 0 offen
        """)
    a(f"""
    v_and_b32 v3, 0x7f, v{T}
    v_mad_u32_u24 v3, v3, s{sRST}, v{vJ16}
    ds_read_b128 v[{CEA}:{CEA+3}], v3 offset:512
    s_waitcnt lgkmcnt(3)
    v_xor_b32 v16, v16, v17
    v_xor_b32 v18, v18, v19
    v_and_b32 v16, 0x7f, v16
    v_and_b32 v18, 0x7f, v18
    v_cmp_ne_u32 s[{M0_}:{M0_+1}], 0, v16
    v_cmp_ne_u32 s[{M1_}:{M1_+1}], 0, v18
    s_sub_u32 s{sRem}, s{sL}, 1
    s_and_b32 s{sT}, s{sRem}, 15
    s_lshl_b64 s[{TMP}:{TMP+1}], s[{PAT}:{PAT+1}], s{sT}
    s_cmp_lt_u32 s{sRem}, 16
    s_cbranch_scc1 K2_LAST_LO
    s_or_b64 s[{M1_}:{M1_+1}], s[{M1_}:{M1_+1}], s[{TMP}:{TMP+1}]
    s_branch K2_LAST_DONE
    K2_LAST_LO:
    s_or_b64 s[{M0_}:{M0_+1}], s[{M0_}:{M0_+1}], s[{TMP}:{TMP+1}]
    K2_LAST_DONE:
    s_sub_u32 s{sT}, s{sL}, 17
    s_cmp_gt_u32 s{sRem}, 3
    s_cselect_b32 s{S_TBL+2}, {(N+1)*256}, 0
    s_waitcnt vmcnt(6) lgkmcnt(0)
    v_mfma_f32_16x16x16_bf16 v[{T}:{T+3}], v[{EE}:{EE+1}], v[{WC}:{WC+1}], v[{LD}:{LD+3}]
    v_mfma_f32_16x16x16_bf16 v[{T+4}:{T+7}], v[{EE+2}:{EE+3}], v[{WC}:{WC+1}], v[{LD+4}:{LD+7}]
    s_nop 1
    ds_read_b128 v[{EE}:{EE+3}], v{vE} offset:16
    s_nop 4
    """)
    st()
    if OPT.get('FAIR', 1): a("s_setprio 3")
    a(f"s_cmp_lg_u32 s{sRM}, 0\ns_cbranch_scc1 K2_LOOP_1")
    for rm in range(2):
        a(f".p2align 6\nK2_LOOP_{rm}:") if rm == 0 else a(f"K2_LOOP_{rm}:")
        for u in range(4):
            la = LD + 8 * u; lb = la + 4; na = LD + 8 * ((u + 1) % 4); nb = na + 4
            ru = R + 2 * u; rn = R + 2 * ((u + 1) % 4)
            if rm:
                a("s_waitcnt lgkmcnt(0)")
                for i in range(4): a(pk('add', T + 2 * i, T + 2 * i, CEA + (2 * i) % 4))
            a(f"""
            v_mfma_f32_16x16x32_bf16 v[{V}:{V+3}], v[{SEL}:{SEL+3}], v[{la}:{la+3}], 0
            v_exp_f32 v{T}, v{T}
            v_exp_f32 v{T+1}, v{T+1}
            v_mfma_f32_16x16x32_bf16 v[{V+4}:{V+7}], v[{SEL}:{SEL+3}], v[{lb}:{lb+3}], 0
            """)
            for r in range(2, 8): a(f"v_exp_f32 v{T+r}, v{T+r}")
            a(f"""
            s_waitcnt lgkmcnt(0)
            v_and_or_b32 v{IA}, v{ru}, s{sMsk}, v{vJ16}
            v_and_or_b32 v{IB}, v{ru+1}, s{sMsk}, v{vJ16}
            buffer_load_dwordx4 v[{la}:{la+3}], v{IA}, s[{S_TBL}:{S_TBL+3}], 0 offen
            buffer_load_dwordx4 v[{lb}:{lb+3}], v{IB}, s[{S_TBL}:{S_TBL+3}], 0 offen
            """)
            for i in range(4):
                a(pk('fma', T + 2 * i, T + 2 * i, CC if rm else CEA + (2 * i) % 4, CC, mod=' clamp'))
            for i in (0, 2): a(pk('mul', D + i, T + i, T + 4 + i))
            for i in (0, 2): a(pk('add', ND + i, T + i, T + 4 + i))
            for i in (0, 2): a(pk('mul', W + i, V + i, T + 4 + i))
            for i in (0, 2): a(pk('fma', W + i, V + 4 + i, T + i, W + i))
            a(f"""
            s_waitcnt vmcnt(6)
            v_mfma_f32_16x16x16_bf16 v[{T}:{T+3}], v[{EE}:{EE+1}], v[{WC}:{WC+1}], v[{na}:{na+3}]
            v_rcp_f32 v{D}, v{D}
            v_rcp_f32 v{D+1}, v{D+1}
            v_mfma_f32_16x16x16_bf16 v[{T+4}:{T+7}], v[{EE+2}:{EE+3}], v[{WC}:{WC+1}], v[{nb}:{nb+3}]
            v_rcp_f32 v{D+2}, v{D+2}
            v_rcp_f32 v{D+3}, v{D+3}
            s_and_b64 s[{TMP}:{TMP+1}], s[{M0_}:{M0_+1}], s[{PAT}:{PAT+1}]
            """)
            for i in (0, 2): a(pk('fma', DEN + i, ND + i, D + i, DEN + i))
            for i in (0, 2): a(pk('fma', NUM + i, W + i, D + i, NUM + i))
            a(f"""
            s_cbranch_scc1 K2_FL_{rm}_{u}
            K2_BK_{rm}_{u}:
            ds_read_b64 v[{rn}:{rn+1}], v{vS} offset:{8*(u+5)}
            ds_read_b128 v[{EE}:{EE+3}], v{vE} offset:{16*(u+2)}
            s_lshr_b64 s[{M0_}:{M0_+1}], s[{M0_}:{M0_+1}], 1
            s_sub_u32 s{sRem}, s{sRem}, 1
            s_cmp_gt_u32 s{sRem}, 3
            s_cselect_b32 s{S_TBL+2}, {(N+1)*256}, 0
            """)
            if u == 3:
                a(f"""
                v_add_u32 v{vS}, 32, v{vS}
                v_add_u32 v{vE}, v{vEs}, v{vE}
                s_cmp_eq_u32 s{sRem}, s{sT}
                s_cselect_b64 s[{M0_}:{M0_+1}], s[{M1_}:{M1_+1}], s[{M0_}:{M0_+1}]
                """)
                if OPT.get('FAIR', 1):
                    a(f"""
                    s_cmp_ge_u32 s{sRem}, 16
                    s_cbranch_scc1 K2_LOOP_{rm}
                    s_setprio 2
                    s_cmp_ge_u32 s{sRem}, 8
                    s_cbranch_scc1 K2_LOOP_{rm}
                    s_setprio 1
                    s_cmp_ge_u32 s{sRem}, 4
                    s_cbranch_scc1 K2_LOOP_{rm}
                    s_setprio 0
                    """)
                a(f"s_branch K2_LOOP_{rm}")
        for u in range(4):
            rn = R + 2 * ((u + 1) % 4)
            a(f"""
            K2_FL_{rm}_{u}:
            s_mul_i32 exec_lo, s{TMP}, 0xffff
            s_mul_i32 exec_hi, s{TMP+1}, 0xffff
            ds_write_b128 v{vRow}, v[{NUM}:{NUM+3}]
            ds_write_b128 v{vRow}, v[{DEN}:{DEN+3}] offset:256
            v_and_b32 v{IA}, 0x7f, v{rn}
            v_mad_u32_u24 v{vRow}, v{IA}, s{sRST}, v{vJ16}
            s_cmp_lg_u32 s{sRem}, 0
            ds_read_b128 v[{CEA}:{CEA+3}], v{vRow} offset:512
            """)
            for i in range(4): a(f"v_pk_mov_b32 v[{NUM+2*i}:{NUM+2*i+1}], 0, 0")
            a(f"""
            s_mov_b64 exec, -1
            s_cbranch_scc1 K2_BK_{rm}_{u}
            s_branch K2_LOOP_DONE
            """)
    a("K2_LOOP_DONE:\ns_setprio 0")
    st()
    a(f"""
    v_lshrrev_b32 v2, 3, v0
    v_lshlrev_b32 v3, 2, v2
    v_add_u32 v3, {DESC}, v3
    ds_read_b32 v3, v3
    v_and_b32 v4, 7, v0
    v_lshlrev_b32 v4, 5, v4               ; 32*m
    v_mad_u32_u24 v2, v2, s{sRST}, v4
    v_add_u32 v5, {ZROW}, v4
    v_cmp_gt_u32 s[{TMP}:{TMP+1}], s{sRST}, v0
    s_waitcnt lgkmcnt(0)
    v_and_b32 v16, 0x3ffff, v3
    v_add_u32 v16, v16, v4
    v_bfe_u32 v17, v3, 18, 7
    v_lshl_add_u32 v17, v17, 9, v4
    v_add_u32 v17, {HEAD}, v17
    v_lshrrev_b32 v3, 25, v3
    v_cmp_ne_u32 vcc, 0, v3
    v_cndmask_b32 v5, v5, v17, vcc
    s_barrier
    """)
    st()
    a(f"""
    s_mov_b64 exec, s[{TMP}:{TMP+1}]
    ds_read_b128 v[40:43], v16 offset:256
    ds_read_b128 v[44:47], v16 offset:272
    ds_read_b128 v[72:75], v5 offset:256
    ds_read_b128 v[76:79], v5 offset:272
    ds_read_b128 v[32:35], v16
    ds_read_b128 v[36:39], v16 offset:16
    ds_read_b128 v[64:67], v5
    ds_read_b128 v[68:71], v5 offset:16
    ds_read_b128 v[48:51], v2 offset:512
    ds_read_b128 v[52:55], v2 offset:528
    v_cmp_lt_u32 vcc, 1, v3
    s_waitcnt lgkmcnt(2)
    """)
    for i in range(8): a(pk('add', 32 + 2 * i, 32 + 2 * i, 64 + 2 * i))
    a(f"""
    s_cbranch_vccz K2_HEADS_DONE
    K2_MORE_HEADS:
    s_mov_b64 exec, vcc
    v_add_u32 v17, 512, v17
    v_subrev_u32 v3, 1, v3
    ds_read_b128 v[64:67], v17
    ds_read_b128 v[68:71], v17 offset:16
    ds_read_b128 v[72:75], v17 offset:256
    ds_read_b128 v[76:79], v17 offset:272
    v_cmp_lt_u32 vcc, 1, v3
    s_waitcnt lgkmcnt(0)
    """)
    for i in range(8): a(pk('add', 32 + 2 * i, 32 + 2 * i, 64 + 2 * i))
    a(f"""
    s_cbranch_vccnz K2_MORE_HEADS
    s_mov_b64 exec, s[{TMP}:{TMP+1}]
    K2_HEADS_DONE:
    s_sub_u32 s{sNB}, s{sNB}, 1
    s_or_b32 s3, s{sNB}, s{sBase}
    s_cbranch_scc0 K2_FINAL
    s_lshl_b32 s3, s2, 16
    s_add_u32 s3, s3, {SCR_OFF}
    """)
    srd_off(a, S_W, 26, "s3", 65536)
    a(f"""
    v_lshlrev_b32 v2, 6, v0
    s_cmp_eq_u32 s{sBase}, 0
    s_cbranch_scc1 K2_NOLOAD
    """)
    for i in range(4): a(f"buffer_load_dwordx4 v[{64+4*i}:{67+4*i}], v2, s[{S_W}:{S_W+3}], 0 offen offset:{16*i}")
    a("s_waitcnt vmcnt(0)")
    for i in range(8): a(pk('add', 32 + 2 * i, 32 + 2 * i, 64 + 2 * i))
    a(f"""
    K2_NOLOAD:
    s_cmp_eq_u32 s{sNB}, 0
    s_cbranch_scc1 K2_FINAL
    """)
    for i in range(4): a(f"buffer_store_dwordx4 v[{32+4*i}:{35+4*i}], v2, s[{S_W}:{S_W+3}], 0 offen offset:{16*i}")
    a(f"""
    s_mov_b64 exec, -1
    s_waitcnt vmcnt(0) lgkmcnt(0)
    s_barrier
    v_lshrrev_b32 v2, 3, v0
    v_lshlrev_b32 v3, 2, v2
    buffer_load_dword v{vRem}, v3, s[{S_INFO}:{S_INFO+3}], 0 offen
    s_add_u32 s{sBase}, s{sBase}, 288
    s_mov_b32 s3, {RECREG}
    v_mul_u32_u24 v{vRecA}, s3, v2
    v_and_b32 v15, 7, v0
    v_mul_u32_u24 v15, 12, v15
    v_add_u32 v15, s{sBase}, v15
    v_add_u32 v{vRecA}, v{vRecA}, v15
    v_mov_b32 v{vOne}, 4
    v_mov_b32 v16, 0
    v_lshlrev_b32 v3, 2, v0
    v_add_u32 v3, {CNT}, v3
    v_cmp_gt_u32 vcc, 128, v0
    s_mov_b64 exec, vcc
    ds_write_b32 v3, v16
    s_mov_b64 exec, -1
    s_cmp_eq_u32 s{sRM}, 0
    s_cbranch_scc1 K2_NB_NOFLAG
    v_mov_b32 v4, {FLAG}
    v_mov_b32 v5, 5
    ds_write_b32 v4, v5
    K2_NB_NOFLAG:
    s_waitcnt vmcnt(0)
    v_and_b32 v3, 0xffff, v{vRem}
    v_lshrrev_b32 v{vRem}, 16, v{vRem}
    v_add_u32 v{vRecA}, v3, v{vRecA}
    v_sub_u32 v{vRem}, v{vRem}, v15
    """)
    rec_loads(3)
    a("s_waitcnt vmcnt(0) lgkmcnt(0)\ns_barrier\ns_branch K2_BATCH")
    a(f"""
    K2_FINAL:
    v_mov_b32 v4, {EPSP}
    v_mov_b32 v5, {EPSP}
    """)
    for i in range(4): a(pk('add', 40 + 2 * i, 40 + 2 * i, 4))
    for i in range(8): a(f"v_rcp_f32 v{40+i}, v{40+i}")
    a("s_waitcnt vmcnt(0) lgkmcnt(0)")
    for i in range(8): a(f"v_lshlrev_b32 v{48+i}, 16, v{48+i}")
    for i in range(4):
        a(f"v_lshlrev_b32 v{56+2*i}, 16, v{XR+i}\nv_and_b32 v{57+2*i}, 0xffff0000, v{XR+i}")
    for i in range(4): a(pk('fma', 32 + 2 * i, 32 + 2 * i, 40 + 2 * i, 48 + 2 * i))
    for i in range(8): a(f"v_max_f32 v{32+i}, 0, v{32+i}")
    for i in range(4): a(pk('add', 32 + 2 * i, 32 + 2 * i, 56 + 2 * i))
    for i in range(4): a(f"v_cvt_pk_bf16_f32 v{40+i}, v{32+2*i}, v{33+2*i}")
    a(f"buffer_store_dwordx4 v[40:43], v{vXo}, s[{S_OUT}:{S_OUT+3}], 0 offen")
    if DIAG:
        a("s_waitcnt vmcnt(0)"); st(); st.dump(1, "s2", f"s{sW}", 2, S_REC)
    a("K2_END:\ns_endpgm")

HEADER = open('standalone__edge_featured_mpnn_gatedgcn__graph.s.ref').read().split('; Override launch')[0]

def kd(name, vgpr, sgpr):
    return f""".amdhsa_kernel {name}
  .amdhsa_next_free_vgpr {vgpr}
  .amdhsa_next_free_sgpr {sgpr}
  .amdhsa_accum_offset {(vgpr + 3) // 4 * 4}
  .amdhsa_group_segment_fixed_size 0
  .amdhsa_kernarg_size 96
  .amdhsa_user_sgpr_count 2
  .amdhsa_user_sgpr_kernarg_segment_ptr 1
  .amdhsa_system_sgpr_workgroup_id_x 1
.end_amdhsa_kernel
"""

def build(verbose=False):
    out = HEADER
    out += "; Two launches: prep_kernel (x @ [w_b | w_v] -> gather tables; edges partitioned by destination bucket),\n"
    out += "; agg_kernel (per bucket and feature half: gates, normalised aggregation, residual output).\n"
    out += f"; @launch kernel=prep_kernel grid=({K1_GRID},1,1) block=({K1_BLOCK},1,1) lds={K1_LDS}\n"
    out += f"; @launch kernel=agg_kernel grid=({K2_GRID},1,1) block=({K2_BLOCK},1,1) lds={K2_LDS}\n"
    out += '.amdgcn_target "amdgcn-amd-amdhsa--gfx950"\n.text\n'
    for name, g in (("prep_kernel", gen_k1), ("agg_kernel", gen_k2)):
        a = Asm(); g(a)
        out += f".globl {name}\n.p2align 8\n.type {name},@function\n" + a.finish(verbose)
    out += '.section .rodata,"a"\n.p2align 6\n' + kd("prep_kernel", 128, 102 if DIAG else 64) + '.p2align 6\n' + kd("agg_kernel", 128, 102 if DIAG else 84)
    return out

if __name__ == '__main__':
    args = sys.argv[1:]
    if '--diag' in args: DIAG = True; args.remove('--diag')
    for x in list(args):
        if x.startswith('-D'):
            k, _, val = x[2:].partition('='); OPT[k] = int(val or 1); args.remove(x)
    v = '-v' in args
    if v: args.remove('-v')
    open(args[0], 'w').write(build(v))
```

```python
import sys, struct, math
from asmlib import Asm

def f2u(x): return struct.unpack('<I', struct.pack('<f', x))[0]

N = 12500; E = 400000
NPB = 98; NB = 128
NC = 128; CH = 3128; HCH = CH // 2
RECREG = CH * 12
TBL_H = 0x310000
REC_OFF = 0x800000
OFFS_OFF = 0x1000000
SCR_OFF = 0x1100000
DIAG_OFF = 0x2800000
NEGL2E = f2u(-math.log2(math.e))
TINY = 0x0d800000
CBITS = (127 - 62) << 23
EPSP = f2u(1e-6 * 2.0 ** 62)

G_WG = 112; S_WG = 128; K1_GRID = G_WG + S_WG; K1_BLOCK = 448; K1_LDS = 32768 + 7 * 8192
K2_GRID = 256; K2_BLOCK = 1024
LMAX = 28; RST = 784
HEAD = 77824; EARR = HEAD + 32768; NPOS = LMAX * 128 + 128; SARR = EARR + NPOS * 8
CNT = SARR + NPOS * 4; OFFA = CNT + 512; DESC = OFFA + 512; ZROW = DESC + 512; FLAG = ZROW + 512; K2_LDS = FLAG + 16
FASTMAX = LMAX * 128 - NPB
NR = 7

assert RST == NPB * 8
DIAG = False
OPT = {}

def srd(a, s, lo, hi, size):
    a(f"s_mov_b32 s{s}, {lo}\ns_and_b32 s{s+1}, {hi}, 0xffff\ns_mov_b32 s{s+2}, {size}\ns_mov_b32 s{s+3}, 0x20000")

def srd_off(a, s, plo, off, size):
    a(f"s_add_u32 s{s}, s{plo}, {off}\ns_addc_u32 s{s+1}, s{plo+1}, 0\ns_and_b32 s{s+1}, s{s+1}, 0xffff")
    a(f"s_mov_b32 s{s+2}, {size}\ns_mov_b32 s{s+3}, 0x20000")

def wave_red(a, v, op):
    for sh in (1, 2, 4, 8):
        a(f"v_{op}_dpp v{v}, v{v}, v{v} row_shr:{sh} row_mask:0xf bank_mask:0xf bound_ctrl:1")
    a(f"v_{op}_dpp v{v}, v{v}, v{v} row_bcast:15 row_mask:0xa bank_mask:0xf")
    a(f"v_{op}_dpp v{v}, v{v}, v{v} row_bcast:31 row_mask:0xc bank_mask:0xf")

def pk(op, d, *srcs, mod=''):
    return f"v_pk_{op}_f32 v[{d}:{d+1}], " + ", ".join(s if isinstance(s, str) else f"v[{s}:{s+1}]" for s in srcs) + mod

def pack_pair(a, h, l, o0, o1, sel0, sel1):
    a(f"""
    v_cvt_pk_bf16_f32 v{l}, v{l}, v{l+1}
    v_sub_u32_sdwa v{h}, v{h}, v{l} dst_sel:DWORD dst_unused:UNUSED_PAD src0_sel:DWORD src1_sel:WORD_0
    v_sub_u32_sdwa v{h+1}, v{h+1}, v{l} dst_sel:DWORD dst_unused:UNUSED_PAD src0_sel:DWORD src1_sel:WORD_1
    v_cvt_pk_bf16_f32 v{h}, v{h}, v{h+1}
    v_perm_b32 v{o0}, v{h}, v{l}, {sel0}
    v_perm_b32 v{o1}, v{h}, v{l}, {sel1}
    """)

class Stamps:
    def __init__(self, a, base): self.a = a; self.base = base; self.n = 0
    def __call__(self):
        if not DIAG: return
        s = self.base + self.n; self.n += 1
        assert s < 100
        op = 's_memtime' if OPT.get('CYC') else 's_memrealtime'
        self.a(f"{op} s[100:101]\ns_waitcnt lgkmcnt(0)\ns_mov_b32 s{s}, s100")
    def dump(self, kern, wg, swave, vt, srdreg):
        if not DIAG: return
        a = self.a
        srd_off(a, srdreg, 26, DIAG_OFF + kern * 0x100000, 0x100000)
        a(f"s_lshl_b32 s3, {wg}, 4\ns_add_u32 s3, s3, {swave}\ns_lshl_b32 s3, s3, 6")
        a(f"s_mov_b64 exec, 1\nv_mov_b32 v{vt}, s3")
        for i in range(self.n):
            a(f"v_mov_b32 v{vt+1}, s{self.base+i}\nbuffer_store_dword v{vt+1}, v{vt}, s[{srdreg}:{srdreg+3}], 0 offen offset:{4*i}\ns_nop 1")

def probe_stamp(a, slot, nm):
    if not OPT.get('PROBE'): return
    a(f"""
    s_cmp_lg_u32 s2, 0
    s_cbranch_scc1 {nm}_NOPROBE
    s_memrealtime s[8:9]
    s_load_dwordx2 s[4:5], s[0:1], 88
    s_waitcnt lgkmcnt(0)
    s_add_u32 s4, s4, {DIAG_OFF + 0x300000 + slot*256}
    s_addc_u32 s5, s5, 0
    v_mov_b32 v2, s8
    v_mov_b32 v3, 0
    s_mov_b64 exec, 1
    global_store_dword v3, v2, s[4:5]
    s_mov_b64 exec, -1
    {nm}_NOPROBE:
    """)

def gen_probe(a):
    a(f"""
    probe_kernel:
    s_cmp_lg_u32 s2, 0
    s_cbranch_scc1 P_END
    s_memrealtime s[8:9]
    s_load_dwordx2 s[4:5], s[0:1], 88
    s_waitcnt lgkmcnt(0)
    s_add_u32 s4, s4, {DIAG_OFF + 0x300000}
    s_addc_u32 s5, s5, 0
    v_mov_b32 v3, 0
    global_load_dword v1, v3, s[4:5]
    global_load_dword v2, v3, s[4:5] offset:256
    s_waitcnt vmcnt(0)
    v_readfirstlane_b32 s10, v1
    v_readfirstlane_b32 s11, v2
    s_nop 4
    s_sub_u32 s12, {'s8' if OPT['PROBE'] == 1 else 's11'}, s10
    s_min_u32 s12, s12, 20000
    s_mul_i32 s12, s12, 10
    P_SPIN:
    s_memrealtime s[14:15]
    s_waitcnt lgkmcnt(0)
    s_sub_u32 s13, s14, s8
    s_cmp_lt_u32 s13, s12
    s_cbranch_scc1 P_SPIN
    P_END:
    s_endpgm
    """)

def w_lane_off(a, d, t0, t1):
    a(f"""
    v_lshrrev_b32 v{t0}, 3, v1
    v_lshlrev_b32 v{t0}, 8, v{t0}
    v_bfe_u32 v{d}, v1, 4, 1
    v_lshlrev_b32 v{d}, 1, v{d}
    v_and_b32 v{t1}, 7, v1
    v_xor_b32 v{d}, v{d}, v{t1}
    v_lshl_add_u32 v{d}, v{d}, 4, v{t0}
    """)

def w_frag_off(a, d, t0, t1, vg):
    a(f"""
    v_bfe_u32 v{t0}, v1, 2, 2
    v_lshl_add_u32 v{d}, v{vg}, 3, v{t0}
    v_lshlrev_b32 v{d}, 7, v{d}
    v_and_b32 v{t1}, 3, v1
    v_lshl_add_u32 v{d}, v{t1}, 3, v{d}
    v_lshrrev_b32 v{t0}, 1, v{t0}
    v_and_b32 v{t1}, 1, v{vg}
    v_lshl_or_b32 v{t0}, v{t1}, 1, v{t0}
    v_lshl_add_u32 v{d}, v{t0}, 5, v{d}
    """)

def gen_k1(a):
    st = Stamps(a, 64)
    a("prep_kernel:")
    a(f"s_cmp_ge_u32 s2, {K1_GRID}\ns_cbranch_scc1 K1_END")
    probe_stamp(a, 0, "K1")
    st()
    a("""
    s_load_dwordx16 s[4:19], s[0:1], 0
    s_load_dwordx8 s[20:27], s[0:1], 64
    v_lshrrev_b32 v2, 6, v0
    v_and_b32 v1, 63, v0
    v_readfirstlane_b32 s50, v2
    """)
    a(f"s_cmp_ge_u32 s2, {G_WG}\ns_cbranch_scc1 K1_SORT")
    XF = [8, 24]; ACC = 40; WF = 104; WA = 120
    def acc(t, m, ct): return ACC + ((t * 2 + m) * 4 + ct) * 4
    a("""
    s_lshr_b32 s51, s2, 4
    s_lshl_b32 s51, s51, 3
    s_and_b32 s52, s2, 7
    s_add_u32 s51, s51, s52
    s_bfe_u32 s52, s2, 0x10003
    s_mul_i32 s54, s51, 224
    s_lshl_b32 s55, s50, 5
    s_add_u32 s54, s54, s55
    s_lshl_b32 s54, s54, 8               ; R0*256
    s_lshl_b32 s55, s50, 13
    s_add_u32 s55, s55, 32768
    v_lshrrev_b32 v6, 4, v1              ; l>>4
    v_and_b32 v7, 15, v1                 ; l&15
    v_xor_b32 v2, v6, v7
    v_lshlrev_b32 v2, 4, v2              ; ((l&15)^(l>>4))*16
    v_lshl_add_u32 v124, v7, 8, v2
    v_lshl_add_u32 v2, v6, 8, v2
    v_add_u32 v3, s54, v2
    """)
    for q in range(1, 4): a(f"v_xor_b32 v{40+q}, {64*q}, v3")
    w_lane_off(a, 5, 4, 48)
    a("s_waitcnt lgkmcnt(0)")
    srd(a, 28, "s4", "s5", N * 256)
    for q in range(8):
        src = 3 if q % 4 == 0 else 40 + q % 4
        if q == 4:
            a("v_add_u32 v3, 4096, v3")
            for k in range(1, 4): a(f"v_add_u32 v{40+k}, 4096, v{40+k}")
            a("s_add_u32 s55, s55, 4096")
        if q % 4 == 0: a("s_mov_b32 m0, s55\ns_nop 0")
        a(f"buffer_load_dwordx4 v{src}, s[28:31], 0 offen offset:{(q%4)*1024} lds")
    a("""
    s_sub_u32 s55, s55, 4096
    s_and_b32 s41, s15, 0xffff
    s_and_b32 s43, s21, 0xffff
    s_mov_b32 s34, 32768
    s_mov_b32 s35, 0x20000
    s_lshl_b32 s56, s52, 7               ; h*128
    """)
    for i in range(5):
        a(f"s_add_u32 s57, s50, {7*i}           ; piece")
        if i == 4: a("s_cmp_ge_u32 s57, 32\ns_cbranch_scc1 K1_DMA_DONE")
        a(f"""
        s_cmp_lt_u32 s57, 16
        s_cselect_b32 s32, s14, s20
        s_cselect_b32 s33, s41, s43
        s_and_b32 s58, s57, 1
        s_lshl_b32 s58, s58, 6
        v_xor_b32 v4, s58, v5
        s_and_b32 s58, s57, 15
        s_lshl_b32 s58, s58, 11
        s_add_u32 s58, s58, s56
        s_lshl_b32 s59, s57, 10
        s_mov_b32 m0, s59
        s_nop 0
        buffer_load_dwordx4 v4, s[32:35], s58 offen lds
        """)
    a("K1_DMA_DONE:")
    a(f"s_mul_i32 s57, s52, {TBL_H}")
    srd_off(a, 36, 26, "s57", N * 256)
    w_frag_off(a, WA, 48, 49, 6)
    for ct in range(1, 4): a(f"v_xor_b32 v{WA+ct}, {32*ct}, v{WA}")
    a("v_add_u32 v124, s55, v124\nv_add_u32 v2, s55, v2")
    for k in range(1, 4): a(f"v_xor_b32 v{124+k}, {64*k}, v124")
    a(f"""
    v_lshlrev_b32 v3, 4, v1
    v_add_u32 v3, s54, v3
    s_mov_b32 s44, {NEGL2E}
    s_mov_b32 s45, {NEGL2E}
    s_mov_b32 s46, 0x05040100
    s_mov_b32 s47, 0x07060302
    v_mov_b32 v4, {TINY}
    v_mov_b32 v5, {TINY}
    s_waitcnt vmcnt(0)
    """)
    st()
    for t in range(2):
        for ks in range(4): a(f"ds_read_b128 v[{XF[t]+4*ks}:{XF[t]+4*ks+3}], v{124+ks} offset:{t*4096}")
    a("s_barrier")
    st()
    seq = [(ks, m, ct) for ks in range(4) for m in range(2) for ct in range(4)]
    def rd(s):
        ks, m, ct = seq[s]; b = WF + 4 * (s % 4); o = m * 16384 + ks * 4096
        a(f"ds_read_b64_tr_b16 v[{b}:{b+1}], v{WA+ct} offset:{o}\nds_read_b64_tr_b16 v[{b+2}:{b+3}], v{WA+ct} offset:{o+512}")
    for s in range(3): rd(s)
    for s in range(32):
        if s + 3 < 32: rd(s + 3)
        a(f"s_waitcnt lgkmcnt({2*min(3, 31-s)})")
        ks, m, ct = seq[s]; b = WF + 4 * (s % 4)
        for t in range(2):
            d = acc(t, m, ct); c = "0" if ks == 0 else f"v[{d}:{d+3}]"
            a(f"v_mfma_f32_16x16x32_bf16 v[{d}:{d+3}], v[{b}:{b+3}], v[{XF[t]+4*ks}:{XF[t]+4*ks+3}], {c}")
    st()
    for k in range(1, 4): a(f"v_xor_b32 v{WA+k}, {64*k}, v2")
    a("v_add_u32 v7, 4096, v3")
    for t in range(2):
        for ct in range(4):
            O = XF[t] + 4 * ct
            for rp in (0, 2):
                h = acc(t, 0, ct) + rp; l = acc(t, 1, ct) + rp
                a(pk('fma', h, h, "s[44:45]", 4))
                pack_pair(a, h, l, O + rp, O + rp + 1, "s46", "s47")
            a(f"ds_write_b128 v{124+ct}, v[{O}:{O+3}] offset:{t*4096}")
        a("s_waitcnt lgkmcnt(0)")
        for q in range(4): a(f"ds_read_b128 v[{XF[t]+4*q}:{XF[t]+4*q+3}], v{2 if q == 0 else WA+q} offset:{t*4096+q*1024}")
        if t == 1:
            pass
    for t in range(2):
        for q in range(4):
            if t == 1: a(f"s_waitcnt lgkmcnt({3-q})")
            a(f"buffer_store_dwordx4 v[{XF[t]+4*q}:{XF[t]+4*q+3}], v{3 if t == 0 else 7}, s[36:39], 0 offen offset:{q*1024}")
    st()
    if DIAG:
        a("s_waitcnt vmcnt(0)"); st(); st.dump(0, "s2", "s50", 2, 60)
    a("s_endpgm")
    st = Stamps(a, 65)
    IMG = 1024
    DST = 8; SRC = 16; EA = 24; BK = 40; RK = 48; SN = 56
    a("K1_SORT:")
    a(f"""
    s_sub_u32 s51, s2, {G_WG}
    s_and_b32 s52, s51, 7
    s_lshl_b32 s52, s52, 4
    s_lshr_b32 s51, s51, 3
    s_add_u32 s51, s51, s52              ; chunk c
    s_mul_i32 s52, s51, {CH}
    v_lshl_add_u32 v2, v0, 2, s52
    v_add_u32 v3, {HCH}, v2
    s_mov_b32 s53, {E}
    v_cmp_gt_u32 vcc, {HCH//4}, v0
    v_cmp_gt_u32 s[48:49], s53, v2
    v_cmp_gt_u32 s[56:57], s53, v3
    s_and_b64 s[48:49], s[48:49], vcc
    s_and_b64 s[56:57], s[56:57], vcc
    v_lshlrev_b32 v4, 3, v2
    v_lshlrev_b32 v5, 3, v3
    v_lshlrev_b32 v2, 2, v2
    v_lshlrev_b32 v3, 2, v3
    s_sub_u32 s58, s53, s52
    s_min_u32 s58, s58, {CH}
    s_mul_i32 s58, s58, 12
    s_waitcnt lgkmcnt(0)
    """)
    srd(a, 28, "s10", "s11", E * 4)
    a(f"buffer_load_dwordx4 v[{DST}:{DST+3}], v2, s[28:31], 0 offen\nbuffer_load_dwordx4 v[{DST+4}:{DST+7}], v3, s[28:31], 0 offen")
    srd(a, 32, "s8", "s9", E * 4)
    a(f"buffer_load_dwordx4 v[{SRC}:{SRC+3}], v2, s[32:35], 0 offen\nbuffer_load_dwordx4 v[{SRC+4}:{SRC+7}], v3, s[32:35], 0 offen")
    srd(a, 36, "s6", "s7", E * 8)
    for g in range(2):
        for k in range(2): a(f"buffer_load_dwordx4 v[{EA+8*g+4*k}:{EA+8*g+4*k+3}], v{4+g}, s[36:39], 0 offen offset:{16*k}")
    a(f"""
    v_mov_b32 v6, 0
    v_lshlrev_b32 v7, 2, v0
    v_cmp_gt_u32 vcc, 128, v0
    s_and_saveexec_b64 s[60:61], vcc
    ds_write_b32 v7, v6
    s_mov_b64 exec, -1
    s_mul_i32 s53, s51, {RECREG}
    s_add_u32 s53, s53, {REC_OFF}
    """)
    srd_off(a, 40, 26, "s53", "s58")
    srd(a, 44, "s26", "s27", SCR_OFF)
    a(f"""
    s_mov_b32 s54, 42800
    s_mov_b32 s55, {NPB}
    v_mov_b32 v5, 12
    v_lshlrev_b32 v6, 3, v1
    s_waitcnt lgkmcnt(0)
    s_barrier
    s_waitcnt vmcnt(6)
    """)
    st()
    for g in range(2):
        a(f"s_mov_b64 exec, s[{48 if g == 0 else 56}:{49 if g == 0 else 57}]")
        for i in range(4 * g, 4 * g + 4):
            a(f"""
            v_mul_u32_u24 v{BK+i}, s54, v{DST+i}
            v_lshrrev_b32 v{BK+i}, 22, v{BK+i}           ; bucket
            v_mul_u32_u24 v{SN+i}, s55, v{BK+i}
            v_lshlrev_b32 v{BK+i}, 2, v{BK+i}
            ds_add_rtn_u32 v{RK+i}, v{BK+i}, v5
            v_sub_u32 v{SN+i}, v{DST+i}, v{SN+i}
            """)
    a("s_mov_b64 exec, -1\ns_waitcnt vmcnt(4)")
    for i in range(8): a(f"v_lshl_or_b32 v{SN+i}, v{SRC+i}, 8, v{SN+i}")
    a("""
    s_waitcnt lgkmcnt(0)
    s_barrier
    ds_read_b64 v[64:65], v6
    s_waitcnt lgkmcnt(0)
    v_add_u32 v67, v64, v65
    v_mov_b32 v68, v67
    """)
    wave_red(a, 68, "add_u32")
    a(f"""
    v_sub_u32 v70, v68, v67
    v_add_u32 v71, v70, v64
    v_add_u32 v72, {IMG}, v70
    v_add_u32 v73, {IMG}, v71
    ds_write_b64 v6, v[72:73] offset:512
    """)
    for g in range(2):
        a(f"s_mov_b64 exec, s[{48 if g == 0 else 56}:{49 if g == 0 else 57}]")
        for i in range(4 * g, 4 * g + 4): a(f"ds_read_b32 v{BK+i}, v{BK+i} offset:512")
    a("s_waitcnt vmcnt(0)")
    for g in range(2):
        a(f"s_mov_b64 exec, s[{48 if g == 0 else 56}:{49 if g == 0 else 57}]")
        for i in range(4 * g, 4 * g + 4):
            a(f"""
            s_waitcnt lgkmcnt({min(15, 7 - i + 2 * i)})
            v_add_u32 v{BK+i}, v{BK+i}, v{RK+i}
            ds_write2_b32 v{BK+i}, v{EA+2*i}, v{EA+2*i+1} offset0:0 offset1:1
            ds_write_b32 v{BK+i}, v{SN+i} offset:8
            """)
    a(f"""
    s_mov_b64 exec, -1
    s_cmp_lg_u32 s50, 6
    s_cbranch_scc1 K1_NOINFO
    v_lshl_or_b32 v70, v64, 16, v70
    v_lshl_or_b32 v71, v65, 16, v71
    s_lshl_b32 s53, s51, 2
    s_add_u32 s53, s53, {OFFS_OFF}
    v_lshlrev_b32 v7, 10, v1
    v_add_u32 v7, s53, v7
    buffer_store_dword v70, v7, s[44:47], 0 offen
    buffer_store_dword v71, v7, s[44:47], 0 offen offset:512
    s_cmp_lg_u32 s51, 0
    s_cbranch_scc1 K1_NOINFO
    v_mov_b32 v70, 0x7f000000
    v_lshlrev_b32 v7, 2, v1
    v_add_u32 v7, {N*256}, v7
    v_add_u32 v71, {TBL_H}, v7
    buffer_store_dword v70, v7, s[44:47], 0 offen
    buffer_store_dword v70, v71, s[44:47], 0 offen
    K1_NOINFO:
    v_lshlrev_b32 v7, 4, v0
    s_waitcnt lgkmcnt(0)
    s_barrier
    """)
    st()
    NCP = (RECREG + K1_BLOCK * 16 - 1) // (K1_BLOCK * 16)
    for i in range(NCP): a(f"ds_read_b128 v[{8+4*i}:{11+4*i}], v7 offset:{IMG + i*K1_BLOCK*16}")
    for i in range(1, NCP): a(f"v_add_u32 v{40+i}, {i*K1_BLOCK*16}, v7")
    for i in range(NCP):
        a(f"s_waitcnt lgkmcnt({NCP-1-i})")
        a(f"buffer_store_dwordx4 v[{8+4*i}:{11+4*i}], v{7 if i == 0 else 40+i}, s[40:43], 0 offen")
    st()
    if DIAG:
        a("s_waitcnt vmcnt(0)"); st(); st.base = 64; st.n += 1; st.dump(0, "s2", "s50", 2, 60)
    a("K1_END:\ns_endpgm")

def gen_k2(a):
    st = Stamps(a, 84)
    S_REC, S_INFO, S_W, S_TBL, S_RAW, S_WC, S_X, S_OUT = 28, 32, 36, 40, 44, 48, 52, 56
    MK = 60
    sH, sB, sW, sL, sRem, sNB, sRM, sT = 76, 77, 78, 79, 80, 81, 82, 83
    sBase, sRST, sMsk, sCnt = 74, 75, 12, 13
    M0_, M1_, PAT, TMP, RMM = 4, 6, 8, 10, 14
    REC = 32
    CA = 60
    XF = 68; WF = 84; ACC = 100
    vRem, vRecA, vOne = 116, 117, 118
    LD = 32; T = 64; V = 72; D = 80; ND = 84; W = 88; NUM = 92; DEN = 96; CEA = 100; EE = 104; R = 108
    IA, IB, vRow, vS = 116, 117, 118, 119
    vE, vEs, vJ16 = 20, 21, 22
    WC = 24; CC = 26; SEL = 28
    XR = 8; vXo = 12; vCntA = 13; vCe = 14; vTch = 23
    a("agg_kernel:")
    a(f"s_cmp_ge_u32 s2, {K2_GRID}\ns_cbranch_scc1 K2_END")
    probe_stamp(a, 1, "K2")
    st()
    a(f"""
    s_load_dwordx16 s[4:19], s[0:1], 0
    s_load_dwordx8 s[20:27], s[0:1], 64
    v_lshrrev_b32 v2, 6, v0
    v_and_b32 v1, 63, v0
    v_readfirstlane_b32 s{sW}, v2
    s_bfe_u32 s{sH}, s2, 0x10002
    s_lshr_b32 s{sB}, s2, 3
    s_lshl_b32 s{sB}, s{sB}, 2
    s_and_b32 s3, s2, 3
    s_add_u32 s{sB}, s{sB}, s3            ; bucket
    v_lshrrev_b32 v2, 3, v0
    v_lshlrev_b32 v3, 2, v2
    v_lshlrev_b32 v4, 3, v1
    s_mul_i32 s{sT}, s{sB}, {NPB*256}
    v_lshrrev_b32 v6, 4, v1               ; l>>4
    v_and_b32 v7, 15, v1                  ; l&15
    v_xor_b32 v16, v6, v7
    v_lshlrev_b32 v16, 4, v16
    v_lshl_add_u32 v17, v7, 8, v16
    v_lshl_add_u32 v16, v6, 8, v16
    s_and_b32 s3, s{sW}, 1
    s_lshl_b32 s3, s3, 7
    v_xor_b32 v16, s3, v16
    s_lshl_b32 s3, s{sW}, 11
    s_add_u32 s3, s3, s{sT}
    v_add_u32 v16, s3, v16
    v_xor_b32 v18, 64, v16
    """)
    w_lane_off(a, 5, 19, 15)
    a(f"""
    v_xor_b32 v19, 64, v5
    v_and_b32 v15, 7, v0                  ; sub
    v_lshlrev_b32 v{vXo}, 8, v2
    v_lshl_add_u32 v{vXo}, v15, 4, v{vXo}
    s_lshl_b32 s3, s{sH}, 7
    s_add_u32 s{sT}, s{sT}, s3
    v_add_u32 v{vXo}, s{sT}, v{vXo}
    v_lshlrev_b32 v{vJ16}, 4, v7
    v_lshlrev_b32 v{WC}, 3, v7
    v_lshl_add_u32 v{WC}, v6, 1, v{WC}
    v_add_u32 v{WC}, s3, v{WC}            ; w_c offset: (h*64 + 4j + r')*2
    s_lshl_b32 s3, s{sB}, 9
    s_add_u32 s3, s3, {OFFS_OFF}
    s_waitcnt lgkmcnt(0)
    """)
    srd_off(a, S_INFO, 26, "s3", 512)
    a(f"""
    buffer_load_dword v{vRem}, v3, s[{S_INFO}:{S_INFO+3}], 0 offen
    buffer_load_dwordx2 v[120:121], v4, s[{S_INFO}:{S_INFO+3}], 0 offen
    """)
    srd(a, S_X, "s4", "s5", N * 256)
    a(f"""
    s_lshl_b32 s3, s{sW}, 11
    s_add_u32 s3, s3, {EARR}
    s_mov_b32 m0, s3
    s_cmp_lt_u32 s{sW}, 8
    buffer_load_dwordx4 v16, s[{S_X}:{S_X+3}], 0 offen lds
    buffer_load_dwordx4 v18, s[{S_X}:{S_X+3}], 0 offen offset:1024 lds
    s_cselect_b32 s{S_W}, s12, s18
    s_cselect_b32 s{S_W+1}, s13, s19
    s_and_b32 s{S_W+1}, s{S_W+1}, 0xffff
    s_mov_b32 s{S_W+2}, 32768
    s_mov_b32 s{S_W+3}, 0x20000
    s_lshl_b32 s3, s{sW}, 11
    s_add_u32 s3, s3, {HEAD}
    s_mov_b32 m0, s3
    s_and_b32 s3, s{sW}, 7
    s_lshl_b32 s3, s3, 12
    s_lshl_b32 s{sT}, s{sH}, 7
    s_add_u32 s3, s3, s{sT}
    buffer_load_dwordx4 v5, s[{S_W}:{S_W+3}], s3 offen lds
    s_add_u32 s3, s3, 1024
    buffer_load_dwordx4 v19, s[{S_W}:{S_W+3}], s3 offen offset:1024 lds
    """)
    srd(a, S_WC, "s16", "s17", 1024)
    for k in range(4): a(f"buffer_load_ushort v{124+k}, v{WC}, s[{S_WC}:{S_WC+3}], 0 offen offset:{256*k}")
    a(f"buffer_load_dwordx4 v[{XR}:{XR+3}], v{vXo}, s[{S_X}:{S_X+3}], 0 offen")
    a(f"s_mul_i32 s{sT}, s{sH}, {TBL_H}")
    srd_off(a, S_REC, 26, REC_OFF, NC * RECREG)
    srd_off(a, S_TBL, 26, f"s{sT}", (N + 1) * 256)
    srd_off(a, S_RAW, 26, f"s{sT}", (N + 1) * 256)
    srd(a, S_OUT, "s22", "s23", N * 256)
    a(f"""
    v_mov_b32 v68, 0
    v_mov_b32 v69, 0
    v_mov_b32 v70, 0
    v_mov_b32 v71, 0
    v_mov_b32 v72, 1.0
    v_mov_b32 v73, 1.0
    v_mov_b32 v74, 1.0
    v_mov_b32 v75, 1.0
    v_lshlrev_b32 v3, 4, v0
    v_add_u32 v4, {CNT}, v3
    v_add_u32 v3, {NPB*RST+512}, v3
    v_cmp_gt_u32 vcc, {(K2_LDS-CNT)//16}, v0
    s_and_saveexec_b64 s[{MK}:{MK+1}], vcc
    ds_write_b128 v4, v[68:71]
    v_cmp_gt_u32 vcc, 16, v0
    s_and_b64 exec, exec, vcc
    ds_write_b128 v3, v[72:75]
    s_mov_b64 exec, -1
    s_mov_b32 s{sBase}, 0
    s_mov_b32 s{sRST}, {RST}
    s_mov_b32 s{sMsk}, 0xffffff00
    s_mov_b32 s{sCnt}, {CNT}
    s_mov_b32 s3, {RECREG}
    v_mul_u32_u24 v{vRecA}, s3, v2
    v_mul_u32_u24 v15, 12, v15            ; sub*12
    v_add_u32 v{vRecA}, v{vRecA}, v15
    s_lshr_b32 s3, s2, 3
    s_mul_i32 s3, s3, 782
    v_add_u32 v{vTch}, s3, v0
    v_lshlrev_b32 v{vTch}, 7, v{vTch}
    v_cmp_gt_u32 vcc, 782, v0
    v_mov_b32 v3, -1
    v_cndmask_b32 v{vTch}, v3, v{vTch}, vcc
    v_mov_b32 v{vOne}, 4
    v_lshlrev_b32 v{vCntA}, 3, v1
    v_add_u32 v{vCntA}, {CNT}, v{vCntA}
    s_waitcnt vmcnt(9)
    """)
    st()
    a(f"""
    v_and_b32 v3, 0xffff, v{vRem}
    v_lshrrev_b32 v{vRem}, 16, v{vRem}
    v_add_u32 v{vRecA}, v3, v{vRecA}
    v_sub_u32 v{vRem}, v{vRem}, v15
    """)
    def rec_loads(n):
        for k in range(n):
            if 96 * k <= 64: a(f"v_cmp_lt_i32 s[{MK+2*k}:{MK+2*k+1}], {96*k}, v{vRem}")
            else: a(f"v_cmp_lt_i32 vcc, {96*k}, v{vRem}\ns_mov_b64 s[{MK+2*k}:{MK+2*k+1}], vcc")
        for k in range(n):
            a(f"s_mov_b64 exec, s[{MK+2*k}:{MK+2*k+1}]\nbuffer_load_dwordx3 v[{REC+4*k}:{REC+4*k+2}], v{vRecA}, s[{S_REC}:{S_REC+3}], 0 offen offset:{96*k}")
        a("s_mov_b64 exec, -1")
    rec_loads(NR)
    a(f"""
    v_lshrrev_b32 v120, 16, v120
    v_lshrrev_b32 v121, 16, v121
    v_max_u32 v2, v120, v121
    v_add_u32 v3, v120, v121
    """)
    wave_red(a, 3, "add_u32")
    a(f"""
    v_cmp_lt_u32 vcc, {NR*96}, v2
    v_readlane_b32 s3, v3, 63
    s_mov_b32 s{sNB}, 1
    s_cmp_gt_u32 s3, {FASTMAX*12}
    s_cbranch_scc1 K2_SLOWMODE
    s_cbranch_vccz K2_MODE_DONE
    K2_SLOWMODE:
    """)
    wave_red(a, 2, "max_u32")
    a(f"""
    v_readlane_b32 s3, v2, 63
    s_add_u32 s3, s3, 287
    s_mul_i32 s3, s3, 14564
    s_lshr_b32 s{sNB}, s3, 22
    """)
    for k in range(3, NR): a(f"s_mov_b64 s[{MK+2*k}:{MK+2*k+1}], 0")
    a(f"""
    K2_MODE_DONE:
    s_lshr_b32 s3, s{sW}, 1
    s_lshl_b32 s{sT}, s3, 12
    s_add_u32 s{sT}, s{sT}, {EARR}
    """)
    for k in range(1, 4): a(f"v_xor_b32 v{120+k}, {64*k}, v17")
    a(f"v_add_u32 v120, s{sT}, v17")
    for k in range(1, 4): a(f"v_add_u32 v{120+k}, s{sT}, v{120+k}")
    w_frag_off(a, 16, 2, 3, 6)
    a(f"""
    s_and_b32 s{sT}, s{sW}, 1
    s_lshl_b32 s{sT}, s{sT}, 6
    v_xor_b32 v16, s{sT}, v16
    v_xor_b32 v17, 32, v16
    v_add_u32 v16, {HEAD}, v16
    v_add_u32 v17, {HEAD}, v17
    s_lshl_b32 s3, s3, 4
    v_add_u32 v2, s3, v7                  ; node
    v_cmp_gt_u32 vcc, {NPB}, v2
    s_mov_b64 s[{TMP}:{TMP+1}], vcc
    v_mul_u32_u24 v{vCe}, s{sRST}, v2
    v_lshl_add_u32 v{vCe}, v6, 4, v{vCe}
    s_lshl_b32 s{sT}, s{sT}, 1
    v_add_u32 v{vCe}, s{sT}, v{vCe}
    s_mov_b32 s16, {NEGL2E}
    s_mov_b32 s17, {NEGL2E}
    s_mov_b32 s18, 0x05040100
    s_mov_b32 s19, 0x07060302
    s_mov_b64 s[{RMM}:{RMM+1}], 0
    s_waitcnt vmcnt({5+NR}) lgkmcnt(0)
    s_barrier
    """)
    st()
    a(f"s_cmp_ge_u32 s{sW}, 14\ns_cbranch_scc1 K2_NOGEMM")
    for ks in range(4): a(f"ds_read_b128 v[{XF+4*ks}:{XF+4*ks+3}], v{120+ks}")
    seq = [(ks, m, c) for ks in range(4) for m in range(2) for c in range(2)]
    def rd(s):
        ks, m, c = seq[s]; b = WF + 4 * (s % 4); o = m * 16384 + ks * 4096
        a(f"ds_read_b64_tr_b16 v[{b}:{b+1}], v{16+c} offset:{o}\nds_read_b64_tr_b16 v[{b+2}:{b+3}], v{16+c} offset:{o+512}")
    for s in range(3): rd(s)
    for s in range(16):
        if s + 3 < 16: rd(s + 3)
        a(f"s_waitcnt lgkmcnt({2*min(3, 15-s)})")
        ks, m, c = seq[s]; b = WF + 4 * (s % 4); d = ACC + (m * 2 + c) * 4
        a(f"v_mfma_f32_16x16x32_bf16 v[{d}:{d+3}], v[{b}:{b+3}], v[{XF+4*ks}:{XF+4*ks+3}], {'0' if ks == 0 else 'v[%d:%d]' % (d, d+3)}")
    a(f"""
    v_mov_b32 v2, {TINY}
    v_mov_b32 v3, {TINY}
    v_mov_b32 v4, {f2u(-62.0)}
    v_mov_b32 v5, {f2u(-62.0)}
    s_mov_b32 s3, {f2u(60.0)}
    """)
    for i in range(4): a(pk('fma', ACC + 2 * i, ACC + 2 * i, "s[16:17]", 2))
    for i in range(4): a(pk('add', XF + 2 * i, ACC + 2 * i, 4))
    for i in range(8): a(f"v_exp_f32 v{XF+i}, v{XF+i}")
    a(f"""
    v_max3_f32 v2, |v{ACC}|, |v{ACC+1}|, |v{ACC+2}|
    v_max3_f32 v3, |v{ACC+3}|, |v{ACC+4}|, |v{ACC+5}|
    v_max3_f32 v2, v2, |v{ACC+6}|, |v{ACC+7}|
    v_max_f32 v2, v2, v3
    v_cmp_lt_f32 s[{RMM}:{RMM+1}], s3, v2
    """)
    for i in range(4): a(f"v_mov_b32 v{XF+8+2*i}, v{ACC+8+2*i}\nv_mov_b32 v{XF+9+2*i}, v{ACC+9+2*i}")
    for i in range(4): pack_pair(a, XF + 2 * i, XF + 8 + 2 * i, WF + 2 * i, WF + 2 * i + 1, "s18", "s19")
    a(f"""
    s_mov_b64 exec, s[{TMP}:{TMP+1}]
    ds_write_b128 v{vCe}, v[{WF}:{WF+3}] offset:512
    ds_write_b128 v{vCe}, v[{WF+4}:{WF+7}] offset:576
    v_mov_b32 v2, {FLAG}
    s_mov_b64 exec, s[{RMM}:{RMM+1}]
    ds_write_b32 v2, v{vOne}
    s_mov_b64 exec, -1
    K2_NOGEMM:
    s_mov_b32 s3, {NEGL2E}
    s_waitcnt vmcnt({1+NR})
    """)
    for k in range(4): a(f"v_lshlrev_b32 v{124+k}, 16, v{124+k}\nv_mul_f32 v{124+k}, s3, v{124+k}")
    a(f"""
    v_cvt_pk_bf16_f32 v{WC}, v124, v125
    v_cvt_pk_bf16_f32 v{WC+1}, v126, v127
    v_mov_b32 v{CC}, {CBITS}
    v_mov_b32 v{CC+1}, {CBITS}
    v_bfe_u32 v3, v1, 2, 2                ; (l>>2)&3
    v_and_b32 v16, 3, v1
    v_mov_b32 v17, 0x3f80
    v_cmp_eq_u32 vcc, v6, v3
    v_cndmask_b32 v17, 0, v17, vcc
    """)
    for r in range(4): a(f"v_cmp_eq_u32 vcc, {r}, v16\nv_cndmask_b32 v{SEL+r}, 0, v17, vcc")
    a(f"""
    s_waitcnt vmcnt(0)
    """)
    st()
    if not OPT.get('NOTOUCH'): a(f"buffer_load_dword v{vTch}, v{vTch}, s[{S_RAW}:{S_RAW+3}], 0 offen")
    a("K2_BATCH:")
    for k in range(NR):
        a(f"""
        s_mov_b64 exec, s[{MK+2*k}:{MK+2*k+1}]
        s_cbranch_execz K2_AT_DONE
        v_and_b32 v{CA+k}, 0x7f, v{REC+4*k+2}
        v_lshl_add_u32 v{CA+k}, v{CA+k}, 2, s{sCnt}
        ds_add_rtn_u32 v{REC+4*k+3}, v{CA+k}, v{vOne}
        """)
    a(f"""
    K2_AT_DONE:
    s_mov_b64 exec, -1
    v_mov_b32 v16, {FLAG}
    s_waitcnt lgkmcnt(0)
    s_barrier
    """)
    st()
    a(f"""
    ds_read_b64 v[2:3], v{vCntA}
    ds_read_b32 v16, v16
    s_waitcnt lgkmcnt(0)
    v_add_u32 v4, 4, v2
    v_add_u32 v5, 4, v3
    v_and_b32 v4, -8, v4
    v_and_b32 v5, -8, v5
    v_add_u32 v18, v4, v5
    v_mov_b32 v19, v18
    v_readfirstlane_b32 s{sRM}, v16
    """)
    wave_red(a, 19, "add_u32")
    a(f"""
    v_sub_u32 v16, v19, v18
    v_readlane_b32 s{sT}, v19, 63
    v_add_u32 v16, {SARR}, v16
    v_add_u32 v17, v16, v4
    ds_write_b64 v{vCntA}, v[16:17] offset:512
    s_add_u32 s{sL}, s{sT}, 511
    s_lshr_b32 s{sL}, s{sL}, 9
    """)
    for k in range(NR):
        a(f"s_mov_b64 exec, s[{MK+2*k}:{MK+2*k+1}]\ns_cbranch_execz K2_RD_DONE\nds_read_b32 v{CA+k}, v{CA+k} offset:512")
    a(f"""
    K2_RD_DONE:
    s_mov_b64 exec, -1
    s_mov_b32 s3, {(EARR - 2*SARR) & 0xffffffff}
    v_mov_b32 v120, 0
    v_mov_b32 v121, 0
    v_mov_b32 v122, {N*256 + NPB}
    s_cmp_ge_u32 s{sW}, 13
    s_cbranch_scc0 K2_NOAUX
    s_cmp_eq_u32 s{sW}, 15
    s_cbranch_scc1 K2_AUX15
    s_sub_u32 s{sRem}, s{sW}, 13
    s_lshl_b32 s{sRem}, s{sRem}, 8
    s_add_u32 s{sRem}, s{sRem}, s{sT}
    s_add_u32 s{sRem}, s{sRem}, {SARR}
    v_lshl_add_u32 v123, v1, 2, s{sRem}
    ds_write_b32 v123, v122
    v_lshl_add_u32 v123, v123, 1, s3
    ds_write_b64 v123, v[120:121]
    s_branch K2_NOAUX
    K2_AUX15:
    """)
    for i in range(2):
        a(f"""
        v_and_b32 v123, 4, v{2+i}
        v_cmp_ne_u32 vcc, 0, v123
        v_add_u32 v123, v{16+i}, v{2+i}
        s_mov_b64 exec, vcc
        ds_write_b32 v123, v122
        v_lshl_add_u32 v123, v123, 1, s3
        ds_write_b64 v123, v[120:121]
        s_mov_b64 exec, -1
        """)
    a(f"""
    s_max_u32 s{sRem}, s{sL}, 1
    v_cvt_f32_u32 v120, s{sRem}
    v_rcp_f32 v120, v120
    v_subrev_u32 v16, {SARR}, v16
    v_subrev_u32 v17, {SARR}, v17
    v_mul_f32 v120, {f2u(2.0**20)}, v120
    v_lshrrev_b32 v16, 3, v16
    v_lshrrev_b32 v17, 3, v17
    v_cvt_u32_f32 v120, v120
    v_lshrrev_b32 v19, 3, v19
    v_add_u32 v120, 2, v120
    s_sub_u32 s{sRem}, s{sRem}, 1
    """)
    for i, q in enumerate((16, 17, 19)):
        a(f"v_add_u32 v{121+i}, s{sRem}, v{q}\nv_mul_lo_u32 v{121+i}, v{121+i}, v120\nv_lshrrev_b32 v{121+i}, 20, v{121+i}")
    a(f"v_lshlrev_b32 v18, 1, v1\nv_mul_u32_u24 v18, s{sRST}, v18\nv_mov_b32 v120, {ZROW}")
    for i, (q0, q1) in enumerate(((16, 17), (17, 19))):
        a(f"""
        v_mul_u32_u24 v4, s{sL}, v{121+i}
        v_cmp_ne_u32 vcc, v4, v{q0}
        v_cmp_ne_u32 s[{TMP}:{TMP+1}], v{q0}, v{q1}
        s_and_b64 vcc, vcc, s[{TMP}:{TMP+1}]
        v_sub_u32 v5, v{122+i}, v{121+i}
        v_cndmask_b32 v4, v120, v18, vcc
        v_lshl_or_b32 v4, v{121+i}, 18, v4
        v_lshl_or_b32 v{2+i}, v5, 25, v4
        v_add_u32 v18, {RST}, v18
        """)
    a(f"""
    ds_write_b64 v{vCntA}, v[2:3] offset:1024
    K2_NOAUX:
    s_waitcnt lgkmcnt(0)
    """)
    for k in range(NR):
        a(f"""
        s_mov_b64 exec, s[{MK+2*k}:{MK+2*k+1}]
        s_cbranch_execz K2_SC_DONE
        v_add_u32 v{CA+k}, v{CA+k}, v{REC+4*k+3}
        v_lshl_add_u32 v{REC+4*k+3}, v{CA+k}, 1, s3
        ds_write_b32 v{CA+k}, v{REC+4*k+2}
        ds_write_b64 v{REC+4*k+3}, v[{REC+4*k}:{REC+4*k+1}]
        """)
    a(f"""
    K2_SC_DONE:
    s_mov_b64 exec, -1
    s_cmp_eq_u32 s{sRM}, 4
    s_cbranch_scc0 K2_NORM
    s_cmp_ge_u32 s{sW}, 14
    s_cbranch_scc1 K2_NORM
    """)
    for i in range(4): pack_pair(a, ACC + 2 * i, ACC + 8 + 2 * i, WF + 2 * i, WF + 2 * i + 1, "s18", "s19")
    a(f"""
    s_lshr_b32 s3, s{sW}, 1
    s_lshl_b32 s3, s3, 4
    v_add_u32 v2, s3, v7
    v_cmp_gt_u32 vcc, {NPB}, v2
    s_mov_b64 exec, vcc
    ds_write_b128 v{vCe}, v[{WF}:{WF+3}] offset:512
    ds_write_b128 v{vCe}, v[{WF+4}:{WF+7}] offset:576
    s_mov_b64 exec, -1
    K2_NORM:
    s_lshl_b32 s3, s{sW}, 2
    s_lshl_b32 s{sT}, s{sL}, 3            ; L*8
    v_bfe_u32 v3, v1, 2, 2
    v_and_b32 v16, 3, v1
    v_cmp_eq_u32 vcc, v6, v16
    v_add_u32 v2, s3, v6
    v_add_u32 v3, s3, v3
    v_lshlrev_b32 v{vRow}, 9, v2
    v_mul_u32_u24 v2, s{sT}, v2
    v_mul_u32_u24 v3, s{sT}, v3
    v_add_u32 v{vS}, {SARR}, v2
    v_lshlrev_b32 v3, 1, v3
    v_add_u32 v3, {EARR}, v3
    v_mov_b32 v2, {ZROW}
    v_cndmask_b32 v{vE}, v2, v3, vcc
    v_mov_b32 v2, 64
    v_cndmask_b32 v{vEs}, 0, v2, vcc
    v_lshl_add_u32 v2, v7, 3, v{vS}
    v_add_u32 v{vRow}, v{vRow}, v{vJ16}
    v_add_u32 v{vRow}, {HEAD}, v{vRow}
    """)
    for i in range(8): a(f"v_mov_b32 v{NUM+i}, 0")
    a(f"""
    s_mov_b32 s{PAT}, 0x00010001
    s_mov_b32 s{PAT+1}, 0x00010001
    s_waitcnt lgkmcnt(0)
    s_barrier
    """)
    st()
    a(f"s_cmp_eq_u32 s{sL}, 0\ns_cbranch_scc1 K2_LOOP_DONE")
    a(f"ds_read_b64 v[{T}:{T+1}], v{vS}")
    for p in range(1, 4): a(f"ds_read_b64 v[{R+2*p}:{R+2*p+1}], v{vS} offset:{8*p}")
    a(f"""
    ds_read2_b32 v[16:17], v2 offset0:0 offset1:2
    ds_read2_b32 v[18:19], v2 offset0:32 offset1:34
    ds_read_b128 v[{EE}:{EE+3}], v{vE}
    ds_read_b64 v[{R}:{R+1}], v{vS} offset:32
    s_mov_b32 s{S_TBL+2}, {(N+1)*256}
    s_waitcnt lgkmcnt(4)
    """)
    for p in range(4):
        s0 = T if p == 0 else R + 2 * p
        a(f"""
        v_and_or_b32 v{V+2*p}, v{s0}, s{sMsk}, v{vJ16}
        v_and_or_b32 v{V+2*p+1}, v{s0+1}, s{sMsk}, v{vJ16}
        buffer_load_dwordx4 v[{LD+8*p}:{LD+8*p+3}], v{V+2*p}, s[{S_TBL}:{S_TBL+3}], 0 offen
        buffer_load_dwordx4 v[{LD+8*p+4}:{LD+8*p+7}], v{V+2*p+1}, s[{S_TBL}:{S_TBL+3}], 0 offen
        """)
    a(f"""
    v_and_b32 v3, 0x7f, v{T}
    v_mad_u32_u24 v3, v3, s{sRST}, v{vJ16}
    ds_read_b128 v[{CEA}:{CEA+3}], v3 offset:512
    s_waitcnt lgkmcnt(3)
    v_xor_b32 v16, v16, v17
    v_xor_b32 v18, v18, v19
    v_and_b32 v16, 0x7f, v16
    v_and_b32 v18, 0x7f, v18
    v_cmp_ne_u32 s[{M0_}:{M0_+1}], 0, v16
    v_cmp_ne_u32 s[{M1_}:{M1_+1}], 0, v18
    s_sub_u32 s{sRem}, s{sL}, 1
    s_and_b32 s{sT}, s{sRem}, 15
    s_lshl_b64 s[{TMP}:{TMP+1}], s[{PAT}:{PAT+1}], s{sT}
    s_cmp_lt_u32 s{sRem}, 16
    s_cbranch_scc1 K2_LAST_LO
    s_or_b64 s[{M1_}:{M1_+1}], s[{M1_}:{M1_+1}], s[{TMP}:{TMP+1}]
    s_branch K2_LAST_DONE
    K2_LAST_LO:
    s_or_b64 s[{M0_}:{M0_+1}], s[{M0_}:{M0_+1}], s[{TMP}:{TMP+1}]
    K2_LAST_DONE:
    s_sub_u32 s{sT}, s{sL}, 17
    s_cmp_gt_u32 s{sRem}, 3
    s_cselect_b32 s{S_TBL+2}, {(N+1)*256}, 0
    s_waitcnt vmcnt(6) lgkmcnt(0)
    v_mfma_f32_16x16x16_bf16 v[{T}:{T+3}], v[{EE}:{EE+1}], v[{WC}:{WC+1}], v[{LD}:{LD+3}]
    v_mfma_f32_16x16x16_bf16 v[{T+4}:{T+7}], v[{EE+2}:{EE+3}], v[{WC}:{WC+1}], v[{LD+4}:{LD+7}]
    s_nop 1
    ds_read_b128 v[{EE}:{EE+3}], v{vE} offset:16
    s_nop 4
    """)
    st()
    if OPT.get('FAIR', 1): a("s_setprio 3")
    a(f"s_cmp_lg_u32 s{sRM}, 0\ns_cbranch_scc1 K2_LOOP_1")
    for rm in range(2):
        a(f".p2align 6\nK2_LOOP_{rm}:") if rm == 0 else a(f"K2_LOOP_{rm}:")
        for u in range(4):
            la = LD + 8 * u; lb = la + 4; na = LD + 8 * ((u + 1) % 4); nb = na + 4
            ru = R + 2 * u; rn = R + 2 * ((u + 1) % 4)
            if rm:
                a("s_waitcnt lgkmcnt(0)")
                for i in range(4): a(pk('add', T + 2 * i, T + 2 * i, CEA + (2 * i) % 4))
            a(f"""
            v_mfma_f32_16x16x32_bf16 v[{V}:{V+3}], v[{SEL}:{SEL+3}], v[{la}:{la+3}], 0
            v_exp_f32 v{T}, v{T}
            v_exp_f32 v{T+1}, v{T+1}
            v_mfma_f32_16x16x32_bf16 v[{V+4}:{V+7}], v[{SEL}:{SEL+3}], v[{lb}:{lb+3}], 0
            """)
            for r in range(2, 8): a(f"v_exp_f32 v{T+r}, v{T+r}")
            a(f"""
            s_waitcnt lgkmcnt(0)
            v_and_or_b32 v{IA}, v{ru}, s{sMsk}, v{vJ16}
            v_and_or_b32 v{IB}, v{ru+1}, s{sMsk}, v{vJ16}
            buffer_load_dwordx4 v[{la}:{la+3}], v{IA}, s[{S_TBL}:{S_TBL+3}], 0 offen
            buffer_load_dwordx4 v[{lb}:{lb+3}], v{IB}, s[{S_TBL}:{S_TBL+3}], 0 offen
            """)
            for i in range(4):
                a(pk('fma', T + 2 * i, T + 2 * i, CC if rm else CEA + (2 * i) % 4, CC, mod=' clamp'))
            for i in (0, 2): a(pk('mul', D + i, T + i, T + 4 + i))
            for i in (0, 2): a(pk('add', ND + i, T + i, T + 4 + i))
            for i in (0, 2): a(pk('mul', W + i, V + i, T + 4 + i))
            for i in (0, 2): a(pk('fma', W + i, V + 4 + i, T + i, W + i))
            a(f"""
            s_waitcnt vmcnt(6)
            v_mfma_f32_16x16x16_bf16 v[{T}:{T+3}], v[{EE}:{EE+1}], v[{WC}:{WC+1}], v[{na}:{na+3}]
            v_rcp_f32 v{D}, v{D}
            v_rcp_f32 v{D+1}, v{D+1}
            v_mfma_f32_16x16x16_bf16 v[{T+4}:{T+7}], v[{EE+2}:{EE+3}], v[{WC}:{WC+1}], v[{nb}:{nb+3}]
            v_rcp_f32 v{D+2}, v{D+2}
            v_rcp_f32 v{D+3}, v{D+3}
            s_and_b64 s[{TMP}:{TMP+1}], s[{M0_}:{M0_+1}], s[{PAT}:{PAT+1}]
            """)
            for i in (0, 2): a(pk('fma', DEN + i, ND + i, D + i, DEN + i))
            for i in (0, 2): a(pk('fma', NUM + i, W + i, D + i, NUM + i))
            a(f"""
            s_cbranch_scc1 K2_FL_{rm}_{u}
            K2_BK_{rm}_{u}:
            ds_read_b64 v[{rn}:{rn+1}], v{vS} offset:{8*(u+5)}
            ds_read_b128 v[{EE}:{EE+3}], v{vE} offset:{16*(u+2)}
            s_lshr_b64 s[{M0_}:{M0_+1}], s[{M0_}:{M0_+1}], 1
            s_sub_u32 s{sRem}, s{sRem}, 1
            s_cmp_gt_u32 s{sRem}, 3
            s_cselect_b32 s{S_TBL+2}, {(N+1)*256}, 0
            """)
            if u == 3:
                a(f"""
                v_add_u32 v{vS}, 32, v{vS}
                v_add_u32 v{vE}, v{vEs}, v{vE}
                s_cmp_eq_u32 s{sRem}, s{sT}
                s_cselect_b64 s[{M0_}:{M0_+1}], s[{M1_}:{M1_+1}], s[{M0_}:{M0_+1}]
                """)
                if OPT.get('FAIR', 1):
                    a(f"""
                    s_cmp_ge_u32 s{sRem}, 16
                    s_cbranch_scc1 K2_LOOP_{rm}
                    s_setprio 2
                    s_cmp_ge_u32 s{sRem}, 8
                    s_cbranch_scc1 K2_LOOP_{rm}
                    s_setprio 1
                    s_cmp_ge_u32 s{sRem}, 4
                    s_cbranch_scc1 K2_LOOP_{rm}
                    s_setprio 0
                    """)
                a(f"s_branch K2_LOOP_{rm}")
        for u in range(4):
            rn = R + 2 * ((u + 1) % 4)
            a(f"""
            K2_FL_{rm}_{u}:
            s_mul_i32 exec_lo, s{TMP}, 0xffff
            s_mul_i32 exec_hi, s{TMP+1}, 0xffff
            ds_write_b128 v{vRow}, v[{NUM}:{NUM+3}]
            ds_write_b128 v{vRow}, v[{DEN}:{DEN+3}] offset:256
            v_and_b32 v{IA}, 0x7f, v{rn}
            v_mad_u32_u24 v{vRow}, v{IA}, s{sRST}, v{vJ16}
            s_cmp_lg_u32 s{sRem}, 0
            ds_read_b128 v[{CEA}:{CEA+3}], v{vRow} offset:512
            """)
            for i in range(4): a(f"v_pk_mov_b32 v[{NUM+2*i}:{NUM+2*i+1}], 0, 0")
            a(f"""
            s_mov_b64 exec, -1
            s_cbranch_scc1 K2_BK_{rm}_{u}
            s_branch K2_LOOP_DONE
            """)
    a("K2_LOOP_DONE:\ns_setprio 0")
    st()
    a(f"""
    v_lshrrev_b32 v2, 3, v0
    v_lshlrev_b32 v3, 2, v2
    v_add_u32 v3, {DESC}, v3
    ds_read_b32 v3, v3
    v_and_b32 v4, 7, v0
    v_lshlrev_b32 v4, 5, v4               ; 32*m
    v_mad_u32_u24 v2, v2, s{sRST}, v4
    v_add_u32 v5, {ZROW}, v4
    v_cmp_gt_u32 s[{TMP}:{TMP+1}], s{sRST}, v0
    s_waitcnt lgkmcnt(0)
    v_and_b32 v16, 0x3ffff, v3
    v_add_u32 v16, v16, v4
    v_bfe_u32 v17, v3, 18, 7
    v_lshl_add_u32 v17, v17, 9, v4
    v_add_u32 v17, {HEAD}, v17
    v_lshrrev_b32 v3, 25, v3
    v_cmp_ne_u32 vcc, 0, v3
    v_cndmask_b32 v5, v5, v17, vcc
    s_barrier
    """)
    st()
    a(f"""
    s_mov_b64 exec, s[{TMP}:{TMP+1}]
    ds_read_b128 v[40:43], v16 offset:256
    ds_read_b128 v[44:47], v16 offset:272
    ds_read_b128 v[72:75], v5 offset:256
    ds_read_b128 v[76:79], v5 offset:272
    ds_read_b128 v[32:35], v16
    ds_read_b128 v[36:39], v16 offset:16
    ds_read_b128 v[64:67], v5
    ds_read_b128 v[68:71], v5 offset:16
    ds_read_b128 v[48:51], v2 offset:512
    ds_read_b128 v[52:55], v2 offset:528
    v_cmp_lt_u32 vcc, 1, v3
    s_waitcnt lgkmcnt(2)
    """)
    for i in range(8): a(pk('add', 32 + 2 * i, 32 + 2 * i, 64 + 2 * i))
    a(f"""
    s_cbranch_vccz K2_HEADS_DONE
    K2_MORE_HEADS:
    s_mov_b64 exec, vcc
    v_add_u32 v17, 512, v17
    v_subrev_u32 v3, 1, v3
    ds_read_b128 v[64:67], v17
    ds_read_b128 v[68:71], v17 offset:16
    ds_read_b128 v[72:75], v17 offset:256
    ds_read_b128 v[76:79], v17 offset:272
    v_cmp_lt_u32 vcc, 1, v3
    s_waitcnt lgkmcnt(0)
    """)
    for i in range(8): a(pk('add', 32 + 2 * i, 32 + 2 * i, 64 + 2 * i))
    a(f"""
    s_cbranch_vccnz K2_MORE_HEADS
    s_mov_b64 exec, s[{TMP}:{TMP+1}]
    K2_HEADS_DONE:
    s_sub_u32 s{sNB}, s{sNB}, 1
    s_or_b32 s3, s{sNB}, s{sBase}
    s_cbranch_scc0 K2_FINAL
    s_lshl_b32 s3, s2, 16
    s_add_u32 s3, s3, {SCR_OFF}
    """)
    srd_off(a, S_W, 26, "s3", 65536)
    a(f"""
    v_lshlrev_b32 v2, 6, v0
    s_cmp_eq_u32 s{sBase}, 0
    s_cbranch_scc1 K2_NOLOAD
    """)
    for i in range(4): a(f"buffer_load_dwordx4 v[{64+4*i}:{67+4*i}], v2, s[{S_W}:{S_W+3}], 0 offen offset:{16*i}")
    a("s_waitcnt vmcnt(0)")
    for i in range(8): a(pk('add', 32 + 2 * i, 32 + 2 * i, 64 + 2 * i))
    a(f"""
    K2_NOLOAD:
    s_cmp_eq_u32 s{sNB}, 0
    s_cbranch_scc1 K2_FINAL
    """)
    for i in range(4): a(f"buffer_store_dwordx4 v[{32+4*i}:{35+4*i}], v2, s[{S_W}:{S_W+3}], 0 offen offset:{16*i}")
    a(f"""
    s_mov_b64 exec, -1
    s_waitcnt vmcnt(0) lgkmcnt(0)
    s_barrier
    v_lshrrev_b32 v2, 3, v0
    v_lshlrev_b32 v3, 2, v2
    buffer_load_dword v{vRem}, v3, s[{S_INFO}:{S_INFO+3}], 0 offen
    s_add_u32 s{sBase}, s{sBase}, 288
    s_mov_b32 s3, {RECREG}
    v_mul_u32_u24 v{vRecA}, s3, v2
    v_and_b32 v15, 7, v0
    v_mul_u32_u24 v15, 12, v15
    v_add_u32 v15, s{sBase}, v15
    v_add_u32 v{vRecA}, v{vRecA}, v15
    v_mov_b32 v{vOne}, 4
    v_mov_b32 v16, 0
    v_lshlrev_b32 v3, 2, v0
    v_add_u32 v3, {CNT}, v3
    v_cmp_gt_u32 vcc, 128, v0
    s_mov_b64 exec, vcc
    ds_write_b32 v3, v16
    s_mov_b64 exec, -1
    s_cmp_eq_u32 s{sRM}, 0
    s_cbranch_scc1 K2_NB_NOFLAG
    v_mov_b32 v4, {FLAG}
    v_mov_b32 v5, 5
    ds_write_b32 v4, v5
    K2_NB_NOFLAG:
    s_waitcnt vmcnt(0)
    v_and_b32 v3, 0xffff, v{vRem}
    v_lshrrev_b32 v{vRem}, 16, v{vRem}
    v_add_u32 v{vRecA}, v3, v{vRecA}
    v_sub_u32 v{vRem}, v{vRem}, v15
    """)
    rec_loads(3)
    a("s_waitcnt vmcnt(0) lgkmcnt(0)\ns_barrier\ns_branch K2_BATCH")
    a(f"""
    K2_FINAL:
    v_mov_b32 v4, {EPSP}
    v_mov_b32 v5, {EPSP}
    """)
    for i in range(4): a(pk('add', 40 + 2 * i, 40 + 2 * i, 4))
    for i in range(8): a(f"v_rcp_f32 v{40+i}, v{40+i}")
    a("s_waitcnt vmcnt(0) lgkmcnt(0)")
    for i in range(8): a(f"v_lshlrev_b32 v{48+i}, 16, v{48+i}")
    for i in range(4):
        a(f"v_lshlrev_b32 v{56+2*i}, 16, v{XR+i}\nv_and_b32 v{57+2*i}, 0xffff0000, v{XR+i}")
    for i in range(4): a(pk('fma', 32 + 2 * i, 32 + 2 * i, 40 + 2 * i, 48 + 2 * i))
    for i in range(8): a(f"v_max_f32 v{32+i}, 0, v{32+i}")
    for i in range(4): a(pk('add', 32 + 2 * i, 32 + 2 * i, 56 + 2 * i))
    for i in range(4): a(f"v_cvt_pk_bf16_f32 v{40+i}, v{32+2*i}, v{33+2*i}")
    a(f"buffer_store_dwordx4 v[40:43], v{vXo}, s[{S_OUT}:{S_OUT+3}], 0 offen")
    if DIAG:
        a("s_waitcnt vmcnt(0)"); st(); st.dump(1, "s2", f"s{sW}", 2, S_REC)
    a("K2_END:\ns_endpgm")

HEADER = open('standalone__edge_featured_mpnn_gatedgcn__graph.s.ref').read().split('; Override launch')[0]

def kd(name, vgpr, sgpr):
    return f""".amdhsa_kernel {name}
  .amdhsa_next_free_vgpr {vgpr}
  .amdhsa_next_free_sgpr {sgpr}
  .amdhsa_accum_offset {(vgpr + 3) // 4 * 4}
  .amdhsa_group_segment_fixed_size 0
  .amdhsa_kernarg_size 96
  .amdhsa_user_sgpr_count 2
  .amdhsa_user_sgpr_kernarg_segment_ptr 1
  .amdhsa_system_sgpr_workgroup_id_x 1
.end_amdhsa_kernel
"""

def build(verbose=False):
    out = HEADER
    out += "; Two launches: prep_kernel (x @ [w_b | w_v] -> gather tables; edges partitioned by destination bucket),\n"
    out += "; agg_kernel (per bucket and feature half: gates, normalised aggregation, residual output).\n"
    out += f"; @launch kernel=prep_kernel grid=({K1_GRID},1,1) block=({K1_BLOCK},1,1) lds={K1_LDS}\n"
    out += f"; @launch kernel=agg_kernel grid=({K2_GRID},1,1) block=({K2_BLOCK},1,1) lds={K2_LDS}\n"
    ks = [("prep_kernel", gen_k1), ("agg_kernel", gen_k2)]
    if OPT.get('PROBE'):
        out += "; @launch kernel=probe_kernel grid=(1,1,1) block=(64,1,1) lds=0\n"; ks.append(("probe_kernel", gen_probe))
    out += '.amdgcn_target "amdgcn-amd-amdhsa--gfx950"\n.text\n'
    for name, g in ks:
        a = Asm(); g(a)
        out += f".globl {name}\n.p2align 8\n.type {name},@function\n" + a.finish(verbose)
    out += '.section .rodata,"a"\n.p2align 6\n' + kd("prep_kernel", 128, 102 if DIAG else 64) + '.p2align 6\n' + kd("agg_kernel", 128, 102 if DIAG else 84)
    if OPT.get('PROBE'): out += '.p2align 6\n' + kd("probe_kernel", 8, 32)
    return out

if __name__ == '__main__':
    args = sys.argv[1:]
    if '--diag' in args: DIAG = True; args.remove('--diag')
    for x in list(args):
        if x.startswith('-D'):
            k, _, val = x[2:].partition('='); OPT[k] = int(val or 1); args.remove(x)
    v = '-v' in args
    if v: args.remove('-v')
    open(args[0], 'w').write(build(v))
```

```python
import sys, struct, math
from asmlib import Asm

def f2u(x): return struct.unpack('<I', struct.pack('<f', x))[0]

N = 12500; E = 400000
NPB = 98; NB = 128
NC = 128; CH = 3128; HCH = CH // 2
RECREG = CH * 12
TBL_H = 0x310000
REC_OFF = 0x800000
OFFS_OFF = 0x1000000
SCR_OFF = 0x1100000
DIAG_OFF = 0x2800000
NEGL2E = f2u(-math.log2(math.e))
TINY = 0x0d800000
CBITS = (127 - 62) << 23
EPSP = f2u(1e-6 * 2.0 ** 62)

G_WG = 128; S_WG = 128; K1_GRID = G_WG + S_WG; K1_BLOCK = 512; K1_LDS = 65536 + 32768 + 32768
K2_GRID = 256; K2_BLOCK = 1024
LMAX = 28; RST = 784
HEAD = 77824; EARR = HEAD + 32768; NPOS = LMAX * 128 + 128; SARR = EARR + NPOS * 8
CNT = SARR + NPOS * 4; OFFA = CNT + 512; DESC = OFFA + 512; ZROW = DESC + 512; EPSR = ZROW + 256; FLAG = ZROW + 768; K2_LDS = FLAG + 16
FASTMAX = LMAX * 128 - NPB
NR = 7

assert RST == NPB * 8
DIAG = False
OPT = {}

def srd(a, s, lo, hi, size):
    a(f"s_mov_b32 s{s}, {lo}\ns_and_b32 s{s+1}, {hi}, 0xffff\ns_mov_b32 s{s+2}, {size}\ns_mov_b32 s{s+3}, 0x20000")

def srd_off(a, s, plo, off, size):
    a(f"s_add_u32 s{s}, s{plo}, {off}\ns_addc_u32 s{s+1}, s{plo+1}, 0\ns_and_b32 s{s+1}, s{s+1}, 0xffff")
    a(f"s_mov_b32 s{s+2}, {size}\ns_mov_b32 s{s+3}, 0x20000")

def wave_red(a, v, op):
    for sh in (1, 2, 4, 8):
        a(f"v_{op}_dpp v{v}, v{v}, v{v} row_shr:{sh} row_mask:0xf bank_mask:0xf bound_ctrl:1")
    a(f"v_{op}_dpp v{v}, v{v}, v{v} row_bcast:15 row_mask:0xa bank_mask:0xf")
    a(f"v_{op}_dpp v{v}, v{v}, v{v} row_bcast:31 row_mask:0xc bank_mask:0xf")

def pk(op, d, *srcs, mod=''):
    return f"v_pk_{op}_f32 v[{d}:{d+1}], " + ", ".join(s if isinstance(s, str) else f"v[{s}:{s+1}]" for s in srcs) + mod

def pack_pair(a, h, l, o0, o1, sel0, sel1, cvt=True):
    if cvt: a(f"v_cvt_pk_bf16_f32 v{l}, v{l}, v{l+1}")
    a(f"""
    v_sub_u32_sdwa v{h}, v{h}, v{l} dst_sel:DWORD dst_unused:UNUSED_PAD src0_sel:DWORD src1_sel:WORD_0
    v_sub_u32_sdwa v{h+1}, v{h+1}, v{l} dst_sel:DWORD dst_unused:UNUSED_PAD src0_sel:DWORD src1_sel:WORD_1
    v_cvt_pk_bf16_f32 v{h}, v{h}, v{h+1}
    v_perm_b32 v{o0}, v{h}, v{l}, {sel0}
    v_perm_b32 v{o1}, v{h}, v{l}, {sel1}
    """)

class Stamps:
    def __init__(self, a, base): self.a = a; self.base = base; self.n = 0
    def __call__(self):
        if not DIAG: return
        s = self.base + self.n; self.n += 1
        assert s < 100
        op = 's_memtime' if OPT.get('CYC') else 's_memrealtime'
        self.a(f"{op} s[100:101]\ns_waitcnt lgkmcnt(0)\ns_mov_b32 s{s}, s100")
    def dump(self, kern, wg, swave, vt, srdreg):
        if not DIAG: return
        a = self.a
        srd_off(a, srdreg, 26, DIAG_OFF + kern * 0x100000, 0x100000)
        a(f"s_lshl_b32 s3, {wg}, 4\ns_add_u32 s3, s3, {swave}\ns_lshl_b32 s3, s3, 6")
        a(f"s_mov_b64 exec, 1\nv_mov_b32 v{vt}, s3")
        for i in range(self.n):
            a(f"v_mov_b32 v{vt+1}, s{self.base+i}\nbuffer_store_dword v{vt+1}, v{vt}, s[{srdreg}:{srdreg+3}], 0 offen offset:{4*i}\ns_nop 1")

def probe_stamp(a, slot, nm):
    if not OPT.get('PROBE'): return
    a(f"""
    s_cmp_lg_u32 s2, 0
    s_cbranch_scc1 {nm}_NOPROBE
    s_memrealtime s[8:9]
    s_load_dwordx2 s[4:5], s[0:1], 88
    s_waitcnt lgkmcnt(0)
    s_add_u32 s4, s4, {DIAG_OFF + 0x300000 + slot*256}
    s_addc_u32 s5, s5, 0
    v_mov_b32 v2, s8
    v_mov_b32 v3, 0
    s_mov_b64 exec, 1
    global_store_dword v3, v2, s[4:5]
    s_mov_b64 exec, -1
    {nm}_NOPROBE:
    """)

def gen_probe(a):
    a(f"""
    probe_kernel:
    s_cmp_lg_u32 s2, 0
    s_cbranch_scc1 P_END
    s_memrealtime s[8:9]
    s_load_dwordx2 s[4:5], s[0:1], 88
    s_waitcnt lgkmcnt(0)
    s_add_u32 s4, s4, {DIAG_OFF + 0x300000}
    s_addc_u32 s5, s5, 0
    v_mov_b32 v3, 0
    global_load_dword v1, v3, s[4:5]
    global_load_dword v2, v3, s[4:5] offset:256
    s_waitcnt vmcnt(0)
    v_readfirstlane_b32 s10, v1
    v_readfirstlane_b32 s11, v2
    s_nop 4
    s_sub_u32 s12, {'s8' if OPT['PROBE'] == 1 else 's11'}, s10
    s_min_u32 s12, s12, 20000
    s_mul_i32 s12, s12, 10
    P_SPIN:
    s_memrealtime s[14:15]
    s_waitcnt lgkmcnt(0)
    s_sub_u32 s13, s14, s8
    s_cmp_lt_u32 s13, s12
    s_cbranch_scc1 P_SPIN
    P_END:
    s_endpgm
    """)

def w_lane_off(a, d, t0, t1):
    a(f"""
    v_lshrrev_b32 v{t0}, 3, v1
    v_lshlrev_b32 v{t0}, 8, v{t0}
    v_bfe_u32 v{d}, v1, 4, 1
    v_lshlrev_b32 v{d}, 1, v{d}
    v_and_b32 v{t1}, 7, v1
    v_xor_b32 v{d}, v{d}, v{t1}
    v_lshl_add_u32 v{d}, v{d}, 4, v{t0}
    """)

def w_frag_off(a, d, t0, t1, vg):
    a(f"""
    v_bfe_u32 v{t0}, v1, 2, 2
    v_lshl_add_u32 v{d}, v{vg}, 3, v{t0}
    v_lshlrev_b32 v{d}, 7, v{d}
    v_and_b32 v{t1}, 3, v1
    v_lshl_add_u32 v{d}, v{t1}, 3, v{d}
    v_lshrrev_b32 v{t0}, 1, v{t0}
    v_and_b32 v{t1}, 1, v{vg}
    v_lshl_or_b32 v{t0}, v{t1}, 1, v{t0}
    v_lshl_add_u32 v{d}, v{t0}, 5, v{d}
    """)

def gen_k1(a):
    STP = {0: "", 1: " nt", 2: " sc1", 3: " sc0 sc1"}[OPT.get('STP', 0)]
    st = Stamps(a, 64)
    a("prep_kernel:")
    a(f"s_cmp_ge_u32 s2, {K1_GRID}\ns_cbranch_scc1 K1_END")
    probe_stamp(a, 0, "K1")
    st()
    a("""
    s_load_dwordx16 s[4:19], s[0:1], 0
    s_load_dwordx8 s[20:27], s[0:1], 64
    v_lshrrev_b32 v2, 6, v0
    v_and_b32 v1, 63, v0
    v_readfirstlane_b32 s50, v2
    """)
    a(f"s_cmp_lt_u32 s2, {S_WG}\ns_cbranch_scc1 K1_SORT")
    NT = " nt" if OPT.get('NT', 1) else ""
    XF = [8, 24]; ACC = 40; WF = 104; WA = 120; FA = 124
    XST = 65536; BNC = XST + 32768
    def acc(t, m, ct): return ACC + ((t * 2 + m) * 4 + ct) * 4
    a(f"""
    s_sub_u32 s53, s2, {S_WG}
    s_and_b32 s51, s53, 3
    s_lshl_b32 s51, s51, 5
    s_bfe_u32 s52, s53, 0x10002
    s_lshl_b32 s56, s52, 4
    s_add_u32 s51, s51, s56
    s_lshr_b32 s56, s53, 3
    s_add_u32 s51, s51, s56              ; bucket
    s_mul_i32 s54, s51, {NPB*256}
    s_add_u32 s58, s54, {NPB*256}
    s_min_u32 s58, s58, {N*256}
    s_lshl_b32 s55, s50, 12
    s_add_u32 s56, s54, s55
    s_add_u32 s55, s55, {XST}
    v_lshrrev_b32 v6, 4, v1              ; l>>4
    v_and_b32 v7, 15, v1                 ; l&15
    v_xor_b32 v2, v6, v7
    v_lshlrev_b32 v2, 4, v2              ; ((l&15)^(l>>4))*16
    v_lshl_add_u32 v{FA}, v7, 8, v2
    v_lshl_add_u32 v2, v6, 8, v2
    v_add_u32 v8, s56, v2
    """)
    for q in range(1, 4): a(f"v_xor_b32 v{8+q}, {64*q}, v8")
    w_lane_off(a, 4, 5, 48)
    a("v_xor_b32 v5, 64, v4\ns_mov_b32 m0, s55\ns_waitcnt lgkmcnt(0)")
    srd(a, 28, "s4", "s5", "s58")
    for q in range(4): a(f"buffer_load_dwordx4 v{8+q}, s[28:31], 0 offen offset:{q*1024}{NT} lds")
    a("""
    s_cmp_lt_u32 s50, 4
    s_cselect_b32 s32, s14, s20
    s_cselect_b32 s33, s15, s21
    s_and_b32 s33, s33, 0xffff
    s_mov_b32 s34, 32768
    s_mov_b32 s35, 0x20000
    s_lshl_b32 s57, s50, 13
    s_mov_b32 m0, s57
    s_bfe_u32 s59, s50, 0x10001
    s_lshl_b32 s59, s59, 7
    s_and_b32 s56, s50, 1
    s_lshl_b32 s56, s56, 14
    s_add_u32 s59, s59, s56
    """)
    for i in range(8):
        if i == 4: a("s_add_u32 s57, s57, 4096\ns_mov_b32 m0, s57\ns_add_u32 s59, s59, 4096")
        a(f"buffer_load_dwordx4 v{4 + (i & 1)}, s[32:35], s59 offen offset:{(i%4)*1024} lds\ns_add_u32 s59, s59, 1024")
    a(f"""
    s_and_b32 s52, s50, 1
    s_lshr_b32 s56, s50, 1
    s_mul_i32 s57, s52, {TBL_H}
    """)
    srd_off(a, 36, 26, "s57", "s58")
    w_frag_off(a, WA, 48, 49, 6)
    a(f"""
    s_lshl_b32 s57, s52, 14
    v_add_u32 v{WA}, s57, v{WA}
    s_lshl_b32 s57, s56, 13
    s_add_u32 s59, s57, {XST}
    v_add_u32 v40, s59, v{FA}
    s_lshl_b32 s59, s50, 12
    s_add_u32 s59, s59, {BNC}
    v_add_u32 v{FA}, s59, v{FA}
    v_add_u32 v2, s59, v2
    s_add_u32 s57, s57, s54
    v_lshlrev_b32 v3, 4, v1
    v_add_u32 v3, s57, v3
    v_add_u32 v7, 4096, v3
    """)
    for k in range(1, 4): a(f"v_xor_b32 v{WA+k}, {32*k}, v{WA}\nv_xor_b32 v{FA+k}, {64*k}, v{FA}\nv_xor_b32 v{40+k}, {64*k}, v40")
    a(f"""
    s_mov_b32 s44, {NEGL2E}
    s_mov_b32 s45, {NEGL2E}
    s_mov_b32 s46, 0x05040100
    s_mov_b32 s47, 0x07060302
    s_xor_b32 s51, s51, 16
    s_mul_i32 s51, s51, {NPB*256}
    v_lshlrev_b32 v4, 7, v0
    v_add_u32 v4, s51, v4
    v_lshlrev_b32 v5, 8, v1
    s_mov_b32 s30, {N*256}
    s_waitcnt vmcnt(0)
    """)
    st()
    a("s_barrier")
    st()
    if OPT.get('PRE', 1):
        a(f"""
        s_cmp_lt_u32 s50, 4
        s_cbranch_scc0 K1_XPRE_DONE
        v_cmp_gt_u32 vcc, {NPB*2}, v0
        s_mov_b64 exec, vcc
        buffer_load_dword v6, v4, s[28:31], 0 offen
        s_mov_b64 exec, -1
        s_branch K1_PRE_DONE
        K1_XPRE_DONE:
        s_cmp_lt_u32 s53, 8
        s_cbranch_scc0 K1_PRE_DONE
        s_cmp_lt_u32 s50, 6
        s_cselect_b32 s32, s12, s18
        s_cselect_b32 s33, s13, s19
        s_and_b32 s33, s33, 0xffff
        s_lshl_b32 s57, s52, 14
        s_bfe_u32 s59, s53, 0x10002
        s_lshl_b32 s59, s59, 7
        s_add_u32 s57, s57, s59
        buffer_load_dword v6, v5, s[32:35], s57 offen
        K1_PRE_DONE:
        """)
    for t in range(2):
        for ks in range(4): a(f"ds_read_b128 v[{XF[t]+4*ks}:{XF[t]+4*ks+3}], v{40+ks} offset:{t*4096}")
    a(f"v_mov_b32 v4, {TINY}\nv_mov_b32 v5, {TINY}\ns_waitcnt lgkmcnt(0)")
    seq = [(ks, m, ct) for ct in range(4) for ks in range(4) for m in range(2)]
    def rd(s):
        ks, m, ct = seq[s]; b = WF + 4 * (s % 4); o = m * 32768 + ks * 4096
        a(f"ds_read_b64_tr_b16 v[{b}:{b+1}], v{WA+ct} offset:{o}\nds_read_b64_tr_b16 v[{b+2}:{b+3}], v{WA+ct} offset:{o+512}")
    for s in range(3): rd(s)
    for s in range(32):
        if s + 3 < 32: rd(s + 3)
        a(f"s_waitcnt lgkmcnt({2*min(3, 31-s)})")
        ks, m, ct = seq[s]; b = WF + 4 * (s % 4)
        for t in range(2):
            d = acc(t, m, ct); c = "0" if ks == 0 else f"v[{d}:{d+3}]"
            a(f"v_mfma_f32_16x16x32_bf16 v[{d}:{d+3}], v[{b}:{b+3}], v[{XF[t]+4*ks}:{XF[t]+4*ks+3}], {c}")
    st()
    for k in range(1, 4): a(f"v_xor_b32 v{WA+k}, {64*k}, v2")
    for t in range(2):
        for ct in range(4):
            O = XF[t] + 4 * ct
            for rp in (0, 2):
                h = acc(t, 0, ct) + rp; l = acc(t, 1, ct) + rp
                a(pk('fma', h, h, "s[44:45]", 4))
                pack_pair(a, h, l, O + rp, O + rp + 1, "s46", "s47")
            if t == 1 and ct == 0:
                for q in range(4):
                    a(f"s_waitcnt lgkmcnt({3-q})")
                    a(f"buffer_store_dwordx4 v[{XF[0]+4*q}:{XF[0]+4*q+3}], v3, s[36:39], 0 offen offset:{q*1024}{STP}")
            a(f"ds_write_b128 v{FA+ct}, v[{O}:{O+3}]")
        a("s_waitcnt lgkmcnt(0)")
        for q in range(4): a(f"ds_read_b128 v[{XF[t]+4*q}:{XF[t]+4*q+3}], v{2 if q == 0 else WA+q} offset:{q*1024}")
    for q in range(4):
        a(f"s_waitcnt lgkmcnt({3-q})")
        a(f"buffer_store_dwordx4 v[{XF[1]+4*q}:{XF[1]+4*q+3}], v7, s[36:39], 0 offen offset:{q*1024}{STP}")
    st()
    if DIAG:
        a("s_waitcnt vmcnt(0)"); st(); st.dump(0, "s2", "s50", 2, 60)
    a("s_endpgm")
    st = Stamps(a, 65)
    IMG = 1024
    DST = 8; SRC = 16; EA = 24; BK = 40; RK = 48; SN = 56
    a("K1_SORT:")
    a(f"""
    s_and_b32 s52, s2, 7
    s_lshl_b32 s52, s52, 4
    s_lshr_b32 s51, s2, 3
    s_add_u32 s51, s51, s52              ; chunk c
    s_mul_i32 s52, s51, {CH}
    v_lshl_add_u32 v2, v0, 2, s52
    v_add_u32 v3, {HCH}, v2
    s_mov_b32 s53, {E}
    v_cmp_gt_u32 vcc, {HCH//4}, v0
    v_cmp_gt_u32 s[48:49], s53, v2
    v_cmp_gt_u32 s[56:57], s53, v3
    s_and_b64 s[48:49], s[48:49], vcc
    s_and_b64 s[56:57], s[56:57], vcc
    v_lshlrev_b32 v4, 3, v2
    v_lshlrev_b32 v5, 3, v3
    v_lshlrev_b32 v2, 2, v2
    v_lshlrev_b32 v3, 2, v3
    s_sub_u32 s58, s53, s52
    s_min_u32 s58, s58, {CH}
    s_mul_i32 s58, s58, 12
    s_waitcnt lgkmcnt(0)
    """)
    srd(a, 28, "s10", "s11", E * 4)
    a(f"buffer_load_dwordx4 v[{DST}:{DST+3}], v2, s[28:31], 0 offen{NT}\nbuffer_load_dwordx4 v[{DST+4}:{DST+7}], v3, s[28:31], 0 offen{NT}")
    srd(a, 32, "s8", "s9", E * 4)
    a(f"buffer_load_dwordx4 v[{SRC}:{SRC+3}], v2, s[32:35], 0 offen{NT}\nbuffer_load_dwordx4 v[{SRC+4}:{SRC+7}], v3, s[32:35], 0 offen{NT}")
    srd(a, 36, "s6", "s7", E * 8)
    for g in range(2):
        for k in range(2): a(f"buffer_load_dwordx4 v[{EA+8*g+4*k}:{EA+8*g+4*k+3}], v{4+g}, s[36:39], 0 offen offset:{16*k}{NT}")
    a(f"""
    v_mov_b32 v6, 0
    v_lshlrev_b32 v7, 2, v0
    v_cmp_gt_u32 vcc, 128, v0
    s_and_saveexec_b64 s[60:61], vcc
    ds_write_b32 v7, v6
    s_mov_b64 exec, -1
    s_mul_i32 s53, s51, {RECREG}
    s_add_u32 s53, s53, {REC_OFF}
    """)
    srd_off(a, 40, 26, "s53", "s58")
    srd(a, 44, "s26", "s27", SCR_OFF)
    a(f"""
    s_mov_b32 s54, 42800
    s_mov_b32 s55, {NPB}
    v_mov_b32 v5, 12
    v_lshlrev_b32 v6, 3, v1
    s_waitcnt lgkmcnt(0)
    s_barrier
    s_waitcnt vmcnt(6)
    """)
    st()
    for g in range(2):
        a(f"s_mov_b64 exec, s[{48 if g == 0 else 56}:{49 if g == 0 else 57}]")
        for i in range(4 * g, 4 * g + 4):
            a(f"""
            v_mul_u32_u24 v{BK+i}, s54, v{DST+i}
            v_lshrrev_b32 v{BK+i}, 22, v{BK+i}           ; bucket
            v_mul_u32_u24 v{SN+i}, s55, v{BK+i}
            v_lshlrev_b32 v{BK+i}, 2, v{BK+i}
            ds_add_rtn_u32 v{RK+i}, v{BK+i}, v5
            v_sub_u32 v{SN+i}, v{DST+i}, v{SN+i}
            """)
    a("s_mov_b64 exec, -1\ns_waitcnt vmcnt(4)")
    for i in range(8): a(f"v_lshl_or_b32 v{SN+i}, v{SRC+i}, 8, v{SN+i}")
    a("""
    s_waitcnt lgkmcnt(0)
    s_barrier
    ds_read_b64 v[64:65], v6
    s_waitcnt lgkmcnt(0)
    v_add_u32 v67, v64, v65
    v_mov_b32 v68, v67
    """)
    wave_red(a, 68, "add_u32")
    a(f"""
    v_sub_u32 v70, v68, v67
    v_add_u32 v71, v70, v64
    v_add_u32 v72, {IMG}, v70
    v_add_u32 v73, {IMG}, v71
    ds_write_b64 v6, v[72:73] offset:512
    """)
    for g in range(2):
        a(f"s_mov_b64 exec, s[{48 if g == 0 else 56}:{49 if g == 0 else 57}]")
        for i in range(4 * g, 4 * g + 4): a(f"ds_read_b32 v{BK+i}, v{BK+i} offset:512")
    a("s_waitcnt vmcnt(0)")
    for g in range(2):
        a(f"s_mov_b64 exec, s[{48 if g == 0 else 56}:{49 if g == 0 else 57}]")
        for i in range(4 * g, 4 * g + 4):
            a(f"""
            s_waitcnt lgkmcnt({min(15, 7 - i + 2 * i)})
            v_add_u32 v{BK+i}, v{BK+i}, v{RK+i}
            ds_write2_b32 v{BK+i}, v{EA+2*i}, v{EA+2*i+1} offset0:0 offset1:1
            ds_write_b32 v{BK+i}, v{SN+i} offset:8
            """)
    a(f"""
    s_mov_b64 exec, -1
    s_cmp_lg_u32 s50, 7
    s_cbranch_scc1 K1_NOINFO
    v_lshl_or_b32 v70, v64, 16, v70
    v_lshl_or_b32 v71, v65, 16, v71
    s_lshl_b32 s53, s51, 2
    s_add_u32 s53, s53, {OFFS_OFF}
    v_lshlrev_b32 v7, 10, v1
    v_add_u32 v7, s53, v7
    buffer_store_dword v70, v7, s[44:47], 0 offen
    buffer_store_dword v71, v7, s[44:47], 0 offen offset:512
    s_cmp_lg_u32 s51, 0
    s_cbranch_scc1 K1_NOINFO
    v_mov_b32 v70, 0x7f000000
    v_lshlrev_b32 v7, 2, v1
    v_add_u32 v7, {N*256}, v7
    v_add_u32 v71, {TBL_H}, v7
    buffer_store_dword v70, v7, s[44:47], 0 offen
    buffer_store_dword v70, v71, s[44:47], 0 offen
    K1_NOINFO:
    v_lshlrev_b32 v7, 4, v0
    s_waitcnt lgkmcnt(0)
    s_barrier
    """)
    st()
    NCP = (RECREG + K1_BLOCK * 16 - 1) // (K1_BLOCK * 16)
    for i in range(NCP): a(f"ds_read_b128 v[{8+4*i}:{11+4*i}], v7 offset:{IMG + i*K1_BLOCK*16}")
    for i in range(1, NCP): a(f"v_add_u32 v{40+i}, {i*K1_BLOCK*16}, v7")
    for i in range(NCP):
        a(f"s_waitcnt lgkmcnt({NCP-1-i})")
        a(f"buffer_store_dwordx4 v[{8+4*i}:{11+4*i}], v{7 if i == 0 else 40+i}, s[40:43], 0 offen{STP}")
    st()
    if DIAG:
        a("s_waitcnt vmcnt(0)"); st(); st.base = 64; st.n += 1; st.dump(0, "s2", "s50", 2, 60)
    a("K1_END:\ns_endpgm")

def gen_k2(a):
    OSTP = {0: "", 1: " nt", 2: " sc1", 3: " sc0 sc1"}[OPT.get('OSTP', 0)]
    st = Stamps(a, 84)
    S_REC, S_INFO, S_W, S_TBL, S_RAW, S_WC, S_X, S_OUT = 28, 32, 36, 40, 44, 48, 52, 56
    MK = 60
    sH, sB, sW, sL, sRem, sNB, sRM, sT = 76, 77, 78, 79, 80, 81, 82, 83
    sBase, sRST, sMsk, sCnt = 74, 75, 12, 13
    M0_, M1_, PAT, TMP, RMM = 4, 6, 8, 10, 14
    REC = 64
    CA = 92
    XF = 32; WF = 48; ACC = 100
    WCS = EARR + 32768
    vRem, vRecA, vOne = 116, 117, 118
    LD = 32; T = 64; V = 72; D = 80; ND = 84; W = 88; NUM = 92; DEN = 96; CEA = 100; EE = 104; R = 108
    IA, IB, vRow, vS = 116, 117, 118, 119
    vE, vEs, vJ16 = 20, 21, 22
    WC = 24; CC = 26; SEL = 28
    XR = 8; vXo = 12; vCntA = 13; vCe = 14; vTch = 23
    a("agg_kernel:")
    a(f"s_cmp_ge_u32 s2, {K2_GRID}\ns_cbranch_scc1 K2_END")
    probe_stamp(a, 1, "K2")
    st()
    a(f"""
    s_load_dwordx8 s[20:27], s[0:1], 64
    s_load_dwordx16 s[4:19], s[0:1], 0
    v_lshrrev_b32 v2, 6, v0
    v_and_b32 v1, 63, v0
    v_readfirstlane_b32 s{sW}, v2
    s_bfe_u32 s{sH}, s2, 0x10002
    s_lshr_b32 s{sB}, s2, 3
    s_and_b32 s3, s2, 3
    s_lshl_b32 s3, s3, 5
    s_add_u32 s{sB}, s{sB}, s3            ; bucket
    v_lshrrev_b32 v2, 3, v0
    v_lshlrev_b32 v3, 2, v2
    v_lshlrev_b32 v4, 3, v1
    v_lshrrev_b32 v6, 4, v1               ; l>>4
    v_and_b32 v7, 15, v1                  ; l&15
    s_lshl_b32 s3, s{sB}, 9
    s_add_u32 s3, s3, {OFFS_OFF}
    s_waitcnt lgkmcnt(0)
    """)
    srd_off(a, S_INFO, 26, "s3", 512)
    a(f"""
    buffer_load_dword v{vRem}, v3, s[{S_INFO}:{S_INFO+3}], 0 offen
    buffer_load_dwordx2 v[120:121], v4, s[{S_INFO}:{S_INFO+3}], 0 offen
    s_mul_i32 s{sT}, s{sB}, {NPB*256}
    v_xor_b32 v16, v6, v7
    v_lshlrev_b32 v16, 4, v16
    v_lshl_add_u32 v17, v7, 8, v16
    v_lshl_add_u32 v16, v6, 8, v16
    s_and_b32 s3, s{sW}, 1
    s_lshl_b32 s3, s3, 7
    v_xor_b32 v16, s3, v16
    s_lshl_b32 s3, s{sW}, 11
    s_add_u32 s3, s3, s{sT}
    v_add_u32 v16, s3, v16
    v_xor_b32 v18, 64, v16
    """)
    w_lane_off(a, 5, 19, 15)
    a(f"""
    v_xor_b32 v19, 64, v5
    v_and_b32 v15, 7, v0                  ; sub
    v_lshlrev_b32 v{vXo}, 8, v2
    v_lshl_add_u32 v{vXo}, v15, 4, v{vXo}
    s_lshl_b32 s3, s{sH}, 7
    s_add_u32 s{sT}, s{sT}, s3
    v_add_u32 v{vXo}, s{sT}, v{vXo}
    v_lshlrev_b32 v{vJ16}, 4, v7
    v_lshlrev_b32 v{WC}, 3, v7
    v_lshl_add_u32 v{WC}, v6, 1, v{WC}
    s_add_u32 s3, s3, {WCS}
    v_add_u32 v{WC}, s3, v{WC}
    v_lshlrev_b32 v{WC+1}, 4, v1
    """)
    a(f"s_add_u32 s3, s{sB}, 1\ns_mul_i32 s3, s3, {NPB*256}\ns_min_u32 s3, s3, {N*256}")
    srd(a, S_X, "s4", "s5", "s3")
    srd(a, S_WC, "s16", "s17", 1024)
    a(f"""
    s_cmp_lt_u32 s{sW}, 8
    s_cselect_b32 s{S_W}, s12, s18
    s_cselect_b32 s{S_W+1}, s13, s19
    s_and_b32 s{S_W+1}, s{S_W+1}, 0xffff
    s_mov_b32 s{S_W+2}, 32768
    s_mov_b32 s{S_W+3}, 0x20000
    s_mul_i32 s{sT}, s{sH}, {TBL_H}
    """)
    srd_off(a, S_REC, 26, REC_OFF, NC * RECREG)
    srd_off(a, S_TBL, 26, f"s{sT}", (N + 1) * 256)
    if not OPT.get('NOTOUCH'): srd_off(a, S_RAW, 26, f"s{sT}", (N + 1) * 256)
    srd(a, S_OUT, "s22", "s23", N * 256)
    def bulk():
        a(f"""
        s_lshl_b32 s3, s{sW}, 11
        s_add_u32 s3, s3, {EARR}
        s_mov_b32 m0, s3
        s_lshl_b32 s{sT}, s{sH}, 7
        buffer_load_dwordx4 v16, s[{S_X}:{S_X+3}], 0 offen lds
        buffer_load_dwordx4 v18, s[{S_X}:{S_X+3}], 0 offen offset:1024 lds
        s_sub_u32 s3, s3, {EARR-HEAD}
        s_mov_b32 m0, s3
        s_and_b32 s3, s{sW}, 7
        s_lshl_b32 s3, s3, 12
        s_add_u32 s3, s3, s{sT}
        buffer_load_dwordx4 v5, s[{S_W}:{S_W+3}], s3 offen lds
        s_add_u32 s3, s3, 1024
        buffer_load_dwordx4 v19, s[{S_W}:{S_W+3}], s3 offen offset:1024 lds
        """)
        a(f"s_mov_b32 m0, {WCS}\ns_nop 0\nbuffer_load_dwordx4 v{WC+1}, s[{S_WC}:{S_WC+3}], 0 offen lds")
    a(f"""
    v_mov_b32 v68, 0
    v_mov_b32 v69, 0
    v_mov_b32 v70, 0
    v_mov_b32 v71, 0
    v_mov_b32 v72, 1.0
    v_mov_b32 v73, 1.0
    v_mov_b32 v74, 1.0
    v_mov_b32 v75, 1.0
    v_lshlrev_b32 v3, 4, v0
    v_add_u32 v4, {CNT}, v3
    v_add_u32 v3, {NPB*RST+512}, v3
    s_mov_b32 s22, {EPSP}
    s_mov_b32 s23, {EPSP}
    v_subrev_u32 v76, {(ZROW+512-CNT)//16}, v0
    v_mov_b32 v77, s22
    v_cmp_gt_u32 vcc, 16, v76
    v_cndmask_b32 v68, v68, v77, vcc
    v_cndmask_b32 v69, v69, v77, vcc
    v_cndmask_b32 v70, v70, v77, vcc
    v_cndmask_b32 v71, v71, v77, vcc
    v_cmp_gt_u32 vcc, {(K2_LDS-CNT)//16}, v0
    s_and_saveexec_b64 s[{MK}:{MK+1}], vcc
    ds_write_b128 v4, v[68:71]
    v_cmp_gt_u32 vcc, 16, v0
    s_and_b64 exec, exec, vcc
    ds_write_b128 v3, v[72:75]
    s_mov_b64 exec, -1
    s_mov_b32 s{sBase}, 0
    s_mov_b32 s{sRST}, {RST}
    s_mov_b32 s{sMsk}, 0xffffff00
    s_mov_b32 s{sCnt}, {CNT}
    s_mov_b32 s3, {RECREG}
    v_mul_u32_u24 v{vRecA}, s3, v2
    v_lshl_add_u32 v{XR}, s{sH}, 3, v15
    v_mul_u32_u24 v15, 12, v15            ; sub*12
    v_add_u32 v{vRecA}, v{vRecA}, v15
    v_mov_b32 v{vOne}, 4
    v_lshlrev_b32 v{vCntA}, 3, v1
    v_add_u32 v{vCntA}, {CNT}, v{vCntA}
    """)
    bulk()
    a(f"s_waitcnt vmcnt(5)")
    st()
    a(f"""
    v_and_b32 v3, 0xffff, v{vRem}
    v_lshrrev_b32 v{vRem}, 16, v{vRem}
    v_add_u32 v{vRecA}, v3, v{vRecA}
    v_sub_u32 v{vRem}, v{vRem}, v15
    """)
    def rec_masks(n):
        for k in range(n):
            if 96 * k <= 64: a(f"v_cmp_lt_i32 s[{MK+2*k}:{MK+2*k+1}], {96*k}, v{vRem}")
            else: a(f"v_cmp_lt_i32 vcc, {96*k}, v{vRem}\ns_mov_b64 s[{MK+2*k}:{MK+2*k+1}], vcc")
    def rec_issue(n, lbl):
        for k in range(n):
            a(f"s_mov_b64 exec, s[{MK+2*k}:{MK+2*k+1}]\ns_cbranch_execz {lbl}\nbuffer_load_dwordx3 v[{REC+4*k}:{REC+4*k+2}], v{vRecA}, s[{S_REC}:{S_REC+3}], 0 offen offset:{96*k}")
        a(f"{lbl}:\ns_mov_b64 exec, -1")
    def rec_loads(n): rec_masks(n); rec_issue(n, "K2_RI_SLOW")
    rec_masks(NR)
    a(f"""
    v_lshrrev_b32 v120, 16, v120
    v_lshrrev_b32 v121, 16, v121
    v_max_u32 v122, v120, v121
    v_add_u32 v3, v120, v121
    """)
    wave_red(a, 3, "add_u32")
    a(f"""
    v_cmp_lt_u32 vcc, {NR*96}, v122
    v_readlane_b32 s3, v3, 63
    s_mov_b32 s{sNB}, 1
    s_cmp_gt_u32 s3, {FASTMAX*12}
    s_cbranch_scc1 K2_SLOWMODE
    s_cbranch_vccz K2_MODE_DONE
    K2_SLOWMODE:
    """)
    wave_red(a, 122, "max_u32")
    a(f"""
    v_readlane_b32 s3, v122, 63
    s_add_u32 s3, s3, 287
    s_mul_i32 s3, s3, 14564
    s_lshr_b32 s{sNB}, s3, 22
    """)
    for k in range(3, NR): a(f"s_mov_b64 s[{MK+2*k}:{MK+2*k+1}], 0")
    a(f"""
    K2_MODE_DONE:
    v_and_b32 v3, 15, v2
    v_xor_b32 v{XR}, v{XR}, v3
    v_lshlrev_b32 v2, 8, v2
    v_lshl_add_u32 v{XR}, v{XR}, 4, v2
    v_add_u32 v{XR}, {EARR}, v{XR}
    s_lshr_b32 s3, s{sW}, 1
    s_lshl_b32 s{sT}, s3, 12
    s_add_u32 s{sT}, s{sT}, {EARR}
    v_add_u32 v120, s{sT}, v17
    """)
    for k in range(1, 4): a(f"v_xor_b32 v{120+k}, {64*k}, v120")
    w_frag_off(a, 16, 2, 3, 6)
    a(f"""
    s_and_b32 s{sT}, s{sW}, 1
    s_lshl_b32 s{sT}, s{sT}, 6
    v_xor_b32 v16, s{sT}, v16
    v_add_u32 v16, {HEAD}, v16
    v_xor_b32 v17, 32, v16
    s_lshl_b32 s3, s3, 4
    v_add_u32 v2, s3, v7                  ; node
    v_cmp_gt_u32 vcc, {NPB}, v2
    s_mov_b64 s[{TMP}:{TMP+1}], vcc
    v_mul_u32_u24 v{vCe}, s{sRST}, v2
    v_lshl_add_u32 v{vCe}, v6, 4, v{vCe}
    s_lshl_b32 s{sT}, s{sT}, 1
    v_add_u32 v{vCe}, s{sT}, v{vCe}
    s_mov_b32 s16, {NEGL2E}
    s_mov_b32 s17, {NEGL2E}
    s_mov_b32 s18, 0x05040100
    s_mov_b32 s19, 0x07060302
    s_mov_b64 s[{RMM}:{RMM+1}], 0
    v_mov_b32 v{CC}, {CBITS}
    v_mov_b32 v{CC+1}, {CBITS}
    v_bfe_u32 v3, v1, 2, 2                ; (l>>2)&3
    v_and_b32 v18, 3, v1
    v_mov_b32 v19, 0x3f80
    v_cmp_eq_u32 vcc, v6, v3
    v_cmp_eq_u32 s[{M0_}:{M0_+1}], 0, v18
    v_cmp_eq_u32 s[{M1_}:{M1_+1}], 1, v18
    v_cndmask_b32 v19, 0, v19, vcc
    v_cmp_eq_u32 s[{PAT}:{PAT+1}], 2, v18
    v_cmp_eq_u32 vcc, 3, v18
    v_cndmask_b32 v{SEL}, 0, v19, s[{M0_}:{M0_+1}]
    v_cndmask_b32 v{SEL+1}, 0, v19, s[{M1_}:{M1_+1}]
    v_cndmask_b32 v{SEL+2}, 0, v19, s[{PAT}:{PAT+1}]
    v_cndmask_b32 v{SEL+3}, 0, v19, vcc
    v_cmp_eq_u32 s[20:21], v6, v18
    s_lshl_b32 s3, s{sW}, 2
    v_add_u32 v{vS}, s3, v6
    v_add_u32 v{vE}, s3, v3
    v_mov_b32 v2, 64
    v_cndmask_b32 v{vEs}, 0, v2, s[20:21]
    v_mov_b32 v2, {TINY}
    v_mov_b32 v3, {TINY}
    v_mov_b32 v4, {f2u(-62.0)}
    v_mov_b32 v5, {f2u(-62.0)}
    """)
    if not OPT.get('NOTOUCH'):
        a(f"""
        s_lshr_b32 s3, s2, 3
        s_mul_i32 s3, s3, 782
        v_add_u32 v{vTch}, s3, v0
        v_lshlrev_b32 v{vTch}, 7, v{vTch}
        v_cmp_gt_u32 vcc, {OPT.get('TOUCHN', 782)}, v0
        v_mov_b32 v18, -1
        v_cndmask_b32 v{vTch}, v18, v{vTch}, vcc
        """)
    a(f"""
    s_waitcnt vmcnt(0) lgkmcnt(0)
    s_barrier
    """)
    st()
    def gemm(tag):
        a(f"ds_read_b128 v[{XR}:{XR+3}], v{XR}")
        for k in range(4): a(f"ds_read_u16 v{124+k}, v{WC} offset:{256*k}")
        a(f"s_cmp_ge_u32 s{sW}, 14\ns_cbranch_scc1 K2_NOGEMM{tag}")
        for ks in range(4): a(f"ds_read_b128 v[{XF+4*ks}:{XF+4*ks+3}], v{120+ks}")
        seq = [(ks, m, c) for ks in range(4) for m in range(2) for c in range(2)]
        def rd(s):
            ks, m, c = seq[s]; b = WF + 4 * (s % 4); o = m * 16384 + ks * 4096
            a(f"ds_read_b64_tr_b16 v[{b}:{b+1}], v{16+c} offset:{o}\nds_read_b64_tr_b16 v[{b+2}:{b+3}], v{16+c} offset:{o+512}")
        for s in range(3): rd(s)
        for s in range(16):
            if s + 3 < 16: rd(s + 3)
            a(f"s_waitcnt lgkmcnt({2*min(3, 15-s)})")
            ks, m, c = seq[s]; b = WF + 4 * (s % 4); d = ACC + (m * 2 + c) * 4
            a(f"v_mfma_f32_16x16x32_bf16 v[{d}:{d+3}], v[{b}:{b+3}], v[{XF+4*ks}:{XF+4*ks+3}], {'0' if ks == 0 else 'v[%d:%d]' % (d, d+3)}")
        a(f"s_mov_b32 s3, {f2u(60.0)}\nv_mov_b32 v18, {FLAG}")
        for i in range(4): a(pk('fma', ACC + 2 * i, ACC + 2 * i, "s[16:17]", 2))
        for i in range(4): a(pk('add', XF + 2 * i, ACC + 2 * i, 4))
        for i in range(8): a(f"v_exp_f32 v{XF+i}, v{XF+i}")
        for i in range(4): a(f"v_cvt_pk_bf16_f32 v{ACC+8+2*i}, v{ACC+8+2*i}, v{ACC+9+2*i}")
        a(f"""
        v_max3_f32 v2, |v{ACC}|, |v{ACC+1}|, |v{ACC+2}|
        v_max3_f32 v3, |v{ACC+3}|, |v{ACC+4}|, |v{ACC+5}|
        v_max3_f32 v2, v2, |v{ACC+6}|, |v{ACC+7}|
        v_max_f32 v2, v2, v3
        v_cmp_lt_f32 vcc, s3, v2
        s_and_b64 s[{RMM}:{RMM+1}], vcc, s[{TMP}:{TMP+1}]
        """)
        for i in range(4): pack_pair(a, XF + 2 * i, ACC + 8 + 2 * i, WF + 2 * i, WF + 2 * i + 1, "s18", "s19", cvt=False)
        a(f"""
        s_mov_b64 exec, s[{TMP}:{TMP+1}]
        ds_write_b128 v{vCe}, v[{WF}:{WF+3}] offset:512
        ds_write_b128 v{vCe}, v[{WF+4}:{WF+7}] offset:576
        s_mov_b64 exec, s[{RMM}:{RMM+1}]
        ds_write_b32 v18, v{vOne}
        s_mov_b64 exec, -1
        K2_NOGEMM{tag}:
        s_waitcnt lgkmcnt(0)
        """)
        for k in range(4): a(f"v_lshlrev_b32 v{124+k}, 16, v{124+k}\nv_mul_f32 v{124+k}, s16, v{124+k}")
        a(f"v_cvt_pk_bf16_f32 v{WC}, v124, v125\nv_cvt_pk_bf16_f32 v{WC+1}, v126, v127")
    a(f"s_cmp_lt_u32 s{sW}, {OPT.get('GFIRST', 8)}\ns_cbranch_scc1 K2_GEMM_FIRST")
    rec_issue(NR, "K2_RI_A")
    gemm("A")
    a("s_branch K2_BOTH_DONE\nK2_GEMM_FIRST:")
    gemm("B")
    rec_issue(NR, "K2_RI_B")
    a("K2_BOTH_DONE:")
    st()
    a("s_waitcnt vmcnt(0)")
    st()
    if not OPT.get('NOTOUCH'): a(f"buffer_load_dword v{vTch}, v{vTch}, s[{S_RAW}:{S_RAW+3}], 0 offen")
    a("K2_BATCH:")
    for k in range(NR):
        a(f"""
        s_mov_b64 exec, s[{MK+2*k}:{MK+2*k+1}]
        s_cbranch_execz K2_AT_DONE
        v_and_b32 v{CA+k}, 0x7f, v{REC+4*k+2}
        v_lshl_add_u32 v{CA+k}, v{CA+k}, 2, s{sCnt}
        ds_add_rtn_u32 v{REC+4*k+3}, v{CA+k}, v{vOne}
        """)
    a(f"""
    K2_AT_DONE:
    s_mov_b64 exec, -1
    v_mov_b32 v16, {FLAG}
    s_waitcnt lgkmcnt(0)
    s_barrier
    """)
    st()
    a(f"""
    ds_read_b64 v[2:3], v{vCntA}
    ds_read_b32 v16, v16
    s_waitcnt lgkmcnt(0)
    v_add_u32 v4, 4, v2
    v_add_u32 v5, 4, v3
    v_and_b32 v4, -8, v4
    v_and_b32 v5, -8, v5
    v_add_u32 v18, v4, v5
    v_mov_b32 v19, v18
    v_readfirstlane_b32 s{sRM}, v16
    """)
    wave_red(a, 19, "add_u32")
    a(f"""
    v_sub_u32 v16, v19, v18
    v_readlane_b32 s{sT}, v19, 63
    v_add_u32 v16, {SARR}, v16
    v_add_u32 v17, v16, v4
    ds_write_b64 v{vCntA}, v[16:17] offset:512
    s_add_u32 s{sL}, s{sT}, 511
    s_lshr_b32 s{sL}, s{sL}, 9
    """)
    if OPT.get('FINE'): st()
    for k in range(NR):
        a(f"s_mov_b64 exec, s[{MK+2*k}:{MK+2*k+1}]\ns_cbranch_execz K2_RD_DONE\nds_read_b32 v{CA+k}, v{CA+k} offset:512")
    a(f"""
    K2_RD_DONE:
    s_mov_b64 exec, -1
    s_lshl_b32 s3, s{sL}, 3               ; L*8
    v_lshlrev_b32 v{vRow}, 9, v{vS}
    v_mul_u32_u24 v{vS}, s3, v{vS}
    v_mul_u32_u24 v{vE}, s3, v{vE}
    v_add_u32 v{vS}, {SARR}, v{vS}
    v_lshlrev_b32 v{vE}, 1, v{vE}
    v_add_u32 v{vE}, {EARR}, v{vE}
    v_mov_b32 v120, {ZROW}
    v_cndmask_b32 v{vE}, v120, v{vE}, s[20:21]
    v_lshl_add_u32 v99, v7, 3, v{vS}
    v_add_u32 v{vRow}, v{vRow}, v{vJ16}
    v_add_u32 v{vRow}, {HEAD}, v{vRow}
    s_mov_b32 s3, {(EARR - 2*SARR) & 0xffffffff}
    v_mov_b32 v120, 0
    v_mov_b32 v121, 0
    v_mov_b32 v122, {N*256 + NPB}
    s_sub_u32 s{sRem}, s{sW}, 1
    s_cmp_gt_u32 s{sRem}, 2
    s_cbranch_scc1 K2_NOAUX
    s_cmp_eq_u32 s{sW}, 1
    s_cbranch_scc1 K2_AUXPAD
    s_sub_u32 s{sRem}, s{sW}, 2
    s_lshl_b32 s{sRem}, s{sRem}, 8
    s_add_u32 s{sRem}, s{sRem}, s{sT}
    s_add_u32 s{sRem}, s{sRem}, {SARR}
    v_lshl_add_u32 v123, v1, 2, s{sRem}
    ds_write_b32 v123, v122
    v_lshl_add_u32 v123, v123, 1, s3
    ds_write_b64 v123, v[120:121]
    s_branch K2_NOAUX
    K2_AUXPAD:
    """)
    for i in range(2):
        a(f"""
        v_and_b32 v123, 4, v{2+i}
        v_cmp_ne_u32 vcc, 0, v123
        v_add_u32 v123, v{16+i}, v{2+i}
        s_mov_b64 exec, vcc
        ds_write_b32 v123, v122
        v_lshl_add_u32 v123, v123, 1, s3
        ds_write_b64 v123, v[120:121]
        s_mov_b64 exec, -1
        """)
    a(f"""
    K2_NOAUX:
    s_waitcnt lgkmcnt(0)
    """)
    if OPT.get('FINE'): st()
    for k in range(NR):
        a(f"""
        s_mov_b64 exec, s[{MK+2*k}:{MK+2*k+1}]
        s_cbranch_execz K2_SC_DONE
        v_add_u32 v{CA+k}, v{CA+k}, v{REC+4*k+3}
        ds_write_b32 v{CA+k}, v{REC+4*k+2}
        """)
    a(f"""
    K2_SC_DONE:
    s_mov_b64 exec, -1
    s_cmp_lg_u32 s{sW}, 0
    s_cbranch_scc1 K2_NODESC
    s_max_u32 s{sRem}, s{sL}, 1
    v_cvt_f32_u32 v120, s{sRem}
    v_rcp_f32 v120, v120
    v_subrev_u32 v16, {SARR}, v16
    v_subrev_u32 v17, {SARR}, v17
    v_mul_f32 v120, {f2u(2.0**20)}, v120
    v_lshrrev_b32 v16, 3, v16
    v_lshrrev_b32 v17, 3, v17
    v_cvt_u32_f32 v120, v120
    v_lshrrev_b32 v19, 3, v19
    v_add_u32 v120, 2, v120
    s_sub_u32 s{sRem}, s{sRem}, 1
    """)
    for i, q in enumerate((16, 17, 19)):
        a(f"v_add_u32 v{121+i}, s{sRem}, v{q}\nv_mul_lo_u32 v{121+i}, v{121+i}, v120\nv_lshrrev_b32 v{121+i}, 20, v{121+i}")
    a(f"v_lshlrev_b32 v18, 1, v1\nv_mul_u32_u24 v18, s{sRST}, v18\nv_mov_b32 v120, {EPSR}")
    for i, (q0, q1) in enumerate(((16, 17), (17, 19))):
        a(f"""
        v_mul_u32_u24 v4, s{sL}, v{121+i}
        v_cmp_ne_u32 vcc, v4, v{q0}
        v_cmp_ne_u32 s[{TMP}:{TMP+1}], v{q0}, v{q1}
        s_and_b64 vcc, vcc, s[{TMP}:{TMP+1}]
        v_sub_u32 v5, v{122+i}, v{121+i}
        v_cndmask_b32 v4, v120, v18, vcc
        v_lshl_or_b32 v4, v{121+i}, 18, v4
        v_lshl_or_b32 v{2+i}, v5, 25, v4
        v_add_u32 v18, {RST}, v18
        """)
    a(f"""
    ds_write_b64 v{vCntA}, v[2:3] offset:1024
    K2_NODESC:
    s_cmp_eq_u32 s{sRM}, 4
    s_cbranch_scc0 K2_NORM
    s_cmp_ge_u32 s{sW}, 14
    s_cbranch_scc1 K2_NORM
    """)
    for i in range(4): pack_pair(a, ACC + 2 * i, ACC + 8 + 2 * i, WF + 2 * i, WF + 2 * i + 1, "s18", "s19", cvt=False)
    a(f"""
    s_lshr_b32 s3, s{sW}, 1
    s_lshl_b32 s3, s3, 4
    v_add_u32 v2, s3, v7
    v_cmp_gt_u32 vcc, {NPB}, v2
    s_mov_b64 exec, vcc
    ds_write_b128 v{vCe}, v[{WF}:{WF+3}] offset:512
    ds_write_b128 v{vCe}, v[{WF+4}:{WF+7}] offset:576
    s_mov_b64 exec, -1
    K2_NORM:
    """)
    a(f"""
    s_mov_b32 s{PAT}, 0x00010001
    s_mov_b32 s{PAT+1}, 0x00010001
    s_mov_b32 s{S_TBL+2}, {(N+1)*256}
    s_waitcnt lgkmcnt(0)
    s_barrier
    """)
    st()
    a(f"ds_read_b64 v[2:3], v{vS}")
    for p in range(1, 4): a(f"ds_read_b64 v[{R+2*p}:{R+2*p+1}], v{vS} offset:{8*p}")
    a(f"""
    ds_read2_b32 v[16:17], v99 offset0:0 offset1:2
    ds_read2_b32 v[18:19], v99 offset0:32 offset1:34
    ds_read_b64 v[{R}:{R+1}], v{vS} offset:32
    s_waitcnt lgkmcnt(3)
    """)
    def first_gathers(ps):
        for p in ps:
            s0 = 2 if p == 0 else R + 2 * p
            a(f"""
            v_and_or_b32 v{120+2*p}, v{s0}, s{sMsk}, v{vJ16}
            v_and_or_b32 v{121+2*p}, v{s0+1}, s{sMsk}, v{vJ16}
            buffer_load_dwordx4 v[{LD+8*p}:{LD+8*p+3}], v{120+2*p}, s[{S_TBL}:{S_TBL+3}], 0 offen
            buffer_load_dwordx4 v[{LD+8*p+4}:{LD+8*p+7}], v{121+2*p}, s[{S_TBL}:{S_TBL+3}], 0 offen
            """)
    NG1 = OPT.get('NG1', 1)
    first_gathers(range(NG1))
    a(f"""
    v_and_b32 v3, 0x7f, v2
    v_mad_u32_u24 v3, v3, s{sRST}, v{vJ16}
    ds_read_b128 v[{CEA}:{CEA+3}], v3 offset:512
    s_mov_b32 s3, {(EARR - 2*SARR) & 0xffffffff}
    """)
    for k in range(NR):
        a(f"""
        s_mov_b64 exec, s[{MK+2*k}:{MK+2*k+1}]
        s_cbranch_execz K2_SE_DONE
        v_lshl_add_u32 v{CA+k}, v{CA+k}, 1, s3
        ds_write_b64 v{CA+k}, v[{REC+4*k}:{REC+4*k+1}]
        """)
    a(f"""
    K2_SE_DONE:
    s_mov_b64 exec, -1
    """)
    for i in range(8): a(f"v_mov_b32 v{NUM+i}, 0")
    a(f"""
    s_waitcnt lgkmcnt(0)
    s_barrier
    ds_read_b128 v[{EE}:{EE+3}], v{vE}
    s_cmp_eq_u32 s{sL}, 0
    s_cbranch_scc1 K2_LOOP_DONE
    """)
    st()
    first_gathers(range(NG1, 4))
    a(f"""
    v_xor_b32 v16, v16, v17
    v_xor_b32 v18, v18, v19
    v_and_b32 v16, 0x7f, v16
    v_and_b32 v18, 0x7f, v18
    v_cmp_ne_u32 s[{M0_}:{M0_+1}], 0, v16
    v_cmp_ne_u32 s[{M1_}:{M1_+1}], 0, v18
    s_sub_u32 s{sRem}, s{sL}, 1
    s_and_b32 s{sT}, s{sRem}, 15
    s_lshl_b64 s[{TMP}:{TMP+1}], s[{PAT}:{PAT+1}], s{sT}
    s_cmp_lt_u32 s{sRem}, 16
    s_cbranch_scc1 K2_LAST_LO
    s_or_b64 s[{M1_}:{M1_+1}], s[{M1_}:{M1_+1}], s[{TMP}:{TMP+1}]
    s_branch K2_LAST_DONE
    K2_LAST_LO:
    s_or_b64 s[{M0_}:{M0_+1}], s[{M0_}:{M0_+1}], s[{TMP}:{TMP+1}]
    K2_LAST_DONE:
    s_sub_u32 s{sT}, s{sL}, 17
    s_cmp_gt_u32 s{sRem}, 3
    s_cselect_b32 s{S_TBL+2}, {(N+1)*256}, 0
    s_waitcnt vmcnt(6) lgkmcnt(0)
    v_mfma_f32_16x16x16_bf16 v[{T}:{T+3}], v[{EE}:{EE+1}], v[{WC}:{WC+1}], v[{LD}:{LD+3}]
    v_mfma_f32_16x16x16_bf16 v[{T+4}:{T+7}], v[{EE+2}:{EE+3}], v[{WC}:{WC+1}], v[{LD+4}:{LD+7}]
    s_nop 1
    ds_read_b128 v[{EE}:{EE+3}], v{vE} offset:16
    s_nop 4
    """)
    st()
    if OPT.get('FAIR', 1): a("s_setprio 3")
    a(f"s_cmp_lg_u32 s{sRM}, 0\ns_cbranch_scc1 K2_LOOP_1")
    for rm in range(2):
        a(f".p2align 6\nK2_LOOP_{rm}:") if rm == 0 else a(f"K2_LOOP_{rm}:")
        for u in range(4):
            la = LD + 8 * u; lb = la + 4; na = LD + 8 * ((u + 1) % 4); nb = na + 4
            ru = R + 2 * u; rn = R + 2 * ((u + 1) % 4)
            if rm:
                a("s_waitcnt lgkmcnt(0)")
                for i in range(4): a(pk('add', T + 2 * i, T + 2 * i, CEA + (2 * i) % 4))
            a(f"""
            v_mfma_f32_16x16x32_bf16 v[{V}:{V+3}], v[{SEL}:{SEL+3}], v[{la}:{la+3}], 0
            v_exp_f32 v{T}, v{T}
            v_exp_f32 v{T+1}, v{T+1}
            v_mfma_f32_16x16x32_bf16 v[{V+4}:{V+7}], v[{SEL}:{SEL+3}], v[{lb}:{lb+3}], 0
            """)
            for r in range(2, 8): a(f"v_exp_f32 v{T+r}, v{T+r}")
            a(f"""
            s_waitcnt lgkmcnt(0)
            v_and_or_b32 v{IA}, v{ru}, s{sMsk}, v{vJ16}
            v_and_or_b32 v{IB}, v{ru+1}, s{sMsk}, v{vJ16}
            buffer_load_dwordx4 v[{la}:{la+3}], v{IA}, s[{S_TBL}:{S_TBL+3}], 0 offen
            buffer_load_dwordx4 v[{lb}:{lb+3}], v{IB}, s[{S_TBL}:{S_TBL+3}], 0 offen
            """)
            for i in range(4):
                a(pk('fma', T + 2 * i, T + 2 * i, CC if rm else CEA + (2 * i) % 4, CC, mod=' clamp'))
            for i in (0, 2): a(pk('mul', D + i, T + i, T + 4 + i))
            for i in (0, 2): a(pk('add', ND + i, T + i, T + 4 + i))
            for i in (0, 2): a(pk('mul', W + i, V + i, T + 4 + i))
            for i in (0, 2): a(pk('fma', W + i, V + 4 + i, T + i, W + i))
            a(f"""
            s_waitcnt vmcnt(6)
            v_mfma_f32_16x16x16_bf16 v[{T}:{T+3}], v[{EE}:{EE+1}], v[{WC}:{WC+1}], v[{na}:{na+3}]
            v_rcp_f32 v{D}, v{D}
            v_rcp_f32 v{D+1}, v{D+1}
            v_mfma_f32_16x16x16_bf16 v[{T+4}:{T+7}], v[{EE+2}:{EE+3}], v[{WC}:{WC+1}], v[{nb}:{nb+3}]
            v_rcp_f32 v{D+2}, v{D+2}
            v_rcp_f32 v{D+3}, v{D+3}
            s_and_b64 s[{TMP}:{TMP+1}], s[{M0_}:{M0_+1}], s[{PAT}:{PAT+1}]
            """)
            for i in (0, 2): a(pk('fma', DEN + i, ND + i, D + i, DEN + i))
            for i in (0, 2): a(pk('fma', NUM + i, W + i, D + i, NUM + i))
            a(f"""
            s_cbranch_scc1 K2_FL_{rm}_{u}
            K2_BK_{rm}_{u}:
            ds_read_b64 v[{rn}:{rn+1}], v{vS} offset:{8*(u+5)}
            ds_read_b128 v[{EE}:{EE+3}], v{vE} offset:{16*(u+2)}
            s_lshr_b64 s[{M0_}:{M0_+1}], s[{M0_}:{M0_+1}], 1
            s_sub_u32 s{sRem}, s{sRem}, 1
            s_cmp_gt_u32 s{sRem}, 3
            s_cselect_b32 s{S_TBL+2}, {(N+1)*256}, 0
            """)
            if u == 3:
                a(f"""
                v_add_u32 v{vS}, 32, v{vS}
                v_add_u32 v{vE}, v{vEs}, v{vE}
                s_cmp_eq_u32 s{sRem}, s{sT}
                s_cselect_b64 s[{M0_}:{M0_+1}], s[{M1_}:{M1_+1}], s[{M0_}:{M0_+1}]
                """)
                if OPT.get('FAIR', 1):
                    a(f"""
                    s_cmp_ge_u32 s{sRem}, 16
                    s_cbranch_scc1 K2_LOOP_{rm}
                    s_setprio 2
                    s_cmp_ge_u32 s{sRem}, 8
                    s_cbranch_scc1 K2_LOOP_{rm}
                    s_setprio 1
                    s_cmp_ge_u32 s{sRem}, 4
                    s_cbranch_scc1 K2_LOOP_{rm}
                    s_setprio 0
                    """)
                a(f"s_branch K2_LOOP_{rm}")
        for u in range(4):
            rn = R + 2 * ((u + 1) % 4)
            a(f"""
            K2_FL_{rm}_{u}:
            s_mul_i32 exec_lo, s{TMP}, 0xffff
            s_mul_i32 exec_hi, s{TMP+1}, 0xffff
            ds_write_b128 v{vRow}, v[{NUM}:{NUM+3}]
            ds_write_b128 v{vRow}, v[{DEN}:{DEN+3}] offset:256
            v_and_b32 v{IA}, 0x7f, v{rn}
            v_mad_u32_u24 v{vRow}, v{IA}, s{sRST}, v{vJ16}
            s_cmp_lg_u32 s{sRem}, 0
            ds_read_b128 v[{CEA}:{CEA+3}], v{vRow} offset:512
            """)
            for i in range(2): a(f"v_pk_mov_b32 v[{NUM+2*i}:{NUM+2*i+1}], 0, 0")
            for i in range(2): a(f"v_pk_mov_b32 v[{DEN+2*i}:{DEN+2*i+1}], s[22:23], s[22:23]")
            a(f"""
            s_mov_b64 exec, -1
            s_cbranch_scc1 K2_BK_{rm}_{u}
            s_branch K2_LOOP_DONE
            """)
    a("K2_LOOP_DONE:\ns_setprio 0")
    st()
    a(f"""
    v_lshrrev_b32 v2, 3, v0
    v_lshlrev_b32 v3, 2, v2
    v_add_u32 v3, {DESC}, v3
    v_and_b32 v4, 7, v0
    v_lshlrev_b32 v4, 5, v4               ; 32*m
    v_mad_u32_u24 v2, v2, s{sRST}, v4
    s_waitcnt vmcnt(0)
    ds_read_b32 v3, v3
    ds_read_b128 v[48:51], v2 offset:512
    ds_read_b128 v[52:55], v2 offset:528
    v_add_u32 v5, {ZROW}, v4
    v_cmp_gt_u32 s[{TMP}:{TMP+1}], s{sRST}, v0
    """)
    for i in range(4):
        a(f"v_lshlrev_b32 v{56+2*i}, 16, v{XR+i}\nv_and_b32 v{57+2*i}, 0xffff0000, v{XR+i}")
    a(f"""
    s_waitcnt lgkmcnt(2)
    v_and_b32 v16, 0x3ffff, v3
    v_add_u32 v16, v16, v4
    v_bfe_u32 v17, v3, 18, 7
    v_lshl_add_u32 v17, v17, 9, v4
    v_add_u32 v17, {HEAD}, v17
    v_lshrrev_b32 v3, 25, v3
    v_cmp_ne_u32 vcc, 0, v3
    s_waitcnt lgkmcnt(0)
    """)
    for i in range(8): a(f"v_lshlrev_b32 v{48+i}, 16, v{48+i}")
    a("v_cndmask_b32 v5, v5, v17, vcc")
    for i in range(4): a(pk('add', 48 + 2 * i, 48 + 2 * i, 56 + 2 * i))
    a("s_barrier")
    st()
    a(f"""
    s_mov_b64 exec, s[{TMP}:{TMP+1}]
    ds_read_b128 v[40:43], v16 offset:256
    ds_read_b128 v[72:75], v5 offset:256
    ds_read_b128 v[44:47], v16 offset:272
    ds_read_b128 v[76:79], v5 offset:272
    ds_read_b128 v[32:35], v16
    ds_read_b128 v[64:67], v5
    ds_read_b128 v[36:39], v16 offset:16
    ds_read_b128 v[68:71], v5 offset:16
    v_cmp_lt_u32 vcc, 1, v3
    s_waitcnt lgkmcnt(0)
    """)
    for i in range(8): a(pk('add', 32 + 2 * i, 32 + 2 * i, 64 + 2 * i))
    a(f"""
    s_cbranch_vccz K2_HEADS_DONE
    K2_MORE_HEADS:
    s_mov_b64 exec, vcc
    v_add_u32 v17, 512, v17
    v_subrev_u32 v3, 1, v3
    ds_read_b128 v[64:67], v17
    ds_read_b128 v[68:71], v17 offset:16
    ds_read_b128 v[72:75], v17 offset:256
    ds_read_b128 v[76:79], v17 offset:272
    v_cmp_lt_u32 vcc, 1, v3
    s_waitcnt lgkmcnt(0)
    """)
    for i in range(8): a(pk('add', 32 + 2 * i, 32 + 2 * i, 64 + 2 * i))
    a(f"""
    s_cbranch_vccnz K2_MORE_HEADS
    s_mov_b64 exec, s[{TMP}:{TMP+1}]
    K2_HEADS_DONE:
    s_sub_u32 s{sNB}, s{sNB}, 1
    s_or_b32 s3, s{sNB}, s{sBase}
    s_cbranch_scc0 K2_FINAL
    s_lshl_b32 s3, s2, 16
    s_add_u32 s3, s3, {SCR_OFF}
    """)
    srd_off(a, S_W, 26, "s3", 65536)
    a(f"""
    v_lshlrev_b32 v2, 6, v0
    s_cmp_eq_u32 s{sBase}, 0
    s_cbranch_scc1 K2_NOLOAD
    """)
    for i in range(4): a(f"buffer_load_dwordx4 v[{64+4*i}:{67+4*i}], v2, s[{S_W}:{S_W+3}], 0 offen offset:{16*i}")
    a("s_waitcnt vmcnt(0)")
    for i in range(8): a(pk('add', 32 + 2 * i, 32 + 2 * i, 64 + 2 * i))
    a(f"""
    K2_NOLOAD:
    s_cmp_eq_u32 s{sNB}, 0
    s_cbranch_scc1 K2_FINAL
    """)
    for i in range(4): a(pk('add', 40 + 2 * i, 40 + 2 * i, "s[22:23]", mod=" neg_lo:[0,1] neg_hi:[0,1]"))
    for i in range(4): a(f"buffer_store_dwordx4 v[{32+4*i}:{35+4*i}], v2, s[{S_W}:{S_W+3}], 0 offen offset:{16*i}")
    a(f"""
    s_mov_b64 exec, -1
    s_waitcnt vmcnt(0) lgkmcnt(0)
    s_barrier
    v_lshrrev_b32 v2, 3, v0
    v_lshlrev_b32 v3, 2, v2
    buffer_load_dword v{vRem}, v3, s[{S_INFO}:{S_INFO+3}], 0 offen
    s_add_u32 s{sBase}, s{sBase}, 288
    s_mov_b32 s3, {RECREG}
    v_mul_u32_u24 v{vRecA}, s3, v2
    v_and_b32 v15, 7, v0
    v_mul_u32_u24 v15, 12, v15
    v_add_u32 v15, s{sBase}, v15
    v_add_u32 v{vRecA}, v{vRecA}, v15
    v_mov_b32 v{vOne}, 4
    s_lshl_b32 s3, s{sW}, 2
    v_bfe_u32 v16, v1, 2, 2
    v_add_u32 v{vS}, s3, v6
    v_add_u32 v{vE}, s3, v16
    v_mov_b32 v16, 0
    v_lshlrev_b32 v3, 2, v0
    v_add_u32 v3, {CNT}, v3
    v_cmp_gt_u32 vcc, 128, v0
    s_mov_b64 exec, vcc
    ds_write_b32 v3, v16
    s_mov_b64 exec, -1
    s_cmp_eq_u32 s{sRM}, 0
    s_cbranch_scc1 K2_NB_NOFLAG
    v_mov_b32 v4, {FLAG}
    v_mov_b32 v5, 5
    ds_write_b32 v4, v5
    K2_NB_NOFLAG:
    s_waitcnt vmcnt(0)
    v_and_b32 v3, 0xffff, v{vRem}
    v_lshrrev_b32 v{vRem}, 16, v{vRem}
    v_add_u32 v{vRecA}, v3, v{vRecA}
    v_sub_u32 v{vRem}, v{vRem}, v15
    """)
    rec_loads(3)
    a("s_waitcnt vmcnt(0) lgkmcnt(0)\ns_barrier\ns_branch K2_BATCH")
    a(f"""
    K2_FINAL:
    """)
    for i in range(8): a(f"v_rcp_f32 v{40+i}, v{40+i}")
    for i in range(4): a(pk('fma', 32 + 2 * i, 32 + 2 * i, 40 + 2 * i, 48 + 2 * i))
    for i in range(8): a(f"v_max_f32 v{32+i}, v{56+i}, v{32+i}")
    for i in range(4): a(f"v_cvt_pk_bf16_f32 v{40+i}, v{32+2*i}, v{33+2*i}")
    a(f"buffer_store_dwordx4 v[40:43], v{vXo}, s[{S_OUT}:{S_OUT+3}], 0 offen{OSTP}")
    if DIAG:
        a("s_waitcnt vmcnt(0)"); st(); st.dump(1, "s2", f"s{sW}", 2, S_REC)
    a("K2_END:\ns_endpgm")

HEADER = open('standalone__edge_featured_mpnn_gatedgcn__graph.s.ref').read().split('; Override launch')[0]

def kd(name, vgpr, sgpr):
    return f""".amdhsa_kernel {name}
  .amdhsa_next_free_vgpr {vgpr}
  .amdhsa_next_free_sgpr {sgpr}
  .amdhsa_accum_offset {(vgpr + 3) // 4 * 4}
  .amdhsa_group_segment_fixed_size 0
  .amdhsa_kernarg_size 96
  .amdhsa_user_sgpr_count 2
  .amdhsa_user_sgpr_kernarg_segment_ptr 1
  .amdhsa_system_sgpr_workgroup_id_x 1
.end_amdhsa_kernel
"""

def build(verbose=False):
    out = HEADER
    out += "; Two launches: prep_kernel (x @ [w_b | w_v] -> gather tables; edges partitioned by destination bucket),\n"
    out += "; agg_kernel (per bucket and feature half: gates, normalised aggregation, residual output).\n"
    out += f"; @launch kernel=prep_kernel grid=({K1_GRID},1,1) block=({K1_BLOCK},1,1) lds={K1_LDS}\n"
    out += f"; @launch kernel=agg_kernel grid=({K2_GRID},1,1) block=({K2_BLOCK},1,1) lds={K2_LDS}\n"
    ks = [("prep_kernel", gen_k1), ("agg_kernel", gen_k2)]
    if OPT.get('PROBE'):
        out += "; @launch kernel=probe_kernel grid=(1,1,1) block=(64,1,1) lds=0\n"; ks.append(("probe_kernel", gen_probe))
    out += '.amdgcn_target "amdgcn-amd-amdhsa--gfx950"\n.text\n'
    for name, g in ks:
        a = Asm(); g(a)
        out += f".globl {name}\n.p2align 8\n.type {name},@function\n" + a.finish(verbose)
    out += '.section .rodata,"a"\n.p2align 6\n' + kd("prep_kernel", 128, 102 if DIAG else 64) + '.p2align 6\n' + kd("agg_kernel", 128, 102 if DIAG else 84)
    if OPT.get('PROBE'): out += '.p2align 6\n' + kd("probe_kernel", 8, 32)
    return out

if __name__ == '__main__':
    args = sys.argv[1:]
    if '--diag' in args: DIAG = True; args.remove('--diag')
    for x in list(args):
        if x.startswith('-D'):
            k, _, val = x[2:].partition('='); OPT[k] = int(val or 1); args.remove(x)
    v = '-v' in args
    if v: args.remove('-v')
    open(args[0], 'w').write(build(v))
```

```python
import sys, struct, math
from asmlib import Asm

def f2u(x): return struct.unpack('<I', struct.pack('<f', x))[0]

N = 12500; E = 400000
NPB = 98; NB = 128
NC = 128; CH = 3128; HCH = CH // 2
RECREG = CH * 12
TBL_H = 0x310000
REC_OFF = 0x800000
OFFS_OFF = 0x1000000
SCR_OFF = 0x1100000
DIAG_OFF = 0x2800000
NEGL2E = f2u(-math.log2(math.e))
TINY = 0x0d800000
CBITS = (127 - 62) << 23
EPSP = f2u(1e-6 * 2.0 ** 62)

G_WG = 128; S_WG = 128; K1_GRID = G_WG + S_WG; K1_BLOCK = 512; K1_LDS = 65536 + 32768 + 32768
K2_GRID = 256; K2_BLOCK = 1024
LMAX = 28; RST = 784
HEAD = 77824; EARR = HEAD + 32768; NPOS = LMAX * 128 + 128; SARR = EARR + NPOS * 8
CNT = SARR + NPOS * 4; OFFA = CNT + 512; DESC = OFFA + 512; ZROW = DESC + 512; EPSR = ZROW + 256; FLAG = ZROW + 768; K2_LDS = FLAG + 16
FASTMAX = LMAX * 128 - NPB
NR = 7

assert RST == NPB * 8
DIAG = False
OPT = {}

def srd(a, s, lo, hi, size):
    a(f"s_mov_b32 s{s}, {lo}\ns_and_b32 s{s+1}, {hi}, 0xffff\ns_mov_b32 s{s+2}, {size}\ns_mov_b32 s{s+3}, 0x20000")

def srd_off(a, s, plo, off, size):
    a(f"s_add_u32 s{s}, s{plo}, {off}\ns_addc_u32 s{s+1}, s{plo+1}, 0\ns_and_b32 s{s+1}, s{s+1}, 0xffff")
    a(f"s_mov_b32 s{s+2}, {size}\ns_mov_b32 s{s+3}, 0x20000")

def wave_red(a, v, op):
    for sh in (1, 2, 4, 8):
        a(f"v_{op}_dpp v{v}, v{v}, v{v} row_shr:{sh} row_mask:0xf bank_mask:0xf bound_ctrl:1")
    a(f"v_{op}_dpp v{v}, v{v}, v{v} row_bcast:15 row_mask:0xa bank_mask:0xf")
    a(f"v_{op}_dpp v{v}, v{v}, v{v} row_bcast:31 row_mask:0xc bank_mask:0xf")

def pk(op, d, *srcs, mod=''):
    return f"v_pk_{op}_f32 v[{d}:{d+1}], " + ", ".join(s if isinstance(s, str) else f"v[{s}:{s+1}]" for s in srcs) + mod

def pack_pair(a, h, l, o0, o1, sel0, sel1, cvt=True):
    if cvt: a(f"v_cvt_pk_bf16_f32 v{l}, v{l}, v{l+1}")
    a(f"""
    v_sub_u32_sdwa v{h}, v{h}, v{l} dst_sel:DWORD dst_unused:UNUSED_PAD src0_sel:DWORD src1_sel:WORD_0
    v_sub_u32_sdwa v{h+1}, v{h+1}, v{l} dst_sel:DWORD dst_unused:UNUSED_PAD src0_sel:DWORD src1_sel:WORD_1
    v_cvt_pk_bf16_f32 v{h}, v{h}, v{h+1}
    v_perm_b32 v{o0}, v{h}, v{l}, {sel0}
    v_perm_b32 v{o1}, v{h}, v{l}, {sel1}
    """)

class Stamps:
    def __init__(self, a, base): self.a = a; self.base = base; self.n = 0
    def __call__(self):
        if not DIAG: return
        s = self.base + self.n; self.n += 1
        assert s < 100
        op = 's_memtime' if OPT.get('CYC') else 's_memrealtime'
        self.a(f"{op} s[100:101]\ns_waitcnt lgkmcnt(0)\ns_mov_b32 s{s}, s100")
    def dump(self, kern, wg, swave, vt, srdreg):
        if not DIAG: return
        a = self.a
        srd_off(a, srdreg, 26, DIAG_OFF + kern * 0x100000, 0x100000)
        a(f"s_lshl_b32 s3, {wg}, 4\ns_add_u32 s3, s3, {swave}\ns_lshl_b32 s3, s3, 6")
        a(f"s_mov_b64 exec, 1\nv_mov_b32 v{vt}, s3")
        for i in range(self.n):
            a(f"v_mov_b32 v{vt+1}, s{self.base+i}\nbuffer_store_dword v{vt+1}, v{vt}, s[{srdreg}:{srdreg+3}], 0 offen offset:{4*i}\ns_nop 1")

def probe_stamp(a, slot, nm):
    if not OPT.get('PROBE') or OPT['PROBE'] >= 10: return
    a(f"""
    s_cmp_lg_u32 s2, 0
    s_cbranch_scc1 {nm}_NOPROBE
    s_memrealtime s[8:9]
    s_load_dwordx2 s[4:5], s[0:1], 88
    s_waitcnt lgkmcnt(0)
    s_add_u32 s4, s4, {DIAG_OFF + 0x300000 + slot*256}
    s_addc_u32 s5, s5, 0
    v_mov_b32 v2, s8
    v_mov_b32 v3, 0
    s_mov_b64 exec, 1
    global_store_dword v3, v2, s[4:5]
    s_mov_b64 exec, -1
    {nm}_NOPROBE:
    """)

def gen_probe(a):
    P = OPT['PROBE']
    if P < 10:
        a(f"""
        probe_kernel:
        s_cmp_lg_u32 s2, 0
        s_cbranch_scc1 P_END
        s_memrealtime s[8:9]
        s_load_dwordx2 s[4:5], s[0:1], 88
        s_waitcnt lgkmcnt(0)
        s_add_u32 s4, s4, {DIAG_OFF + 0x300000}
        s_addc_u32 s5, s5, 0
        v_mov_b32 v3, 0
        global_load_dword v1, v3, s[4:5]
        global_load_dword v2, v3, s[4:5] offset:256
        s_waitcnt vmcnt(0)
        v_readfirstlane_b32 s10, v1
        v_readfirstlane_b32 s11, v2
        s_nop 4
        s_sub_u32 s12, {'s8' if P == 1 else 's11'}, s10
        """)
    else:
        kern = OPT.get('PK', 0); idx = P - 10; nw = 8 if kern == 0 else 16; w0 = OPT.get('PW0', 0); nwg = OPT.get('PNW', 256); kb = OPT.get('PB', 0)
        a(f"""
        probe_kernel:
        s_cmp_lg_u32 s2, 0
        s_cbranch_scc1 P_END
        s_memrealtime s[8:9]
        s_load_dwordx2 s[4:5], s[0:1], 88
        s_waitcnt lgkmcnt(0)
        s_add_u32 s4, s4, {DIAG_OFF}
        s_addc_u32 s5, s5, 0
        v_lshlrev_b32 v3, 10, v0
        v_mov_b32 v4, -1
        v_mov_b32 v5, 0
        """)
        for k in range(4):
            a(f"v_add_u32 v6, {kb*0x100000 + k*65536}, v3\nglobal_load_dword v1, v6, s[4:5]\ns_waitcnt vmcnt(0)\nv_min_u32 v4, v4, v1")
        for k in range(nwg // 64):
            for w in range(nw):
                a(f"v_add_u32 v6, {kern*0x100000 + (w0 + k*64)*1024 + w*64 + idx*4}, v3\nglobal_load_dword v1, v6, s[4:5]\ns_waitcnt vmcnt(0)\nv_max_u32 v5, v5, v1")
        a("v_not_b32 v4, v4")
        wave_red(a, 4, "max_u32"); wave_red(a, 5, "max_u32")
        a("""
        s_nop 1
        v_readlane_b32 s10, v4, 63
        v_readlane_b32 s11, v5, 63
        s_nop 4
        s_not_b32 s10, s10
        s_sub_u32 s12, s11, s10
        s_memrealtime s[8:9]
        s_waitcnt lgkmcnt(0)
        """)
    a(f"""
    s_min_u32 s12, s12, 20000
    s_mul_i32 s12, s12, {100 if P >= 10 else 10}
    P_SPIN:
    s_memrealtime s[14:15]
    s_waitcnt lgkmcnt(0)
    s_sub_u32 s13, s14, s8
    s_cmp_lt_u32 s13, s12
    s_cbranch_scc1 P_SPIN
    P_END:
    s_endpgm
    """)

def w_lane_off(a, d, t0, t1):
    a(f"""
    v_lshrrev_b32 v{t0}, 3, v1
    v_lshlrev_b32 v{t0}, 8, v{t0}
    v_bfe_u32 v{d}, v1, 4, 1
    v_lshlrev_b32 v{d}, 1, v{d}
    v_and_b32 v{t1}, 7, v1
    v_xor_b32 v{d}, v{d}, v{t1}
    v_lshl_add_u32 v{d}, v{d}, 4, v{t0}
    """)

def w_frag_off(a, d, t0, t1, vg):
    a(f"""
    v_bfe_u32 v{t0}, v1, 2, 2
    v_lshl_add_u32 v{d}, v{vg}, 3, v{t0}
    v_lshlrev_b32 v{d}, 7, v{d}
    v_and_b32 v{t1}, 3, v1
    v_lshl_add_u32 v{d}, v{t1}, 3, v{d}
    v_lshrrev_b32 v{t0}, 1, v{t0}
    v_and_b32 v{t1}, 1, v{vg}
    v_lshl_or_b32 v{t0}, v{t1}, 1, v{t0}
    v_lshl_add_u32 v{d}, v{t0}, 5, v{d}
    """)

def gen_k1(a):
    STP = {0: "", 1: " nt", 2: " sc1", 3: " sc0 sc1"}[OPT.get('STP', 0)]
    st = Stamps(a, 64)
    a("prep_kernel:")
    a(f"s_cmp_ge_u32 s2, {K1_GRID}\ns_cbranch_scc1 K1_END")
    probe_stamp(a, 0, "K1")
    st()
    a("""
    s_load_dwordx16 s[4:19], s[0:1], 0
    s_load_dwordx8 s[20:27], s[0:1], 64
    v_lshrrev_b32 v2, 6, v0
    v_and_b32 v1, 63, v0
    v_readfirstlane_b32 s50, v2
    """)
    a(f"s_cmp_lt_u32 s2, {S_WG}\ns_cbranch_scc1 K1_SORT")
    NT = " nt" if OPT.get('NT', 1) else ""
    XF = [8, 24]; ACC = 40; WF = 104; WA = 120; FA = 124
    XST = 65536; BNC = XST + 32768
    def acc(t, m, ct): return ACC + ((t * 2 + m) * 4 + ct) * 4
    a(f"""
    s_sub_u32 s53, s2, {S_WG}
    s_and_b32 s51, s53, 3
    s_lshl_b32 s51, s51, 5
    s_bfe_u32 s52, s53, 0x10002
    s_lshl_b32 s56, s52, 4
    s_add_u32 s51, s51, s56
    s_lshr_b32 s56, s53, 3
    s_add_u32 s51, s51, s56              ; bucket
    s_mul_i32 s54, s51, {NPB*256}
    s_add_u32 s58, s54, {NPB*256}
    s_min_u32 s58, s58, {N*256}
    s_lshl_b32 s55, s50, 12
    s_add_u32 s56, s54, s55
    s_add_u32 s55, s55, {XST}
    v_lshrrev_b32 v6, 4, v1              ; l>>4
    v_and_b32 v7, 15, v1                 ; l&15
    v_xor_b32 v2, v6, v7
    v_lshlrev_b32 v2, 4, v2              ; ((l&15)^(l>>4))*16
    v_lshl_add_u32 v{FA}, v7, 8, v2
    v_lshl_add_u32 v2, v6, 8, v2
    v_add_u32 v8, s56, v2
    """)
    for q in range(1, 4): a(f"v_xor_b32 v{8+q}, {64*q}, v8")
    w_lane_off(a, 4, 5, 48)
    a("v_xor_b32 v5, 64, v4\ns_mov_b32 m0, s55\ns_waitcnt lgkmcnt(0)")
    srd(a, 28, "s4", "s5", "s58")
    for q in range(4): a(f"buffer_load_dwordx4 v{8+q}, s[28:31], 0 offen offset:{q*1024}{NT} lds")
    a("""
    s_cmp_lt_u32 s50, 4
    s_cselect_b32 s32, s14, s20
    s_cselect_b32 s33, s15, s21
    s_and_b32 s33, s33, 0xffff
    s_mov_b32 s34, 32768
    s_mov_b32 s35, 0x20000
    s_lshl_b32 s57, s50, 13
    s_mov_b32 m0, s57
    s_bfe_u32 s59, s50, 0x10001
    s_lshl_b32 s59, s59, 7
    s_and_b32 s56, s50, 1
    s_lshl_b32 s56, s56, 14
    s_add_u32 s59, s59, s56
    """)
    for i in range(8):
        if i == 4: a("s_add_u32 s57, s57, 4096\ns_mov_b32 m0, s57\ns_add_u32 s59, s59, 4096")
        a(f"buffer_load_dwordx4 v{4 + (i & 1)}, s[32:35], s59 offen offset:{(i%4)*1024} lds\ns_add_u32 s59, s59, 1024")
    a(f"""
    s_and_b32 s52, s50, 1
    s_lshr_b32 s56, s50, 1
    s_mul_i32 s57, s52, {TBL_H}
    """)
    srd_off(a, 36, 26, "s57", "s58")
    w_frag_off(a, WA, 48, 49, 6)
    a(f"""
    s_lshl_b32 s57, s52, 14
    v_add_u32 v{WA}, s57, v{WA}
    s_lshl_b32 s57, s56, 13
    s_add_u32 s59, s57, {XST}
    v_add_u32 v40, s59, v{FA}
    s_lshl_b32 s59, s50, 12
    s_add_u32 s59, s59, {BNC}
    v_add_u32 v{FA}, s59, v{FA}
    v_add_u32 v2, s59, v2
    s_add_u32 s57, s57, s54
    v_lshlrev_b32 v3, 4, v1
    v_add_u32 v3, s57, v3
    v_add_u32 v7, 4096, v3
    """)
    for k in range(1, 4): a(f"v_xor_b32 v{WA+k}, {32*k}, v{WA}\nv_xor_b32 v{FA+k}, {64*k}, v{FA}\nv_xor_b32 v{40+k}, {64*k}, v40")
    a(f"""
    s_mov_b32 s44, {NEGL2E}
    s_mov_b32 s45, {NEGL2E}
    s_mov_b32 s46, 0x05040100
    s_mov_b32 s47, 0x07060302
    s_xor_b32 s51, s51, 16
    s_mul_i32 s51, s51, {NPB*256}
    v_lshlrev_b32 v4, 7, v0
    v_add_u32 v4, s51, v4
    v_lshlrev_b32 v5, 8, v1
    s_mov_b32 s30, {N*256}
    s_waitcnt vmcnt(0)
    """)
    st()
    a("s_barrier")
    st()
    if OPT.get('PRE', 1):
        a(f"""
        s_cmp_lt_u32 s50, 4
        s_cbranch_scc0 K1_XPRE_DONE
        v_cmp_gt_u32 vcc, {NPB*2}, v0
        s_mov_b64 exec, vcc
        buffer_load_dword v6, v4, s[28:31], 0 offen
        s_mov_b64 exec, -1
        s_branch K1_PRE_DONE
        K1_XPRE_DONE:
        s_cmp_lt_u32 s53, 8
        s_cbranch_scc0 K1_PRE_DONE
        s_cmp_lt_u32 s50, 6
        s_cselect_b32 s32, s12, s18
        s_cselect_b32 s33, s13, s19
        s_and_b32 s33, s33, 0xffff
        s_lshl_b32 s57, s52, 14
        s_bfe_u32 s59, s53, 0x10002
        s_lshl_b32 s59, s59, 7
        s_add_u32 s57, s57, s59
        buffer_load_dword v6, v5, s[32:35], s57 offen
        K1_PRE_DONE:
        """)
    for t in range(2):
        for ks in range(4): a(f"ds_read_b128 v[{XF[t]+4*ks}:{XF[t]+4*ks+3}], v{40+ks} offset:{t*4096}")
    a(f"v_mov_b32 v4, {TINY}\nv_mov_b32 v5, {TINY}\ns_waitcnt lgkmcnt(0)")
    seq = [(ks, m, ct) for ct in range(4) for ks in range(4) for m in range(2)]
    def rd(s):
        ks, m, ct = seq[s]; b = WF + 4 * (s % 4); o = m * 32768 + ks * 4096
        a(f"ds_read_b64_tr_b16 v[{b}:{b+1}], v{WA+ct} offset:{o}\nds_read_b64_tr_b16 v[{b+2}:{b+3}], v{WA+ct} offset:{o+512}")
    for s in range(3): rd(s)
    for s in range(32):
        if s + 3 < 32: rd(s + 3)
        a(f"s_waitcnt lgkmcnt({2*min(3, 31-s)})")
        ks, m, ct = seq[s]; b = WF + 4 * (s % 4)
        for t in range(2):
            d = acc(t, m, ct); c = "0" if ks == 0 else f"v[{d}:{d+3}]"
            a(f"v_mfma_f32_16x16x32_bf16 v[{d}:{d+3}], v[{b}:{b+3}], v[{XF[t]+4*ks}:{XF[t]+4*ks+3}], {c}")
    st()
    for k in range(1, 4): a(f"v_xor_b32 v{WA+k}, {64*k}, v2")
    for t in range(2):
        for ct in range(4):
            O = XF[t] + 4 * ct
            for rp in (0, 2):
                h = acc(t, 0, ct) + rp; l = acc(t, 1, ct) + rp
                a(pk('fma', h, h, "s[44:45]", 4))
                pack_pair(a, h, l, O + rp, O + rp + 1, "s46", "s47")
            if t == 1 and ct == 0:
                for q in range(4):
                    a(f"s_waitcnt lgkmcnt({3-q})")
                    a(f"buffer_store_dwordx4 v[{XF[0]+4*q}:{XF[0]+4*q+3}], v3, s[36:39], 0 offen offset:{q*1024}{STP}")
            a(f"ds_write_b128 v{FA+ct}, v[{O}:{O+3}]")
        a("s_waitcnt lgkmcnt(0)")
        for q in range(4): a(f"ds_read_b128 v[{XF[t]+4*q}:{XF[t]+4*q+3}], v{2 if q == 0 else WA+q} offset:{q*1024}")
    for q in range(4):
        a(f"s_waitcnt lgkmcnt({3-q})")
        a(f"buffer_store_dwordx4 v[{XF[1]+4*q}:{XF[1]+4*q+3}], v7, s[36:39], 0 offen offset:{q*1024}{STP}")
    st()
    if DIAG:
        a("s_waitcnt vmcnt(0)"); st(); st.dump(0, "s2", "s50", 2, 60)
    a("s_endpgm")
    st = Stamps(a, 65)
    IMG = 1024
    DST = 8; SRC = 16; EA = 24; BK = 40; RK = 48; SN = 56
    a("K1_SORT:")
    a(f"""
    s_and_b32 s52, s2, 7
    s_lshl_b32 s52, s52, 4
    s_lshr_b32 s51, s2, 3
    s_add_u32 s51, s51, s52              ; chunk c
    s_mul_i32 s52, s51, {CH}
    v_lshl_add_u32 v2, v0, 2, s52
    v_add_u32 v3, {HCH}, v2
    s_mov_b32 s53, {E}
    v_cmp_gt_u32 vcc, {HCH//4}, v0
    v_cmp_gt_u32 s[48:49], s53, v2
    v_cmp_gt_u32 s[56:57], s53, v3
    s_and_b64 s[48:49], s[48:49], vcc
    s_and_b64 s[56:57], s[56:57], vcc
    v_lshlrev_b32 v4, 3, v2
    v_lshlrev_b32 v5, 3, v3
    v_lshlrev_b32 v2, 2, v2
    v_lshlrev_b32 v3, 2, v3
    s_sub_u32 s58, s53, s52
    s_min_u32 s58, s58, {CH}
    s_mul_i32 s58, s58, 12
    s_waitcnt lgkmcnt(0)
    """)
    srd(a, 28, "s10", "s11", E * 4)
    a(f"buffer_load_dwordx4 v[{DST}:{DST+3}], v2, s[28:31], 0 offen{NT}\nbuffer_load_dwordx4 v[{DST+4}:{DST+7}], v3, s[28:31], 0 offen{NT}")
    srd(a, 32, "s8", "s9", E * 4)
    a(f"buffer_load_dwordx4 v[{SRC}:{SRC+3}], v2, s[32:35], 0 offen{NT}\nbuffer_load_dwordx4 v[{SRC+4}:{SRC+7}], v3, s[32:35], 0 offen{NT}")
    srd(a, 36, "s6", "s7", E * 8)
    for g in range(2):
        for k in range(2): a(f"buffer_load_dwordx4 v[{EA+8*g+4*k}:{EA+8*g+4*k+3}], v{4+g}, s[36:39], 0 offen offset:{16*k}{NT}")
    a(f"""
    v_mov_b32 v6, 0
    v_lshlrev_b32 v7, 2, v0
    v_cmp_gt_u32 vcc, 128, v0
    s_and_saveexec_b64 s[60:61], vcc
    ds_write_b32 v7, v6
    s_mov_b64 exec, -1
    s_mul_i32 s53, s51, {RECREG}
    s_add_u32 s53, s53, {REC_OFF}
    """)
    srd_off(a, 40, 26, "s53", "s58")
    srd(a, 44, "s26", "s27", SCR_OFF)
    a(f"""
    s_mov_b32 s54, 42800
    s_mov_b32 s55, {NPB}
    v_mov_b32 v5, 12
    v_lshlrev_b32 v6, 3, v1
    s_waitcnt lgkmcnt(0)
    s_barrier
    s_waitcnt vmcnt(6)
    """)
    st()
    for g in range(2):
        a(f"s_mov_b64 exec, s[{48 if g == 0 else 56}:{49 if g == 0 else 57}]")
        for i in range(4 * g, 4 * g + 4):
            a(f"""
            v_mul_u32_u24 v{BK+i}, s54, v{DST+i}
            v_lshrrev_b32 v{BK+i}, 22, v{BK+i}           ; bucket
            v_mul_u32_u24 v{SN+i}, s55, v{BK+i}
            v_lshlrev_b32 v{BK+i}, 2, v{BK+i}
            ds_add_rtn_u32 v{RK+i}, v{BK+i}, v5
            v_sub_u32 v{SN+i}, v{DST+i}, v{SN+i}
            """)
    a("s_mov_b64 exec, -1\ns_waitcnt vmcnt(4)")
    for i in range(8): a(f"v_lshl_or_b32 v{SN+i}, v{SRC+i}, 8, v{SN+i}")
    a("""
    s_waitcnt lgkmcnt(0)
    s_barrier
    ds_read_b64 v[64:65], v6
    s_waitcnt lgkmcnt(0)
    v_add_u32 v67, v64, v65
    v_mov_b32 v68, v67
    """)
    wave_red(a, 68, "add_u32")
    a(f"""
    v_sub_u32 v70, v68, v67
    v_add_u32 v71, v70, v64
    v_add_u32 v72, {IMG}, v70
    v_add_u32 v73, {IMG}, v71
    ds_write_b64 v6, v[72:73] offset:512
    """)
    for g in range(2):
        a(f"s_mov_b64 exec, s[{48 if g == 0 else 56}:{49 if g == 0 else 57}]")
        for i in range(4 * g, 4 * g + 4): a(f"ds_read_b32 v{BK+i}, v{BK+i} offset:512")
    a("s_waitcnt vmcnt(0)")
    for g in range(2):
        a(f"s_mov_b64 exec, s[{48 if g == 0 else 56}:{49 if g == 0 else 57}]")
        for i in range(4 * g, 4 * g + 4):
            a(f"""
            s_waitcnt lgkmcnt({min(15, 7 - i + 2 * i)})
            v_add_u32 v{BK+i}, v{BK+i}, v{RK+i}
            ds_write2_b32 v{BK+i}, v{EA+2*i}, v{EA+2*i+1} offset0:0 offset1:1
            ds_write_b32 v{BK+i}, v{SN+i} offset:8
            """)
    a(f"""
    s_mov_b64 exec, -1
    s_cmp_lg_u32 s50, 7
    s_cbranch_scc1 K1_NOINFO
    v_lshl_or_b32 v70, v64, 16, v70
    v_lshl_or_b32 v71, v65, 16, v71
    s_lshl_b32 s53, s51, 2
    s_add_u32 s53, s53, {OFFS_OFF}
    v_lshlrev_b32 v7, 10, v1
    v_add_u32 v7, s53, v7
    buffer_store_dword v70, v7, s[44:47], 0 offen
    buffer_store_dword v71, v7, s[44:47], 0 offen offset:512
    s_cmp_lg_u32 s51, 0
    s_cbranch_scc1 K1_NOINFO
    v_mov_b32 v70, 0x7f000000
    v_lshlrev_b32 v7, 2, v1
    v_add_u32 v7, {N*256}, v7
    v_add_u32 v71, {TBL_H}, v7
    buffer_store_dword v70, v7, s[44:47], 0 offen
    buffer_store_dword v70, v71, s[44:47], 0 offen
    K1_NOINFO:
    v_lshlrev_b32 v7, 4, v0
    s_waitcnt lgkmcnt(0)
    s_barrier
    """)
    st()
    NCP = (RECREG + K1_BLOCK * 16 - 1) // (K1_BLOCK * 16)
    for i in range(NCP): a(f"ds_read_b128 v[{8+4*i}:{11+4*i}], v7 offset:{IMG + i*K1_BLOCK*16}")
    for i in range(1, NCP): a(f"v_add_u32 v{40+i}, {i*K1_BLOCK*16}, v7")
    for i in range(NCP):
        a(f"s_waitcnt lgkmcnt({NCP-1-i})")
        a(f"buffer_store_dwordx4 v[{8+4*i}:{11+4*i}], v{7 if i == 0 else 40+i}, s[40:43], 0 offen{STP}")
    st()
    if DIAG:
        a("s_waitcnt vmcnt(0)"); st(); st.base = 64; st.n += 1; st.dump(0, "s2", "s50", 2, 60)
    a("K1_END:\ns_endpgm")

def gen_k2(a):
    OSTP = {0: "", 1: " nt", 2: " sc1", 3: " sc0 sc1"}[OPT.get('OSTP', 0)]
    st = Stamps(a, 84)
    S_REC, S_INFO, S_W, S_TBL, S_RAW, S_WC, S_X, S_OUT = 28, 32, 36, 40, 44, 48, 52, 56
    MK = 60
    sH, sB, sW, sL, sRem, sNB, sRM, sT = 76, 77, 78, 79, 80, 81, 82, 83
    sBase, sRST, sMsk, sCnt = 74, 75, 12, 13
    M0_, M1_, PAT, TMP, RMM = 4, 6, 8, 10, 14
    REC = 64
    CA = 92
    XF = 32; WF = 48; ACC = 100
    WCS = EARR + 32768
    vRem, vRecA, vOne = 116, 117, 118
    LD = 32; T = 64; V = 72; D = 80; ND = 84; W = 88; NUM = 92; DEN = 96; CEA = 100; EE = 104; R = 108
    IA, IB, vRow, vS = 116, 117, 118, 119
    vE, vEs, vJ16 = 20, 21, 22
    WC = 24; CC = 26; SEL = 28
    XR = 8; vXo = 12; vCntA = 13; vCe = 14; vTch = 23
    a("agg_kernel:")
    a(f"s_cmp_ge_u32 s2, {K2_GRID}\ns_cbranch_scc1 K2_END")
    probe_stamp(a, 1, "K2")
    st()
    a(f"""
    s_load_dwordx8 s[20:27], s[0:1], 64
    s_load_dwordx16 s[4:19], s[0:1], 0
    v_lshrrev_b32 v2, 6, v0
    v_and_b32 v1, 63, v0
    v_readfirstlane_b32 s{sW}, v2
    s_bfe_u32 s{sH}, s2, 0x10002
    s_lshr_b32 s{sB}, s2, 3
    s_and_b32 s3, s2, 3
    s_lshl_b32 s3, s3, 5
    s_add_u32 s{sB}, s{sB}, s3            ; bucket
    v_lshrrev_b32 v2, 3, v0
    v_lshlrev_b32 v3, 2, v2
    v_lshlrev_b32 v4, 3, v1
    v_lshrrev_b32 v6, 4, v1               ; l>>4
    v_and_b32 v7, 15, v1                  ; l&15
    s_lshl_b32 s3, s{sB}, 9
    s_add_u32 s3, s3, {OFFS_OFF}
    s_waitcnt lgkmcnt(0)
    """)
    srd_off(a, S_INFO, 26, "s3", 512)
    a(f"""
    buffer_load_dword v{vRem}, v3, s[{S_INFO}:{S_INFO+3}], 0 offen
    buffer_load_dwordx2 v[120:121], v4, s[{S_INFO}:{S_INFO+3}], 0 offen
    s_mul_i32 s{sT}, s{sB}, {NPB*256}
    v_xor_b32 v16, v6, v7
    v_lshlrev_b32 v16, 4, v16
    v_lshl_add_u32 v17, v7, 8, v16
    v_lshl_add_u32 v16, v6, 8, v16
    s_and_b32 s3, s{sW}, 1
    s_lshl_b32 s3, s3, 7
    v_xor_b32 v16, s3, v16
    s_lshl_b32 s3, s{sW}, 11
    s_add_u32 s3, s3, s{sT}
    v_add_u32 v16, s3, v16
    v_xor_b32 v18, 64, v16
    """)
    w_lane_off(a, 5, 19, 15)
    a(f"""
    v_xor_b32 v19, 64, v5
    v_and_b32 v15, 7, v0                  ; sub
    v_lshlrev_b32 v{vXo}, 8, v2
    v_lshl_add_u32 v{vXo}, v15, 4, v{vXo}
    s_lshl_b32 s3, s{sH}, 7
    s_add_u32 s{sT}, s{sT}, s3
    v_add_u32 v{vXo}, s{sT}, v{vXo}
    v_lshlrev_b32 v{vJ16}, 4, v7
    v_lshlrev_b32 v{WC}, 3, v7
    v_lshl_add_u32 v{WC}, v6, 1, v{WC}
    s_add_u32 s3, s3, {WCS}
    v_add_u32 v{WC}, s3, v{WC}
    v_lshlrev_b32 v{WC+1}, 4, v1
    """)
    a(f"s_add_u32 s3, s{sB}, 1\ns_mul_i32 s3, s3, {NPB*256}\ns_min_u32 s3, s3, {N*256}")
    srd(a, S_X, "s4", "s5", "s3")
    srd(a, S_WC, "s16", "s17", 1024)
    a(f"""
    s_cmp_lt_u32 s{sW}, 8
    s_cselect_b32 s{S_W}, s12, s18
    s_cselect_b32 s{S_W+1}, s13, s19
    s_and_b32 s{S_W+1}, s{S_W+1}, 0xffff
    s_mov_b32 s{S_W+2}, 32768
    s_mov_b32 s{S_W+3}, 0x20000
    s_mul_i32 s{sT}, s{sH}, {TBL_H}
    """)
    srd_off(a, S_REC, 26, REC_OFF, NC * RECREG)
    srd_off(a, S_TBL, 26, f"s{sT}", (N + 1) * 256)
    if not OPT.get('NOTOUCH'): srd_off(a, S_RAW, 26, f"s{sT}", (N + 1) * 256)
    srd(a, S_OUT, "s22", "s23", N * 256)
    def bulk():
        a(f"""
        s_lshl_b32 s3, s{sW}, 11
        s_add_u32 s3, s3, {EARR}
        s_mov_b32 m0, s3
        s_lshl_b32 s{sT}, s{sH}, 7
        buffer_load_dwordx4 v16, s[{S_X}:{S_X+3}], 0 offen lds
        buffer_load_dwordx4 v18, s[{S_X}:{S_X+3}], 0 offen offset:1024 lds
        s_sub_u32 s3, s3, {EARR-HEAD}
        s_mov_b32 m0, s3
        s_and_b32 s3, s{sW}, 7
        s_lshl_b32 s3, s3, 12
        s_add_u32 s3, s3, s{sT}
        buffer_load_dwordx4 v5, s[{S_W}:{S_W+3}], s3 offen lds
        s_add_u32 s3, s3, 1024
        buffer_load_dwordx4 v19, s[{S_W}:{S_W+3}], s3 offen offset:1024 lds
        """)
        a(f"s_mov_b32 m0, {WCS}\ns_nop 0\nbuffer_load_dwordx4 v{WC+1}, s[{S_WC}:{S_WC+3}], 0 offen lds")
    a(f"""
    v_mov_b32 v68, 0
    v_mov_b32 v69, 0
    v_mov_b32 v70, 0
    v_mov_b32 v71, 0
    v_mov_b32 v72, 1.0
    v_mov_b32 v73, 1.0
    v_mov_b32 v74, 1.0
    v_mov_b32 v75, 1.0
    v_lshlrev_b32 v3, 4, v0
    v_add_u32 v4, {CNT}, v3
    v_add_u32 v3, {NPB*RST+512}, v3
    s_mov_b32 s22, {EPSP}
    s_mov_b32 s23, {EPSP}
    v_subrev_u32 v76, {(ZROW+512-CNT)//16}, v0
    v_mov_b32 v77, s22
    v_cmp_gt_u32 vcc, 16, v76
    v_cndmask_b32 v68, v68, v77, vcc
    v_cndmask_b32 v69, v69, v77, vcc
    v_cndmask_b32 v70, v70, v77, vcc
    v_cndmask_b32 v71, v71, v77, vcc
    v_cmp_gt_u32 vcc, {(K2_LDS-CNT)//16}, v0
    s_and_saveexec_b64 s[{MK}:{MK+1}], vcc
    ds_write_b128 v4, v[68:71]
    v_cmp_gt_u32 vcc, 16, v0
    s_and_b64 exec, exec, vcc
    ds_write_b128 v3, v[72:75]
    s_mov_b64 exec, -1
    s_mov_b32 s{sBase}, 0
    s_mov_b32 s{sRST}, {RST}
    s_mov_b32 s{sMsk}, 0xffffff00
    s_mov_b32 s{sCnt}, {CNT}
    s_mov_b32 s3, {RECREG}
    v_mul_u32_u24 v{vRecA}, s3, v2
    v_lshl_add_u32 v{XR}, s{sH}, 3, v15
    v_mul_u32_u24 v15, 12, v15            ; sub*12
    v_add_u32 v{vRecA}, v{vRecA}, v15
    v_mov_b32 v{vOne}, 4
    v_lshlrev_b32 v{vCntA}, 3, v1
    v_add_u32 v{vCntA}, {CNT}, v{vCntA}
    """)
    bulk()
    a(f"s_waitcnt vmcnt(5)")
    st()
    a(f"""
    v_and_b32 v3, 0xffff, v{vRem}
    v_lshrrev_b32 v{vRem}, 16, v{vRem}
    v_add_u32 v{vRecA}, v3, v{vRecA}
    v_sub_u32 v{vRem}, v{vRem}, v15
    """)
    def rec_masks(n):
        for k in range(n):
            if 96 * k <= 64: a(f"v_cmp_lt_i32 s[{MK+2*k}:{MK+2*k+1}], {96*k}, v{vRem}")
            else: a(f"v_cmp_lt_i32 vcc, {96*k}, v{vRem}\ns_mov_b64 s[{MK+2*k}:{MK+2*k+1}], vcc")
    def rec_issue(n, lbl):
        for k in range(n):
            a(f"s_mov_b64 exec, s[{MK+2*k}:{MK+2*k+1}]\ns_cbranch_execz {lbl}\nbuffer_load_dwordx3 v[{REC+4*k}:{REC+4*k+2}], v{vRecA}, s[{S_REC}:{S_REC+3}], 0 offen offset:{96*k}")
        a(f"{lbl}:\ns_mov_b64 exec, -1")
    def rec_loads(n): rec_masks(n); rec_issue(n, "K2_RI_SLOW")
    rec_masks(NR)
    a(f"""
    v_lshrrev_b32 v120, 16, v120
    v_lshrrev_b32 v121, 16, v121
    v_max_u32 v122, v120, v121
    v_add_u32 v3, v120, v121
    """)
    wave_red(a, 3, "add_u32")
    a(f"""
    v_cmp_lt_u32 vcc, {NR*96}, v122
    v_readlane_b32 s3, v3, 63
    s_mov_b32 s{sNB}, 1
    s_cmp_gt_u32 s3, {FASTMAX*12}
    s_cbranch_scc1 K2_SLOWMODE
    s_cbranch_vccz K2_MODE_DONE
    K2_SLOWMODE:
    """)
    wave_red(a, 122, "max_u32")
    a(f"""
    v_readlane_b32 s3, v122, 63
    s_add_u32 s3, s3, 287
    s_mul_i32 s3, s3, 14564
    s_lshr_b32 s{sNB}, s3, 22
    """)
    for k in range(3, NR): a(f"s_mov_b64 s[{MK+2*k}:{MK+2*k+1}], 0")
    a(f"""
    K2_MODE_DONE:
    v_and_b32 v3, 15, v2
    v_xor_b32 v{XR}, v{XR}, v3
    v_lshlrev_b32 v2, 8, v2
    v_lshl_add_u32 v{XR}, v{XR}, 4, v2
    v_add_u32 v{XR}, {EARR}, v{XR}
    s_lshr_b32 s3, s{sW}, 1
    s_lshl_b32 s{sT}, s3, 12
    s_add_u32 s{sT}, s{sT}, {EARR}
    v_add_u32 v120, s{sT}, v17
    """)
    for k in range(1, 4): a(f"v_xor_b32 v{120+k}, {64*k}, v120")
    w_frag_off(a, 16, 2, 3, 6)
    a(f"""
    s_and_b32 s{sT}, s{sW}, 1
    s_lshl_b32 s{sT}, s{sT}, 6
    v_xor_b32 v16, s{sT}, v16
    v_add_u32 v16, {HEAD}, v16
    v_xor_b32 v17, 32, v16
    s_lshl_b32 s3, s3, 4
    v_add_u32 v2, s3, v7                  ; node
    v_cmp_gt_u32 vcc, {NPB}, v2
    s_mov_b64 s[{TMP}:{TMP+1}], vcc
    v_mul_u32_u24 v{vCe}, s{sRST}, v2
    v_lshl_add_u32 v{vCe}, v6, 4, v{vCe}
    s_lshl_b32 s{sT}, s{sT}, 1
    v_add_u32 v{vCe}, s{sT}, v{vCe}
    s_mov_b32 s16, {NEGL2E}
    s_mov_b32 s17, {NEGL2E}
    s_mov_b32 s18, 0x05040100
    s_mov_b32 s19, 0x07060302
    s_mov_b64 s[{RMM}:{RMM+1}], 0
    v_mov_b32 v{CC}, {CBITS}
    v_mov_b32 v{CC+1}, {CBITS}
    v_bfe_u32 v3, v1, 2, 2                ; (l>>2)&3
    v_and_b32 v18, 3, v1
    v_mov_b32 v19, 0x3f80
    v_cmp_eq_u32 vcc, v6, v3
    v_cmp_eq_u32 s[{M0_}:{M0_+1}], 0, v18
    v_cmp_eq_u32 s[{M1_}:{M1_+1}], 1, v18
    v_cndmask_b32 v19, 0, v19, vcc
    v_cmp_eq_u32 s[{PAT}:{PAT+1}], 2, v18
    v_cmp_eq_u32 vcc, 3, v18
    v_cndmask_b32 v{SEL}, 0, v19, s[{M0_}:{M0_+1}]
    v_cndmask_b32 v{SEL+1}, 0, v19, s[{M1_}:{M1_+1}]
    v_cndmask_b32 v{SEL+2}, 0, v19, s[{PAT}:{PAT+1}]
    v_cndmask_b32 v{SEL+3}, 0, v19, vcc
    v_cmp_eq_u32 s[20:21], v6, v18
    s_lshl_b32 s3, s{sW}, 2
    v_add_u32 v{vS}, s3, v6
    v_add_u32 v{vE}, s3, v3
    v_mov_b32 v2, 64
    v_cndmask_b32 v{vEs}, 0, v2, s[20:21]
    v_mov_b32 v2, {TINY}
    v_mov_b32 v3, {TINY}
    v_mov_b32 v4, {f2u(-62.0)}
    v_mov_b32 v5, {f2u(-62.0)}
    """)
    if not OPT.get('NOTOUCH'):
        a(f"""
        s_lshr_b32 s3, s2, 3
        s_mul_i32 s3, s3, 782
        v_add_u32 v{vTch}, s3, v0
        v_lshlrev_b32 v{vTch}, 7, v{vTch}
        v_cmp_gt_u32 vcc, {OPT.get('TOUCHN', 782)}, v0
        v_mov_b32 v18, -1
        v_cndmask_b32 v{vTch}, v18, v{vTch}, vcc
        """)
    a(f"""
    s_waitcnt vmcnt(0) lgkmcnt(0)
    s_barrier
    """)
    st()
    def gemm(tag):
        a(f"ds_read_b128 v[{XR}:{XR+3}], v{XR}")
        for k in range(4): a(f"ds_read_u16 v{124+k}, v{WC} offset:{256*k}")
        a(f"s_cmp_ge_u32 s{sW}, 14\ns_cbranch_scc1 K2_NOGEMM{tag}")
        for ks in range(4): a(f"ds_read_b128 v[{XF+4*ks}:{XF+4*ks+3}], v{120+ks}")
        seq = [(ks, m, c) for ks in range(4) for m in range(2) for c in range(2)]
        def rd(s):
            ks, m, c = seq[s]; b = WF + 4 * (s % 4); o = m * 16384 + ks * 4096
            a(f"ds_read_b64_tr_b16 v[{b}:{b+1}], v{16+c} offset:{o}\nds_read_b64_tr_b16 v[{b+2}:{b+3}], v{16+c} offset:{o+512}")
        for s in range(3): rd(s)
        for s in range(16):
            if s + 3 < 16: rd(s + 3)
            a(f"s_waitcnt lgkmcnt({2*min(3, 15-s)})")
            ks, m, c = seq[s]; b = WF + 4 * (s % 4); d = ACC + (m * 2 + c) * 4
            a(f"v_mfma_f32_16x16x32_bf16 v[{d}:{d+3}], v[{b}:{b+3}], v[{XF+4*ks}:{XF+4*ks+3}], {'0' if ks == 0 else 'v[%d:%d]' % (d, d+3)}")
        a(f"s_mov_b32 s3, {f2u(60.0)}\nv_mov_b32 v18, {FLAG}")
        for i in range(4): a(pk('fma', ACC + 2 * i, ACC + 2 * i, "s[16:17]", 2))
        for i in range(4): a(pk('add', XF + 2 * i, ACC + 2 * i, 4))
        for i in range(8): a(f"v_exp_f32 v{XF+i}, v{XF+i}")
        for i in range(4): a(f"v_cvt_pk_bf16_f32 v{ACC+8+2*i}, v{ACC+8+2*i}, v{ACC+9+2*i}")
        a(f"""
        v_max3_f32 v2, |v{ACC}|, |v{ACC+1}|, |v{ACC+2}|
        v_max3_f32 v3, |v{ACC+3}|, |v{ACC+4}|, |v{ACC+5}|
        v_max3_f32 v2, v2, |v{ACC+6}|, |v{ACC+7}|
        v_max_f32 v2, v2, v3
        v_cmp_lt_f32 vcc, s3, v2
        s_and_b64 s[{RMM}:{RMM+1}], vcc, s[{TMP}:{TMP+1}]
        """)
        for i in range(4): pack_pair(a, XF + 2 * i, ACC + 8 + 2 * i, WF + 2 * i, WF + 2 * i + 1, "s18", "s19", cvt=False)
        a(f"""
        s_mov_b64 exec, s[{TMP}:{TMP+1}]
        ds_write_b128 v{vCe}, v[{WF}:{WF+3}] offset:512
        ds_write_b128 v{vCe}, v[{WF+4}:{WF+7}] offset:576
        s_mov_b64 exec, s[{RMM}:{RMM+1}]
        ds_write_b32 v18, v{vOne}
        s_mov_b64 exec, -1
        K2_NOGEMM{tag}:
        s_waitcnt lgkmcnt(0)
        """)
        for k in range(4): a(f"v_lshlrev_b32 v{124+k}, 16, v{124+k}\nv_mul_f32 v{124+k}, s16, v{124+k}")
        a(f"v_cvt_pk_bf16_f32 v{WC}, v124, v125\nv_cvt_pk_bf16_f32 v{WC+1}, v126, v127")
    a(f"s_cmp_lt_u32 s{sW}, {OPT.get('GFIRST', 8)}\ns_cbranch_scc1 K2_GEMM_FIRST")
    rec_issue(NR, "K2_RI_A")
    gemm("A")
    a("s_branch K2_BOTH_DONE\nK2_GEMM_FIRST:")
    gemm("B")
    rec_issue(NR, "K2_RI_B")
    a("K2_BOTH_DONE:")
    st()
    a("s_waitcnt vmcnt(0)")
    st()
    if not OPT.get('NOTOUCH'): a(f"buffer_load_dword v{vTch}, v{vTch}, s[{S_RAW}:{S_RAW+3}], 0 offen")
    a("K2_BATCH:")
    for k in range(NR):
        a(f"""
        s_mov_b64 exec, s[{MK+2*k}:{MK+2*k+1}]
        s_cbranch_execz K2_AT_DONE
        v_and_b32 v{CA+k}, 0x7f, v{REC+4*k+2}
        v_lshl_add_u32 v{CA+k}, v{CA+k}, 2, s{sCnt}
        ds_add_rtn_u32 v{REC+4*k+3}, v{CA+k}, v{vOne}
        """)
    a(f"""
    K2_AT_DONE:
    s_mov_b64 exec, -1
    v_mov_b32 v16, {FLAG}
    s_waitcnt lgkmcnt(0)
    s_barrier
    """)
    st()
    a(f"""
    ds_read_b64 v[2:3], v{vCntA}
    ds_read_b32 v16, v16
    s_waitcnt lgkmcnt(0)
    v_add_u32 v4, 4, v2
    v_add_u32 v5, 4, v3
    v_and_b32 v4, -8, v4
    v_and_b32 v5, -8, v5
    v_add_u32 v18, v4, v5
    v_mov_b32 v19, v18
    v_readfirstlane_b32 s{sRM}, v16
    """)
    wave_red(a, 19, "add_u32")
    a(f"""
    v_sub_u32 v16, v19, v18
    v_readlane_b32 s{sT}, v19, 63
    v_add_u32 v16, {SARR}, v16
    v_add_u32 v17, v16, v4
    ds_write_b64 v{vCntA}, v[16:17] offset:512
    s_add_u32 s{sL}, s{sT}, 511
    s_lshr_b32 s{sL}, s{sL}, 9
    """)
    if OPT.get('FINE'): st()
    for k in range(NR):
        a(f"s_mov_b64 exec, s[{MK+2*k}:{MK+2*k+1}]\ns_cbranch_execz K2_RD_DONE\nds_read_b32 v{CA+k}, v{CA+k} offset:512")
    a(f"""
    K2_RD_DONE:
    s_mov_b64 exec, -1
    s_lshl_b32 s3, s{sL}, 3               ; L*8
    v_lshlrev_b32 v{vRow}, 9, v{vS}
    v_mul_u32_u24 v{vS}, s3, v{vS}
    v_mul_u32_u24 v{vE}, s3, v{vE}
    v_add_u32 v{vS}, {SARR}, v{vS}
    v_lshlrev_b32 v{vE}, 1, v{vE}
    v_add_u32 v{vE}, {EARR}, v{vE}
    v_mov_b32 v120, {ZROW}
    v_cndmask_b32 v{vE}, v120, v{vE}, s[20:21]
    v_lshl_add_u32 v99, v7, 3, v{vS}
    v_add_u32 v{vRow}, v{vRow}, v{vJ16}
    v_add_u32 v{vRow}, {HEAD}, v{vRow}
    s_mov_b32 s3, {(EARR - 2*SARR) & 0xffffffff}
    v_mov_b32 v120, 0
    v_mov_b32 v121, 0
    v_mov_b32 v122, {N*256 + NPB}
    s_sub_u32 s{sRem}, s{sW}, 1
    s_cmp_gt_u32 s{sRem}, 2
    s_cbranch_scc1 K2_NOAUX
    s_cmp_eq_u32 s{sW}, 1
    s_cbranch_scc1 K2_AUXPAD
    s_sub_u32 s{sRem}, s{sW}, 2
    s_lshl_b32 s{sRem}, s{sRem}, 8
    s_add_u32 s{sRem}, s{sRem}, s{sT}
    s_add_u32 s{sRem}, s{sRem}, {SARR}
    v_lshl_add_u32 v123, v1, 2, s{sRem}
    ds_write_b32 v123, v122
    v_lshl_add_u32 v123, v123, 1, s3
    ds_write_b64 v123, v[120:121]
    s_branch K2_NOAUX
    K2_AUXPAD:
    """)
    for i in range(2):
        a(f"""
        v_and_b32 v123, 4, v{2+i}
        v_cmp_ne_u32 vcc, 0, v123
        v_add_u32 v123, v{16+i}, v{2+i}
        s_mov_b64 exec, vcc
        ds_write_b32 v123, v122
        v_lshl_add_u32 v123, v123, 1, s3
        ds_write_b64 v123, v[120:121]
        s_mov_b64 exec, -1
        """)
    a(f"""
    K2_NOAUX:
    s_waitcnt lgkmcnt(0)
    """)
    if OPT.get('FINE'): st()
    for k in range(NR):
        a(f"""
        s_mov_b64 exec, s[{MK+2*k}:{MK+2*k+1}]
        s_cbranch_execz K2_SC_DONE
        v_add_u32 v{CA+k}, v{CA+k}, v{REC+4*k+3}
        ds_write_b32 v{CA+k}, v{REC+4*k+2}
        """)
    a(f"""
    K2_SC_DONE:
    s_mov_b64 exec, -1
    s_cmp_lg_u32 s{sW}, 0
    s_cbranch_scc1 K2_NODESC
    s_max_u32 s{sRem}, s{sL}, 1
    v_cvt_f32_u32 v120, s{sRem}
    v_rcp_f32 v120, v120
    v_subrev_u32 v16, {SARR}, v16
    v_subrev_u32 v17, {SARR}, v17
    v_mul_f32 v120, {f2u(2.0**20)}, v120
    v_lshrrev_b32 v16, 3, v16
    v_lshrrev_b32 v17, 3, v17
    v_cvt_u32_f32 v120, v120
    v_lshrrev_b32 v19, 3, v19
    v_add_u32 v120, 2, v120
    s_sub_u32 s{sRem}, s{sRem}, 1
    """)
    for i, q in enumerate((16, 17, 19)):
        a(f"v_add_u32 v{121+i}, s{sRem}, v{q}\nv_mul_lo_u32 v{121+i}, v{121+i}, v120\nv_lshrrev_b32 v{121+i}, 20, v{121+i}")
    a(f"v_lshlrev_b32 v18, 1, v1\nv_mul_u32_u24 v18, s{sRST}, v18\nv_mov_b32 v120, {EPSR}")
    for i, (q0, q1) in enumerate(((16, 17), (17, 19))):
        a(f"""
        v_mul_u32_u24 v4, s{sL}, v{121+i}
        v_cmp_ne_u32 vcc, v4, v{q0}
        v_cmp_ne_u32 s[{TMP}:{TMP+1}], v{q0}, v{q1}
        s_and_b64 vcc, vcc, s[{TMP}:{TMP+1}]
        v_sub_u32 v5, v{122+i}, v{121+i}
        v_cndmask_b32 v4, v120, v18, vcc
        v_lshl_or_b32 v4, v{121+i}, 18, v4
        v_lshl_or_b32 v{2+i}, v5, 25, v4
        v_add_u32 v18, {RST}, v18
        """)
    a(f"""
    ds_write_b64 v{vCntA}, v[2:3] offset:1024
    K2_NODESC:
    s_cmp_eq_u32 s{sRM}, 4
    s_cbranch_scc0 K2_NORM
    s_cmp_ge_u32 s{sW}, 14
    s_cbranch_scc1 K2_NORM
    """)
    for i in range(4): pack_pair(a, ACC + 2 * i, ACC + 8 + 2 * i, WF + 2 * i, WF + 2 * i + 1, "s18", "s19", cvt=False)
    a(f"""
    s_lshr_b32 s3, s{sW}, 1
    s_lshl_b32 s3, s3, 4
    v_add_u32 v2, s3, v7
    v_cmp_gt_u32 vcc, {NPB}, v2
    s_mov_b64 exec, vcc
    ds_write_b128 v{vCe}, v[{WF}:{WF+3}] offset:512
    ds_write_b128 v{vCe}, v[{WF+4}:{WF+7}] offset:576
    s_mov_b64 exec, -1
    K2_NORM:
    """)
    a(f"""
    s_mov_b32 s{PAT}, 0x00010001
    s_mov_b32 s{PAT+1}, 0x00010001
    s_mov_b32 s{S_TBL+2}, {(N+1)*256}
    s_waitcnt lgkmcnt(0)
    s_barrier
    """)
    st()
    a(f"ds_read_b64 v[2:3], v{vS}")
    for p in range(1, 4): a(f"ds_read_b64 v[{R+2*p}:{R+2*p+1}], v{vS} offset:{8*p}")
    a(f"""
    ds_read2_b32 v[16:17], v99 offset0:0 offset1:2
    ds_read2_b32 v[18:19], v99 offset0:32 offset1:34
    ds_read_b64 v[{R}:{R+1}], v{vS} offset:32
    s_waitcnt lgkmcnt(3)
    """)
    def first_gathers(ps):
        for p in ps:
            s0 = 2 if p == 0 else R + 2 * p
            a(f"""
            v_and_or_b32 v{120+2*p}, v{s0}, s{sMsk}, v{vJ16}
            v_and_or_b32 v{121+2*p}, v{s0+1}, s{sMsk}, v{vJ16}
            buffer_load_dwordx4 v[{LD+8*p}:{LD+8*p+3}], v{120+2*p}, s[{S_TBL}:{S_TBL+3}], 0 offen
            buffer_load_dwordx4 v[{LD+8*p+4}:{LD+8*p+7}], v{121+2*p}, s[{S_TBL}:{S_TBL+3}], 0 offen
            """)
    NG1 = OPT.get('NG1', 1)
    first_gathers(range(NG1))
    a(f"""
    v_and_b32 v3, 0x7f, v2
    v_mad_u32_u24 v3, v3, s{sRST}, v{vJ16}
    ds_read_b128 v[{CEA}:{CEA+3}], v3 offset:512
    s_mov_b32 s3, {(EARR - 2*SARR) & 0xffffffff}
    """)
    for k in range(NR):
        a(f"""
        s_mov_b64 exec, s[{MK+2*k}:{MK+2*k+1}]
        s_cbranch_execz K2_SE_DONE
        v_lshl_add_u32 v{CA+k}, v{CA+k}, 1, s3
        ds_write_b64 v{CA+k}, v[{REC+4*k}:{REC+4*k+1}]
        """)
    a(f"""
    K2_SE_DONE:
    s_mov_b64 exec, -1
    """)
    for i in range(8): a(f"v_mov_b32 v{NUM+i}, 0")
    a(f"""
    s_waitcnt lgkmcnt(0)
    s_barrier
    ds_read_b128 v[{EE}:{EE+3}], v{vE}
    s_cmp_eq_u32 s{sL}, 0
    s_cbranch_scc1 K2_LOOP_DONE
    """)
    st()
    first_gathers(range(NG1, 4))
    a(f"""
    v_xor_b32 v16, v16, v17
    v_xor_b32 v18, v18, v19
    v_and_b32 v16, 0x7f, v16
    v_and_b32 v18, 0x7f, v18
    v_cmp_ne_u32 s[{M0_}:{M0_+1}], 0, v16
    v_cmp_ne_u32 s[{M1_}:{M1_+1}], 0, v18
    s_sub_u32 s{sRem}, s{sL}, 1
    s_and_b32 s{sT}, s{sRem}, 15
    s_lshl_b64 s[{TMP}:{TMP+1}], s[{PAT}:{PAT+1}], s{sT}
    s_cmp_lt_u32 s{sRem}, 16
    s_cbranch_scc1 K2_LAST_LO
    s_or_b64 s[{M1_}:{M1_+1}], s[{M1_}:{M1_+1}], s[{TMP}:{TMP+1}]
    s_branch K2_LAST_DONE
    K2_LAST_LO:
    s_or_b64 s[{M0_}:{M0_+1}], s[{M0_}:{M0_+1}], s[{TMP}:{TMP+1}]
    K2_LAST_DONE:
    s_sub_u32 s{sT}, s{sL}, 17
    s_cmp_gt_u32 s{sRem}, 3
    s_cselect_b32 s{S_TBL+2}, {(N+1)*256}, 0
    s_waitcnt vmcnt(6) lgkmcnt(0)
    v_mfma_f32_16x16x16_bf16 v[{T}:{T+3}], v[{EE}:{EE+1}], v[{WC}:{WC+1}], v[{LD}:{LD+3}]
    v_mfma_f32_16x16x16_bf16 v[{T+4}:{T+7}], v[{EE+2}:{EE+3}], v[{WC}:{WC+1}], v[{LD+4}:{LD+7}]
    s_nop 1
    ds_read_b128 v[{EE}:{EE+3}], v{vE} offset:16
    s_nop 4
    """)
    st()
    if OPT.get('FAIR', 1): a("s_setprio 3")
    a(f"s_cmp_lg_u32 s{sRM}, 0\ns_cbranch_scc1 K2_LOOP_1")
    for rm in range(2):
        a(f".p2align 6\nK2_LOOP_{rm}:") if rm == 0 else a(f"K2_LOOP_{rm}:")
        for u in range(4):
            la = LD + 8 * u; lb = la + 4; na = LD + 8 * ((u + 1) % 4); nb = na + 4
            ru = R + 2 * u; rn = R + 2 * ((u + 1) % 4)
            if rm:
                a("s_waitcnt lgkmcnt(0)")
                for i in range(4): a(pk('add', T + 2 * i, T + 2 * i, CEA + (2 * i) % 4))
            a(f"""
            v_mfma_f32_16x16x32_bf16 v[{V}:{V+3}], v[{SEL}:{SEL+3}], v[{la}:{la+3}], 0
            v_exp_f32 v{T}, v{T}
            v_exp_f32 v{T+1}, v{T+1}
            v_mfma_f32_16x16x32_bf16 v[{V+4}:{V+7}], v[{SEL}:{SEL+3}], v[{lb}:{lb+3}], 0
            """)
            for r in range(2, 8): a(f"v_exp_f32 v{T+r}, v{T+r}")
            a(f"""
            s_waitcnt lgkmcnt(0)
            v_and_or_b32 v{IA}, v{ru}, s{sMsk}, v{vJ16}
            v_and_or_b32 v{IB}, v{ru+1}, s{sMsk}, v{vJ16}
            buffer_load_dwordx4 v[{la}:{la+3}], v{IA}, s[{S_TBL}:{S_TBL+3}], 0 offen
            buffer_load_dwordx4 v[{lb}:{lb+3}], v{IB}, s[{S_TBL}:{S_TBL+3}], 0 offen
            """)
            for i in range(4):
                a(pk('fma', T + 2 * i, T + 2 * i, CC if rm else CEA + (2 * i) % 4, CC, mod=' clamp'))
            for i in (0, 2): a(pk('mul', D + i, T + i, T + 4 + i))
            for i in (0, 2): a(pk('add', ND + i, T + i, T + 4 + i))
            for i in (0, 2): a(pk('mul', W + i, V + i, T + 4 + i))
            for i in (0, 2): a(pk('fma', W + i, V + 4 + i, T + i, W + i))
            a(f"""
            s_waitcnt vmcnt(6)
            v_mfma_f32_16x16x16_bf16 v[{T}:{T+3}], v[{EE}:{EE+1}], v[{WC}:{WC+1}], v[{na}:{na+3}]
            v_rcp_f32 v{D}, v{D}
            v_rcp_f32 v{D+1}, v{D+1}
            v_mfma_f32_16x16x16_bf16 v[{T+4}:{T+7}], v[{EE+2}:{EE+3}], v[{WC}:{WC+1}], v[{nb}:{nb+3}]
            v_rcp_f32 v{D+2}, v{D+2}
            v_rcp_f32 v{D+3}, v{D+3}
            s_and_b64 s[{TMP}:{TMP+1}], s[{M0_}:{M0_+1}], s[{PAT}:{PAT+1}]
            """)
            for i in (0, 2): a(pk('fma', DEN + i, ND + i, D + i, DEN + i))
            for i in (0, 2): a(pk('fma', NUM + i, W + i, D + i, NUM + i))
            a(f"""
            s_cbranch_scc1 K2_FL_{rm}_{u}
            K2_BK_{rm}_{u}:
            ds_read_b64 v[{rn}:{rn+1}], v{vS} offset:{8*(u+5)}
            ds_read_b128 v[{EE}:{EE+3}], v{vE} offset:{16*(u+2)}
            s_lshr_b64 s[{M0_}:{M0_+1}], s[{M0_}:{M0_+1}], 1
            s_sub_u32 s{sRem}, s{sRem}, 1
            s_cmp_gt_u32 s{sRem}, 3
            s_cselect_b32 s{S_TBL+2}, {(N+1)*256}, 0
            """)
            if u == 3:
                a(f"""
                v_add_u32 v{vS}, 32, v{vS}
                v_add_u32 v{vE}, v{vEs}, v{vE}
                s_cmp_eq_u32 s{sRem}, s{sT}
                s_cselect_b64 s[{M0_}:{M0_+1}], s[{M1_}:{M1_+1}], s[{M0_}:{M0_+1}]
                """)
                if OPT.get('FAIR', 1):
                    a(f"""
                    s_cmp_ge_u32 s{sRem}, 16
                    s_cbranch_scc1 K2_LOOP_{rm}
                    s_setprio 2
                    s_cmp_ge_u32 s{sRem}, 8
                    s_cbranch_scc1 K2_LOOP_{rm}
                    s_setprio 1
                    s_cmp_ge_u32 s{sRem}, 4
                    s_cbranch_scc1 K2_LOOP_{rm}
                    s_setprio 0
                    """)
                a(f"s_branch K2_LOOP_{rm}")
        for u in range(4):
            rn = R + 2 * ((u + 1) % 4)
            a(f"""
            K2_FL_{rm}_{u}:
            s_mul_i32 exec_lo, s{TMP}, 0xffff
            s_mul_i32 exec_hi, s{TMP+1}, 0xffff
            ds_write_b128 v{vRow}, v[{NUM}:{NUM+3}]
            ds_write_b128 v{vRow}, v[{DEN}:{DEN+3}] offset:256
            v_and_b32 v{IA}, 0x7f, v{rn}
            v_mad_u32_u24 v{vRow}, v{IA}, s{sRST}, v{vJ16}
            s_cmp_lg_u32 s{sRem}, 0
            ds_read_b128 v[{CEA}:{CEA+3}], v{vRow} offset:512
            """)
            for i in range(2): a(f"v_pk_mov_b32 v[{NUM+2*i}:{NUM+2*i+1}], 0, 0")
            for i in range(2): a(f"v_pk_mov_b32 v[{DEN+2*i}:{DEN+2*i+1}], s[22:23], s[22:23]")
            a(f"""
            s_mov_b64 exec, -1
            s_cbranch_scc1 K2_BK_{rm}_{u}
            s_branch K2_LOOP_DONE
            """)
    a("K2_LOOP_DONE:\ns_setprio 0")
    st()
    a(f"""
    v_lshrrev_b32 v2, 3, v0
    v_lshlrev_b32 v3, 2, v2
    v_add_u32 v3, {DESC}, v3
    v_and_b32 v4, 7, v0
    v_lshlrev_b32 v4, 5, v4               ; 32*m
    v_mad_u32_u24 v2, v2, s{sRST}, v4
    s_waitcnt vmcnt(0)
    ds_read_b32 v3, v3
    ds_read_b128 v[48:51], v2 offset:512
    ds_read_b128 v[52:55], v2 offset:528
    v_add_u32 v5, {ZROW}, v4
    v_cmp_gt_u32 s[{TMP}:{TMP+1}], s{sRST}, v0
    """)
    for i in range(4):
        a(f"v_lshlrev_b32 v{56+2*i}, 16, v{XR+i}\nv_and_b32 v{57+2*i}, 0xffff0000, v{XR+i}")
    a(f"""
    s_waitcnt lgkmcnt(2)
    v_and_b32 v16, 0x3ffff, v3
    v_add_u32 v16, v16, v4
    v_bfe_u32 v17, v3, 18, 7
    v_lshl_add_u32 v17, v17, 9, v4
    v_add_u32 v17, {HEAD}, v17
    v_lshrrev_b32 v3, 25, v3
    v_cmp_ne_u32 vcc, 0, v3
    s_waitcnt lgkmcnt(0)
    """)
    for i in range(8): a(f"v_lshlrev_b32 v{48+i}, 16, v{48+i}")
    a("v_cndmask_b32 v5, v5, v17, vcc")
    for i in range(4): a(pk('add', 48 + 2 * i, 48 + 2 * i, 56 + 2 * i))
    a("s_barrier")
    st()
    a(f"""
    s_mov_b64 exec, s[{TMP}:{TMP+1}]
    ds_read_b128 v[40:43], v16 offset:256
    ds_read_b128 v[72:75], v5 offset:256
    ds_read_b128 v[44:47], v16 offset:272
    ds_read_b128 v[76:79], v5 offset:272
    ds_read_b128 v[32:35], v16
    ds_read_b128 v[64:67], v5
    ds_read_b128 v[36:39], v16 offset:16
    ds_read_b128 v[68:71], v5 offset:16
    v_cmp_lt_u32 vcc, 1, v3
    s_waitcnt lgkmcnt(0)
    """)
    for i in range(8): a(pk('add', 32 + 2 * i, 32 + 2 * i, 64 + 2 * i))
    a(f"""
    s_cbranch_vccz K2_HEADS_DONE
    K2_MORE_HEADS:
    s_mov_b64 exec, vcc
    v_add_u32 v17, 512, v17
    v_subrev_u32 v3, 1, v3
    ds_read_b128 v[64:67], v17
    ds_read_b128 v[68:71], v17 offset:16
    ds_read_b128 v[72:75], v17 offset:256
    ds_read_b128 v[76:79], v17 offset:272
    v_cmp_lt_u32 vcc, 1, v3
    s_waitcnt lgkmcnt(0)
    """)
    for i in range(8): a(pk('add', 32 + 2 * i, 32 + 2 * i, 64 + 2 * i))
    a(f"""
    s_cbranch_vccnz K2_MORE_HEADS
    s_mov_b64 exec, s[{TMP}:{TMP+1}]
    K2_HEADS_DONE:
    s_sub_u32 s{sNB}, s{sNB}, 1
    s_or_b32 s3, s{sNB}, s{sBase}
    s_cbranch_scc0 K2_FINAL
    s_lshl_b32 s3, s2, 16
    s_add_u32 s3, s3, {SCR_OFF}
    """)
    srd_off(a, S_W, 26, "s3", 65536)
    a(f"""
    v_lshlrev_b32 v2, 6, v0
    s_cmp_eq_u32 s{sBase}, 0
    s_cbranch_scc1 K2_NOLOAD
    """)
    for i in range(4): a(f"buffer_load_dwordx4 v[{64+4*i}:{67+4*i}], v2, s[{S_W}:{S_W+3}], 0 offen offset:{16*i}")
    a("s_waitcnt vmcnt(0)")
    for i in range(8): a(pk('add', 32 + 2 * i, 32 + 2 * i, 64 + 2 * i))
    a(f"""
    K2_NOLOAD:
    s_cmp_eq_u32 s{sNB}, 0
    s_cbranch_scc1 K2_FINAL
    """)
    for i in range(4): a(pk('add', 40 + 2 * i, 40 + 2 * i, "s[22:23]", mod=" neg_lo:[0,1] neg_hi:[0,1]"))
    for i in range(4): a(f"buffer_store_dwordx4 v[{32+4*i}:{35+4*i}], v2, s[{S_W}:{S_W+3}], 0 offen offset:{16*i}")
    a(f"""
    s_mov_b64 exec, -1
    s_waitcnt vmcnt(0) lgkmcnt(0)
    s_barrier
    v_lshrrev_b32 v2, 3, v0
    v_lshlrev_b32 v3, 2, v2
    buffer_load_dword v{vRem}, v3, s[{S_INFO}:{S_INFO+3}], 0 offen
    s_add_u32 s{sBase}, s{sBase}, 288
    s_mov_b32 s3, {RECREG}
    v_mul_u32_u24 v{vRecA}, s3, v2
    v_and_b32 v15, 7, v0
    v_mul_u32_u24 v15, 12, v15
    v_add_u32 v15, s{sBase}, v15
    v_add_u32 v{vRecA}, v{vRecA}, v15
    v_mov_b32 v{vOne}, 4
    s_lshl_b32 s3, s{sW}, 2
    v_bfe_u32 v16, v1, 2, 2
    v_add_u32 v{vS}, s3, v6
    v_add_u32 v{vE}, s3, v16
    v_mov_b32 v16, 0
    v_lshlrev_b32 v3, 2, v0
    v_add_u32 v3, {CNT}, v3
    v_cmp_gt_u32 vcc, 128, v0
    s_mov_b64 exec, vcc
    ds_write_b32 v3, v16
    s_mov_b64 exec, -1
    s_cmp_eq_u32 s{sRM}, 0
    s_cbranch_scc1 K2_NB_NOFLAG
    v_mov_b32 v4, {FLAG}
    v_mov_b32 v5, 5
    ds_write_b32 v4, v5
    K2_NB_NOFLAG:
    s_waitcnt vmcnt(0)
    v_and_b32 v3, 0xffff, v{vRem}
    v_lshrrev_b32 v{vRem}, 16, v{vRem}
    v_add_u32 v{vRecA}, v3, v{vRecA}
    v_sub_u32 v{vRem}, v{vRem}, v15
    """)
    rec_loads(3)
    a("s_waitcnt vmcnt(0) lgkmcnt(0)\ns_barrier\ns_branch K2_BATCH")
    a(f"""
    K2_FINAL:
    """)
    for i in range(8): a(f"v_rcp_f32 v{40+i}, v{40+i}")
    for i in range(4): a(pk('fma', 32 + 2 * i, 32 + 2 * i, 40 + 2 * i, 48 + 2 * i))
    for i in range(8): a(f"v_max_f32 v{32+i}, v{56+i}, v{32+i}")
    for i in range(4): a(f"v_cvt_pk_bf16_f32 v{40+i}, v{32+2*i}, v{33+2*i}")
    a(f"buffer_store_dwordx4 v[40:43], v{vXo}, s[{S_OUT}:{S_OUT+3}], 0 offen{OSTP}")
    if DIAG:
        a("s_waitcnt vmcnt(0)"); st(); st.dump(1, "s2", f"s{sW}", 2, S_REC)
    a("K2_END:\ns_endpgm")

HEADER = open('standalone__edge_featured_mpnn_gatedgcn__graph.s.ref').read().split('; Override launch')[0]

def kd(name, vgpr, sgpr):
    return f""".amdhsa_kernel {name}
  .amdhsa_next_free_vgpr {vgpr}
  .amdhsa_next_free_sgpr {sgpr}
  .amdhsa_accum_offset {(vgpr + 3) // 4 * 4}
  .amdhsa_group_segment_fixed_size 0
  .amdhsa_kernarg_size 96
  .amdhsa_user_sgpr_count 2
  .amdhsa_user_sgpr_kernarg_segment_ptr 1
  .amdhsa_system_sgpr_workgroup_id_x 1
.end_amdhsa_kernel
"""

def build(verbose=False):
    out = HEADER
    out += "; Two launches: prep_kernel (x @ [w_b | w_v] -> gather tables; edges partitioned by destination bucket),\n"
    out += "; agg_kernel (per bucket and feature half: gates, normalised aggregation, residual output).\n"
    out += f"; @launch kernel=prep_kernel grid=({K1_GRID},1,1) block=({K1_BLOCK},1,1) lds={K1_LDS}\n"
    out += f"; @launch kernel=agg_kernel grid=({K2_GRID},1,1) block=({K2_BLOCK},1,1) lds={K2_LDS}\n"
    ks = [("prep_kernel", gen_k1), ("agg_kernel", gen_k2)]
    if OPT.get('PROBE'):
        out += "; @launch kernel=probe_kernel grid=(1,1,1) block=(64,1,1) lds=0\n"; ks.append(("probe_kernel", gen_probe))
    out += '.amdgcn_target "amdgcn-amd-amdhsa--gfx950"\n.text\n'
    for name, g in ks:
        a = Asm(); g(a)
        out += f".globl {name}\n.p2align 8\n.type {name},@function\n" + a.finish(verbose)
    out += '.section .rodata,"a"\n.p2align 6\n' + kd("prep_kernel", 128, 102 if DIAG else 64) + '.p2align 6\n' + kd("agg_kernel", 128, 102 if DIAG else 84)
    if OPT.get('PROBE'): out += '.p2align 6\n' + kd("probe_kernel", 8, 32)
    return out

if __name__ == '__main__':
    args = sys.argv[1:]
    if '--diag' in args: DIAG = True; args.remove('--diag')
    for x in list(args):
        if x.startswith('-D'):
            k, _, val = x[2:].partition('='); OPT[k] = int(val or 1); args.remove(x)
    v = '-v' in args
    if v: args.remove('-v')
    open(args[0], 'w').write(build(v))
```

```python
import sys, struct, math
from asmlib import Asm

def f2u(x): return struct.unpack('<I', struct.pack('<f', x))[0]

N = 12500; E = 400000
NPB = 98; NB = 128
NC = 128; CH = 3128; HCH = CH // 2
RECREG = CH * 12
TBL_H = 0x310000
REC_OFF = 0x800000
OFFS_OFF = 0x1000000
SCR_OFF = 0x1100000
DIAG_OFF = 0x2800000
NEGL2E = f2u(-math.log2(math.e))
TINY = 0x0d800000
CBITS = (127 - 62) << 23
EPSP = f2u(1e-6 * 2.0 ** 62)

G_WG = 128; S_WG = 128; K1_GRID = G_WG + S_WG; K1_BLOCK = 512; K1_LDS = 65536 + 32768 + 32768
K2_GRID = 256; K2_BLOCK = 1024
LMAX = 28; RST = 784
HEAD = 77824; EARR = HEAD + 32768; NPOS = LMAX * 128 + 128; SARR = EARR + NPOS * 8
CNT = SARR + NPOS * 4; OFFA = CNT + 512; DESC = OFFA + 512; ZROW = DESC + 512; EPSR = ZROW + 256; FLAG = ZROW + 768; K2_LDS = FLAG + 16
FASTMAX = LMAX * 128 - NPB
NR = 7

assert RST == NPB * 8
DIAG = False
OPT = {}

def ws_shift(a):
    if OPT.get('WSOFF'): a(f"s_add_u32 s26, s26, {OPT['WSOFF'] << 20}\ns_addc_u32 s27, s27, 0")

def srd(a, s, lo, hi, size):
    a(f"s_mov_b32 s{s}, {lo}\ns_and_b32 s{s+1}, {hi}, 0xffff\ns_mov_b32 s{s+2}, {size}\ns_mov_b32 s{s+3}, 0x20000")

def srd_off(a, s, plo, off, size):
    a(f"s_add_u32 s{s}, s{plo}, {off}\ns_addc_u32 s{s+1}, s{plo+1}, 0\ns_and_b32 s{s+1}, s{s+1}, 0xffff")
    a(f"s_mov_b32 s{s+2}, {size}\ns_mov_b32 s{s+3}, 0x20000")

def wave_red(a, v, op):
    for sh in (1, 2, 4, 8):
        a(f"v_{op}_dpp v{v}, v{v}, v{v} row_shr:{sh} row_mask:0xf bank_mask:0xf bound_ctrl:1")
    a(f"v_{op}_dpp v{v}, v{v}, v{v} row_bcast:15 row_mask:0xa bank_mask:0xf")
    a(f"v_{op}_dpp v{v}, v{v}, v{v} row_bcast:31 row_mask:0xc bank_mask:0xf")

def pk(op, d, *srcs, mod=''):
    return f"v_pk_{op}_f32 v[{d}:{d+1}], " + ", ".join(s if isinstance(s, str) else f"v[{s}:{s+1}]" for s in srcs) + mod

def pack_pair(a, h, l, o0, o1, sel0, sel1, cvt=True):
    if cvt: a(f"v_cvt_pk_bf16_f32 v{l}, v{l}, v{l+1}")
    a(f"""
    v_sub_u32_sdwa v{h}, v{h}, v{l} dst_sel:DWORD dst_unused:UNUSED_PAD src0_sel:DWORD src1_sel:WORD_0
    v_sub_u32_sdwa v{h+1}, v{h+1}, v{l} dst_sel:DWORD dst_unused:UNUSED_PAD src0_sel:DWORD src1_sel:WORD_1
    v_cvt_pk_bf16_f32 v{h}, v{h}, v{h+1}
    v_perm_b32 v{o0}, v{h}, v{l}, {sel0}
    v_perm_b32 v{o1}, v{h}, v{l}, {sel1}
    """)

class Stamps:
    def __init__(self, a, base): self.a = a; self.base = base; self.n = 0
    def __call__(self):
        if not DIAG: return
        s = self.base + self.n; self.n += 1
        assert s < 100
        op = 's_memtime' if OPT.get('CYC') else 's_memrealtime'
        self.a(f"{op} s[100:101]\ns_waitcnt lgkmcnt(0)\ns_mov_b32 s{s}, s100")
    def dump(self, kern, wg, swave, vt, srdreg):
        if not DIAG: return
        a = self.a
        srd_off(a, srdreg, 26, DIAG_OFF + kern * 0x100000, 0x100000)
        a(f"s_lshl_b32 s3, {wg}, 4\ns_add_u32 s3, s3, {swave}\ns_lshl_b32 s3, s3, 6")
        a(f"s_mov_b64 exec, 1\nv_mov_b32 v{vt}, s3")
        for i in range(self.n):
            a(f"v_mov_b32 v{vt+1}, s{self.base+i}\nbuffer_store_dword v{vt+1}, v{vt}, s[{srdreg}:{srdreg+3}], 0 offen offset:{4*i}\ns_nop 1")

def probe_stamp(a, slot, nm):
    if not OPT.get('PROBE') or OPT['PROBE'] >= 10: return
    a(f"""
    s_cmp_lg_u32 s2, 0
    s_cbranch_scc1 {nm}_NOPROBE
    s_memrealtime s[8:9]
    s_load_dwordx2 s[4:5], s[0:1], 88
    s_waitcnt lgkmcnt(0)
    s_add_u32 s4, s4, {DIAG_OFF + 0x300000 + slot*256}
    s_addc_u32 s5, s5, 0
    v_mov_b32 v2, s8
    v_mov_b32 v3, 0
    s_mov_b64 exec, 1
    global_store_dword v3, v2, s[4:5]
    s_mov_b64 exec, -1
    {nm}_NOPROBE:
    """)

def gen_probe(a):
    P = OPT['PROBE']
    if P < 10:
        a(f"""
        probe_kernel:
        s_cmp_lg_u32 s2, 0
        s_cbranch_scc1 P_END
        s_memrealtime s[8:9]
        s_load_dwordx2 s[4:5], s[0:1], 88
        s_waitcnt lgkmcnt(0)
        s_add_u32 s4, s4, {DIAG_OFF + 0x300000}
        s_addc_u32 s5, s5, 0
        v_mov_b32 v3, 0
        global_load_dword v1, v3, s[4:5]
        global_load_dword v2, v3, s[4:5] offset:256
        s_waitcnt vmcnt(0)
        v_readfirstlane_b32 s10, v1
        v_readfirstlane_b32 s11, v2
        s_nop 4
        s_sub_u32 s12, {'s8' if P == 1 else 's11'}, s10
        """)
    else:
        kern = OPT.get('PK', 0); idx = P - 10; nw = 8 if kern == 0 else 16; w0 = OPT.get('PW0', 0); nwg = OPT.get('PNW', 256); kb = OPT.get('PB', 0)
        a(f"""
        probe_kernel:
        s_cmp_lg_u32 s2, 0
        s_cbranch_scc1 P_END
        s_memrealtime s[8:9]
        s_load_dwordx2 s[4:5], s[0:1], 88
        s_waitcnt lgkmcnt(0)
        s_add_u32 s4, s4, {DIAG_OFF}
        s_addc_u32 s5, s5, 0
        v_lshlrev_b32 v3, 10, v0
        v_mov_b32 v4, -1
        v_mov_b32 v5, 0
        """)
        for k in range(4):
            a(f"v_add_u32 v6, {kb*0x100000 + k*65536}, v3\nglobal_load_dword v1, v6, s[4:5]\ns_waitcnt vmcnt(0)\nv_min_u32 v4, v4, v1")
        for k in range(nwg // 64):
            for w in range(nw):
                a(f"v_add_u32 v6, {kern*0x100000 + (w0 + k*64)*1024 + w*64 + idx*4}, v3\nglobal_load_dword v1, v6, s[4:5]\ns_waitcnt vmcnt(0)\nv_max_u32 v5, v5, v1")
        a("v_not_b32 v4, v4")
        wave_red(a, 4, "max_u32"); wave_red(a, 5, "max_u32")
        a("""
        s_nop 1
        v_readlane_b32 s10, v4, 63
        v_readlane_b32 s11, v5, 63
        s_nop 4
        s_not_b32 s10, s10
        s_sub_u32 s12, s11, s10
        s_memrealtime s[8:9]
        s_waitcnt lgkmcnt(0)
        """)
    a(f"""
    s_min_u32 s12, s12, 20000
    s_mul_i32 s12, s12, {100 if P >= 10 else 10}
    P_SPIN:
    s_memrealtime s[14:15]
    s_waitcnt lgkmcnt(0)
    s_sub_u32 s13, s14, s8
    s_cmp_lt_u32 s13, s12
    s_cbranch_scc1 P_SPIN
    P_END:
    s_endpgm
    """)

def w_lane_off(a, d, t0, t1):
    a(f"""
    v_lshrrev_b32 v{t0}, 3, v1
    v_lshlrev_b32 v{t0}, 8, v{t0}
    v_bfe_u32 v{d}, v1, 4, 1
    v_lshlrev_b32 v{d}, 1, v{d}
    v_and_b32 v{t1}, 7, v1
    v_xor_b32 v{d}, v{d}, v{t1}
    v_lshl_add_u32 v{d}, v{d}, 4, v{t0}
    """)

def w_frag_off(a, d, t0, t1, vg):
    a(f"""
    v_bfe_u32 v{t0}, v1, 2, 2
    v_lshl_add_u32 v{d}, v{vg}, 3, v{t0}
    v_lshlrev_b32 v{d}, 7, v{d}
    v_and_b32 v{t1}, 3, v1
    v_lshl_add_u32 v{d}, v{t1}, 3, v{d}
    v_lshrrev_b32 v{t0}, 1, v{t0}
    v_and_b32 v{t1}, 1, v{vg}
    v_lshl_or_b32 v{t0}, v{t1}, 1, v{t0}
    v_lshl_add_u32 v{d}, v{t0}, 5, v{d}
    """)

def gen_k1(a):
    STP = {0: "", 1: " nt", 2: " sc1", 3: " sc0 sc1"}[OPT.get('STP', 0)]
    st = Stamps(a, 64)
    a("prep_kernel:")
    a(f"s_cmp_ge_u32 s2, {K1_GRID}\ns_cbranch_scc1 K1_END")
    probe_stamp(a, 0, "K1")
    st()
    a("""
    s_load_dwordx16 s[4:19], s[0:1], 0
    s_load_dwordx8 s[20:27], s[0:1], 64
    v_lshrrev_b32 v2, 6, v0
    v_and_b32 v1, 63, v0
    v_readfirstlane_b32 s50, v2
    """)
    a(f"s_cmp_lt_u32 s2, {S_WG}\ns_cbranch_scc1 K1_SORT")
    NT = " nt" if OPT.get('NT', 1) else ""
    XF = [8, 24]; ACC = 40; WF = 104; WA = 120; FA = 124
    XST = 65536; BNC = XST + 32768
    def acc(t, m, ct): return ACC + ((t * 2 + m) * 4 + ct) * 4
    a(f"""
    s_sub_u32 s53, s2, {S_WG}
    s_and_b32 s51, s53, 3
    s_lshl_b32 s51, s51, 5
    s_bfe_u32 s52, s53, 0x10002
    s_lshl_b32 s56, s52, 4
    s_add_u32 s51, s51, s56
    s_lshr_b32 s56, s53, 3
    s_add_u32 s51, s51, s56              ; bucket
    s_mul_i32 s54, s51, {NPB*256}
    s_add_u32 s58, s54, {NPB*256}
    s_min_u32 s58, s58, {N*256}
    s_lshl_b32 s55, s50, 12
    s_add_u32 s56, s54, s55
    s_add_u32 s55, s55, {XST}
    v_lshrrev_b32 v6, 4, v1              ; l>>4
    v_and_b32 v7, 15, v1                 ; l&15
    v_xor_b32 v2, v6, v7
    v_lshlrev_b32 v2, 4, v2              ; ((l&15)^(l>>4))*16
    v_lshl_add_u32 v{FA}, v7, 8, v2
    v_lshl_add_u32 v2, v6, 8, v2
    v_add_u32 v8, s56, v2
    """)
    for q in range(1, 4): a(f"v_xor_b32 v{8+q}, {64*q}, v8")
    w_lane_off(a, 4, 5, 48)
    a("v_xor_b32 v5, 64, v4\ns_mov_b32 m0, s55\ns_waitcnt lgkmcnt(0)")
    ws_shift(a)
    srd(a, 28, "s4", "s5", "s58")
    for q in range(4): a(f"buffer_load_dwordx4 v{8+q}, s[28:31], 0 offen offset:{q*1024}{NT} lds")
    a("""
    s_cmp_lt_u32 s50, 4
    s_cselect_b32 s32, s14, s20
    s_cselect_b32 s33, s15, s21
    s_and_b32 s33, s33, 0xffff
    s_mov_b32 s34, 32768
    s_mov_b32 s35, 0x20000
    s_lshl_b32 s57, s50, 13
    s_mov_b32 m0, s57
    s_bfe_u32 s59, s50, 0x10001
    s_lshl_b32 s59, s59, 7
    s_and_b32 s56, s50, 1
    s_lshl_b32 s56, s56, 14
    s_add_u32 s59, s59, s56
    """)
    for i in range(8):
        if i == 4: a("s_add_u32 s57, s57, 4096\ns_mov_b32 m0, s57\ns_add_u32 s59, s59, 4096")
        a(f"buffer_load_dwordx4 v{4 + (i & 1)}, s[32:35], s59 offen offset:{(i%4)*1024} lds\ns_add_u32 s59, s59, 1024")
    a(f"""
    s_and_b32 s52, s50, 1
    s_lshr_b32 s56, s50, 1
    s_mul_i32 s57, s52, {TBL_H}
    """)
    srd_off(a, 36, 26, "s57", "s58")
    w_frag_off(a, WA, 48, 49, 6)
    a(f"""
    s_lshl_b32 s57, s52, 14
    v_add_u32 v{WA}, s57, v{WA}
    s_lshl_b32 s57, s56, 13
    s_add_u32 s59, s57, {XST}
    v_add_u32 v40, s59, v{FA}
    s_lshl_b32 s59, s50, 12
    s_add_u32 s59, s59, {BNC}
    v_add_u32 v{FA}, s59, v{FA}
    v_add_u32 v2, s59, v2
    s_add_u32 s57, s57, s54
    v_lshlrev_b32 v3, 4, v1
    v_add_u32 v3, s57, v3
    v_add_u32 v7, 4096, v3
    """)
    for k in range(1, 4): a(f"v_xor_b32 v{WA+k}, {32*k}, v{WA}\nv_xor_b32 v{FA+k}, {64*k}, v{FA}\nv_xor_b32 v{40+k}, {64*k}, v40")
    a(f"""
    s_mov_b32 s44, {NEGL2E}
    s_mov_b32 s45, {NEGL2E}
    s_mov_b32 s46, 0x05040100
    s_mov_b32 s47, 0x07060302
    s_xor_b32 s51, s51, 16
    s_mul_i32 s51, s51, {NPB*256}
    v_lshlrev_b32 v4, 7, v0
    v_add_u32 v4, s51, v4
    v_lshlrev_b32 v5, 8, v1
    s_mov_b32 s30, {N*256}
    s_waitcnt vmcnt(0)
    """)
    st()
    a("s_barrier")
    st()
    if OPT.get('PRE', 1):
        a(f"""
        s_cmp_lt_u32 s50, 4
        s_cbranch_scc0 K1_XPRE_DONE
        v_cmp_gt_u32 vcc, {NPB*2}, v0
        s_mov_b64 exec, vcc
        buffer_load_dword v6, v4, s[28:31], 0 offen
        s_mov_b64 exec, -1
        s_branch K1_PRE_DONE
        K1_XPRE_DONE:
        s_cmp_lt_u32 s53, 8
        s_cbranch_scc0 K1_PRE_DONE
        s_cmp_lt_u32 s50, 6
        s_cselect_b32 s32, s12, s18
        s_cselect_b32 s33, s13, s19
        s_and_b32 s33, s33, 0xffff
        s_lshl_b32 s57, s52, 14
        s_bfe_u32 s59, s53, 0x10002
        s_lshl_b32 s59, s59, 7
        s_add_u32 s57, s57, s59
        buffer_load_dword v6, v5, s[32:35], s57 offen
        K1_PRE_DONE:
        """)
    for t in range(2):
        for ks in range(4): a(f"ds_read_b128 v[{XF[t]+4*ks}:{XF[t]+4*ks+3}], v{40+ks} offset:{t*4096}")
    a(f"v_mov_b32 v4, {TINY}\nv_mov_b32 v5, {TINY}\ns_waitcnt lgkmcnt(0)")
    seq = [(ks, m, ct) for ct in range(4) for ks in range(4) for m in range(2)]
    def rd(s):
        ks, m, ct = seq[s]; b = WF + 4 * (s % 4); o = m * 32768 + ks * 4096
        a(f"ds_read_b64_tr_b16 v[{b}:{b+1}], v{WA+ct} offset:{o}\nds_read_b64_tr_b16 v[{b+2}:{b+3}], v{WA+ct} offset:{o+512}")
    for s in range(3): rd(s)
    for s in range(32):
        if s + 3 < 32: rd(s + 3)
        a(f"s_waitcnt lgkmcnt({2*min(3, 31-s)})")
        ks, m, ct = seq[s]; b = WF + 4 * (s % 4)
        for t in range(2):
            d = acc(t, m, ct); c = "0" if ks == 0 else f"v[{d}:{d+3}]"
            a(f"v_mfma_f32_16x16x32_bf16 v[{d}:{d+3}], v[{b}:{b+3}], v[{XF[t]+4*ks}:{XF[t]+4*ks+3}], {c}")
    st()
    for k in range(1, 4): a(f"v_xor_b32 v{WA+k}, {64*k}, v2")
    for t in range(2):
        for ct in range(4):
            O = XF[t] + 4 * ct
            for rp in (0, 2):
                h = acc(t, 0, ct) + rp; l = acc(t, 1, ct) + rp
                a(pk('fma', h, h, "s[44:45]", 4))
                pack_pair(a, h, l, O + rp, O + rp + 1, "s46", "s47")
            if t == 1 and ct == 0:
                for q in range(4):
                    a(f"s_waitcnt lgkmcnt({3-q})")
                    a(f"buffer_store_dwordx4 v[{XF[0]+4*q}:{XF[0]+4*q+3}], v3, s[36:39], 0 offen offset:{q*1024}{STP}")
            a(f"ds_write_b128 v{FA+ct}, v[{O}:{O+3}]")
        a("s_waitcnt lgkmcnt(0)")
        for q in range(4): a(f"ds_read_b128 v[{XF[t]+4*q}:{XF[t]+4*q+3}], v{2 if q == 0 else WA+q} offset:{q*1024}")
    for q in range(4):
        a(f"s_waitcnt lgkmcnt({3-q})")
        a(f"buffer_store_dwordx4 v[{XF[1]+4*q}:{XF[1]+4*q+3}], v7, s[36:39], 0 offen offset:{q*1024}{STP}")
    st()
    if DIAG:
        a("s_waitcnt vmcnt(0)"); st(); st.dump(0, "s2", "s50", 2, 60)
    a("s_endpgm")
    st = Stamps(a, 65)
    IMG = 1024
    DST = 8; SRC = 16; EA = 24; BK = 40; RK = 48; SN = 56
    a("K1_SORT:")
    a(f"""
    s_and_b32 s52, s2, 7
    s_lshl_b32 s52, s52, 4
    s_lshr_b32 s51, s2, 3
    s_add_u32 s51, s51, s52              ; chunk c
    s_mul_i32 s52, s51, {CH}
    v_lshl_add_u32 v2, v0, 2, s52
    v_add_u32 v3, {HCH}, v2
    s_mov_b32 s53, {E}
    v_cmp_gt_u32 vcc, {HCH//4}, v0
    v_cmp_gt_u32 s[48:49], s53, v2
    v_cmp_gt_u32 s[56:57], s53, v3
    s_and_b64 s[48:49], s[48:49], vcc
    s_and_b64 s[56:57], s[56:57], vcc
    v_lshlrev_b32 v4, 3, v2
    v_lshlrev_b32 v5, 3, v3
    v_lshlrev_b32 v2, 2, v2
    v_lshlrev_b32 v3, 2, v3
    s_sub_u32 s58, s53, s52
    s_min_u32 s58, s58, {CH}
    s_mul_i32 s58, s58, 12
    s_waitcnt lgkmcnt(0)
    """)
    ws_shift(a)
    srd(a, 28, "s10", "s11", E * 4)
    a(f"buffer_load_dwordx4 v[{DST}:{DST+3}], v2, s[28:31], 0 offen{NT}\nbuffer_load_dwordx4 v[{DST+4}:{DST+7}], v3, s[28:31], 0 offen{NT}")
    srd(a, 32, "s8", "s9", E * 4)
    a(f"buffer_load_dwordx4 v[{SRC}:{SRC+3}], v2, s[32:35], 0 offen{NT}\nbuffer_load_dwordx4 v[{SRC+4}:{SRC+7}], v3, s[32:35], 0 offen{NT}")
    srd(a, 36, "s6", "s7", E * 8)
    for g in range(2):
        for k in range(2): a(f"buffer_load_dwordx4 v[{EA+8*g+4*k}:{EA+8*g+4*k+3}], v{4+g}, s[36:39], 0 offen offset:{16*k}{NT}")
    a(f"""
    v_mov_b32 v6, 0
    v_lshlrev_b32 v7, 2, v0
    v_cmp_gt_u32 vcc, 128, v0
    s_and_saveexec_b64 s[60:61], vcc
    ds_write_b32 v7, v6
    s_mov_b64 exec, -1
    s_mul_i32 s53, s51, {RECREG}
    s_add_u32 s53, s53, {REC_OFF}
    """)
    srd_off(a, 40, 26, "s53", "s58")
    srd(a, 44, "s26", "s27", SCR_OFF)
    a(f"""
    s_mov_b32 s54, 42800
    s_mov_b32 s55, {NPB}
    v_mov_b32 v5, 12
    v_lshlrev_b32 v6, 3, v1
    s_waitcnt lgkmcnt(0)
    s_barrier
    s_waitcnt vmcnt(6)
    """)
    st()
    for g in range(2):
        a(f"s_mov_b64 exec, s[{48 if g == 0 else 56}:{49 if g == 0 else 57}]")
        for i in range(4 * g, 4 * g + 4):
            a(f"""
            v_mul_u32_u24 v{BK+i}, s54, v{DST+i}
            v_lshrrev_b32 v{BK+i}, 22, v{BK+i}           ; bucket
            v_mul_u32_u24 v{SN+i}, s55, v{BK+i}
            v_lshlrev_b32 v{BK+i}, 2, v{BK+i}
            ds_add_rtn_u32 v{RK+i}, v{BK+i}, v5
            v_sub_u32 v{SN+i}, v{DST+i}, v{SN+i}
            """)
    a("s_mov_b64 exec, -1\ns_waitcnt vmcnt(4)")
    for i in range(8): a(f"v_lshl_or_b32 v{SN+i}, v{SRC+i}, 8, v{SN+i}")
    a("""
    s_waitcnt lgkmcnt(0)
    s_barrier
    ds_read_b64 v[64:65], v6
    s_waitcnt lgkmcnt(0)
    v_add_u32 v67, v64, v65
    v_mov_b32 v68, v67
    """)
    wave_red(a, 68, "add_u32")
    a(f"""
    v_sub_u32 v70, v68, v67
    v_add_u32 v71, v70, v64
    v_add_u32 v72, {IMG}, v70
    v_add_u32 v73, {IMG}, v71
    ds_write_b64 v6, v[72:73] offset:512
    """)
    for g in range(2):
        a(f"s_mov_b64 exec, s[{48 if g == 0 else 56}:{49 if g == 0 else 57}]")
        for i in range(4 * g, 4 * g + 4): a(f"ds_read_b32 v{BK+i}, v{BK+i} offset:512")
    a("s_waitcnt vmcnt(0)")
    for g in range(2):
        a(f"s_mov_b64 exec, s[{48 if g == 0 else 56}:{49 if g == 0 else 57}]")
        for i in range(4 * g, 4 * g + 4):
            a(f"""
            s_waitcnt lgkmcnt({min(15, 7 - i + 2 * i)})
            v_add_u32 v{BK+i}, v{BK+i}, v{RK+i}
            ds_write2_b32 v{BK+i}, v{EA+2*i}, v{EA+2*i+1} offset0:0 offset1:1
            ds_write_b32 v{BK+i}, v{SN+i} offset:8
            """)
    a(f"""
    s_mov_b64 exec, -1
    s_cmp_lg_u32 s50, 7
    s_cbranch_scc1 K1_NOINFO
    v_lshl_or_b32 v70, v64, 16, v70
    v_lshl_or_b32 v71, v65, 16, v71
    s_lshl_b32 s53, s51, 2
    s_add_u32 s53, s53, {OFFS_OFF}
    v_lshlrev_b32 v7, 10, v1
    v_add_u32 v7, s53, v7
    buffer_store_dword v70, v7, s[44:47], 0 offen
    buffer_store_dword v71, v7, s[44:47], 0 offen offset:512
    s_cmp_lg_u32 s51, 0
    s_cbranch_scc1 K1_NOINFO
    v_mov_b32 v70, 0x7f000000
    v_lshlrev_b32 v7, 2, v1
    v_add_u32 v7, {N*256}, v7
    v_add_u32 v71, {TBL_H}, v7
    buffer_store_dword v70, v7, s[44:47], 0 offen
    buffer_store_dword v70, v71, s[44:47], 0 offen
    K1_NOINFO:
    v_lshlrev_b32 v7, 4, v0
    s_waitcnt lgkmcnt(0)
    s_barrier
    """)
    st()
    NCP = (RECREG + K1_BLOCK * 16 - 1) // (K1_BLOCK * 16)
    for i in range(NCP): a(f"ds_read_b128 v[{8+4*i}:{11+4*i}], v7 offset:{IMG + i*K1_BLOCK*16}")
    for i in range(1, NCP): a(f"v_add_u32 v{40+i}, {i*K1_BLOCK*16}, v7")
    for i in range(NCP):
        a(f"s_waitcnt lgkmcnt({NCP-1-i})")
        a(f"buffer_store_dwordx4 v[{8+4*i}:{11+4*i}], v{7 if i == 0 else 40+i}, s[40:43], 0 offen{STP}")
    st()
    if DIAG:
        a("s_waitcnt vmcnt(0)"); st(); st.base = 64; st.n += 1; st.dump(0, "s2", "s50", 2, 60)
    a("K1_END:\ns_endpgm")

def gen_k2(a):
    OSTP = {0: "", 1: " nt", 2: " sc1", 3: " sc0 sc1"}[OPT.get('OSTP', 0)]
    st = Stamps(a, 84)
    S_REC, S_INFO, S_W, S_TBL, S_RAW, S_WC, S_X, S_OUT = 28, 32, 36, 40, 44, 48, 52, 56
    MK = 60
    sH, sB, sW, sL, sRem, sNB, sRM, sT = 76, 77, 78, 79, 80, 81, 82, 83
    sBase, sRST, sMsk, sCnt = 74, 75, 12, 13
    M0_, M1_, PAT, TMP, RMM = 4, 6, 8, 10, 14
    REC = 64
    CA = 92
    XF = 32; WF = 48; ACC = 100
    WCS = EARR + 32768
    vRem, vRecA, vOne = 116, 117, 118
    LD = 32; T = 64; V = 72; D = 80; ND = 84; W = 88; NUM = 92; DEN = 96; CEA = 100; EE = 104; R = 108
    IA, IB, vRow, vS = 116, 117, 118, 119
    vE, vEs, vJ16 = 20, 21, 22
    WC = 24; CC = 26; SEL = 28
    XR = 8; vXo = 12; vCntA = 13; vCe = 14; vTch = 23
    a("agg_kernel:")
    a(f"s_cmp_ge_u32 s2, {K2_GRID}\ns_cbranch_scc1 K2_END")
    probe_stamp(a, 1, "K2")
    st()
    a(f"""
    s_load_dwordx8 s[20:27], s[0:1], 64
    s_load_dwordx16 s[4:19], s[0:1], 0
    v_lshrrev_b32 v2, 6, v0
    v_and_b32 v1, 63, v0
    v_readfirstlane_b32 s{sW}, v2
    s_bfe_u32 s{sH}, s2, 0x10002
    s_lshr_b32 s{sB}, s2, 3
    s_and_b32 s3, s2, 3
    s_lshl_b32 s3, s3, 5
    s_add_u32 s{sB}, s{sB}, s3            ; bucket
    v_lshrrev_b32 v2, 3, v0
    v_lshlrev_b32 v3, 2, v2
    v_lshlrev_b32 v4, 3, v1
    v_lshrrev_b32 v6, 4, v1               ; l>>4
    v_and_b32 v7, 15, v1                  ; l&15
    s_lshl_b32 s3, s{sB}, 9
    s_add_u32 s3, s3, {OFFS_OFF}
    s_waitcnt lgkmcnt(0)
    """)
    ws_shift(a)
    srd_off(a, S_INFO, 26, "s3", 512)
    a(f"""
    buffer_load_dword v{vRem}, v3, s[{S_INFO}:{S_INFO+3}], 0 offen
    buffer_load_dwordx2 v[120:121], v4, s[{S_INFO}:{S_INFO+3}], 0 offen
    s_mul_i32 s{sT}, s{sB}, {NPB*256}
    v_xor_b32 v16, v6, v7
    v_lshlrev_b32 v16, 4, v16
    v_lshl_add_u32 v17, v7, 8, v16
    v_lshl_add_u32 v16, v6, 8, v16
    s_and_b32 s3, s{sW}, 1
    s_lshl_b32 s3, s3, 7
    v_xor_b32 v16, s3, v16
    s_lshl_b32 s3, s{sW}, 11
    s_add_u32 s3, s3, s{sT}
    v_add_u32 v16, s3, v16
    v_xor_b32 v18, 64, v16
    """)
    w_lane_off(a, 5, 19, 15)
    a(f"""
    v_xor_b32 v19, 64, v5
    v_and_b32 v15, 7, v0                  ; sub
    v_lshlrev_b32 v{vXo}, 8, v2
    v_lshl_add_u32 v{vXo}, v15, 4, v{vXo}
    s_lshl_b32 s3, s{sH}, 7
    s_add_u32 s{sT}, s{sT}, s3
    v_add_u32 v{vXo}, s{sT}, v{vXo}
    v_lshlrev_b32 v{vJ16}, 4, v7
    v_lshlrev_b32 v{WC}, 3, v7
    v_lshl_add_u32 v{WC}, v6, 1, v{WC}
    s_add_u32 s3, s3, {WCS}
    v_add_u32 v{WC}, s3, v{WC}
    v_lshlrev_b32 v{WC+1}, 4, v1
    """)
    a(f"s_add_u32 s3, s{sB}, 1\ns_mul_i32 s3, s3, {NPB*256}\ns_min_u32 s3, s3, {N*256}")
    srd(a, S_X, "s4", "s5", "s3")
    srd(a, S_WC, "s16", "s17", 1024)
    a(f"""
    s_cmp_lt_u32 s{sW}, 8
    s_cselect_b32 s{S_W}, s12, s18
    s_cselect_b32 s{S_W+1}, s13, s19
    s_and_b32 s{S_W+1}, s{S_W+1}, 0xffff
    s_mov_b32 s{S_W+2}, 32768
    s_mov_b32 s{S_W+3}, 0x20000
    s_mul_i32 s{sT}, s{sH}, {TBL_H}
    """)
    srd_off(a, S_REC, 26, REC_OFF, NC * RECREG)
    srd_off(a, S_TBL, 26, f"s{sT}", (N + 1) * 256)
    if not OPT.get('NOTOUCH'): srd_off(a, S_RAW, 26, f"s{sT}", (N + 1) * 256)
    srd(a, S_OUT, "s22", "s23", N * 256)
    def bulk():
        a(f"""
        s_lshl_b32 s3, s{sW}, 11
        s_add_u32 s3, s3, {EARR}
        s_mov_b32 m0, s3
        s_lshl_b32 s{sT}, s{sH}, 7
        buffer_load_dwordx4 v16, s[{S_X}:{S_X+3}], 0 offen lds
        buffer_load_dwordx4 v18, s[{S_X}:{S_X+3}], 0 offen offset:1024 lds
        s_sub_u32 s3, s3, {EARR-HEAD}
        s_mov_b32 m0, s3
        s_and_b32 s3, s{sW}, 7
        s_lshl_b32 s3, s3, 12
        s_add_u32 s3, s3, s{sT}
        buffer_load_dwordx4 v5, s[{S_W}:{S_W+3}], s3 offen lds
        s_add_u32 s3, s3, 1024
        buffer_load_dwordx4 v19, s[{S_W}:{S_W+3}], s3 offen offset:1024 lds
        """)
        a(f"s_mov_b32 m0, {WCS}\ns_nop 0\nbuffer_load_dwordx4 v{WC+1}, s[{S_WC}:{S_WC+3}], 0 offen lds")
    a(f"""
    v_mov_b32 v68, 0
    v_mov_b32 v69, 0
    v_mov_b32 v70, 0
    v_mov_b32 v71, 0
    v_mov_b32 v72, 1.0
    v_mov_b32 v73, 1.0
    v_mov_b32 v74, 1.0
    v_mov_b32 v75, 1.0
    v_lshlrev_b32 v3, 4, v0
    v_add_u32 v4, {CNT}, v3
    v_add_u32 v3, {NPB*RST+512}, v3
    s_mov_b32 s22, {EPSP}
    s_mov_b32 s23, {EPSP}
    v_subrev_u32 v76, {(ZROW+512-CNT)//16}, v0
    v_mov_b32 v77, s22
    v_cmp_gt_u32 vcc, 16, v76
    v_cndmask_b32 v68, v68, v77, vcc
    v_cndmask_b32 v69, v69, v77, vcc
    v_cndmask_b32 v70, v70, v77, vcc
    v_cndmask_b32 v71, v71, v77, vcc
    v_cmp_gt_u32 vcc, {(K2_LDS-CNT)//16}, v0
    s_and_saveexec_b64 s[{MK}:{MK+1}], vcc
    ds_write_b128 v4, v[68:71]
    v_cmp_gt_u32 vcc, 16, v0
    s_and_b64 exec, exec, vcc
    ds_write_b128 v3, v[72:75]
    s_mov_b64 exec, -1
    s_mov_b32 s{sBase}, 0
    s_mov_b32 s{sRST}, {RST}
    s_mov_b32 s{sMsk}, 0xffffff00
    s_mov_b32 s{sCnt}, {CNT}
    s_mov_b32 s3, {RECREG}
    v_mul_u32_u24 v{vRecA}, s3, v2
    v_lshl_add_u32 v{XR}, s{sH}, 3, v15
    v_mul_u32_u24 v15, 12, v15            ; sub*12
    v_add_u32 v{vRecA}, v{vRecA}, v15
    v_mov_b32 v{vOne}, 4
    v_lshlrev_b32 v{vCntA}, 3, v1
    v_add_u32 v{vCntA}, {CNT}, v{vCntA}
    """)
    bulk()
    a(f"s_waitcnt vmcnt(5)")
    st()
    a(f"""
    v_and_b32 v3, 0xffff, v{vRem}
    v_lshrrev_b32 v{vRem}, 16, v{vRem}
    v_add_u32 v{vRecA}, v3, v{vRecA}
    v_sub_u32 v{vRem}, v{vRem}, v15
    """)
    def rec_masks(n):
        for k in range(n):
            if 96 * k <= 64: a(f"v_cmp_lt_i32 s[{MK+2*k}:{MK+2*k+1}], {96*k}, v{vRem}")
            else: a(f"v_cmp_lt_i32 vcc, {96*k}, v{vRem}\ns_mov_b64 s[{MK+2*k}:{MK+2*k+1}], vcc")
    def rec_issue(n, lbl):
        for k in range(n):
            a(f"s_mov_b64 exec, s[{MK+2*k}:{MK+2*k+1}]\ns_cbranch_execz {lbl}\nbuffer_load_dwordx3 v[{REC+4*k}:{REC+4*k+2}], v{vRecA}, s[{S_REC}:{S_REC+3}], 0 offen offset:{96*k}")
        a(f"{lbl}:\ns_mov_b64 exec, -1")
    def rec_loads(n): rec_masks(n); rec_issue(n, "K2_RI_SLOW")
    rec_masks(NR)
    a(f"""
    v_lshrrev_b32 v120, 16, v120
    v_lshrrev_b32 v121, 16, v121
    v_max_u32 v122, v120, v121
    v_add_u32 v3, v120, v121
    """)
    wave_red(a, 3, "add_u32")
    a(f"""
    v_cmp_lt_u32 vcc, {NR*96}, v122
    v_readlane_b32 s3, v3, 63
    s_mov_b32 s{sNB}, 1
    s_cmp_gt_u32 s3, {FASTMAX*12}
    s_cbranch_scc1 K2_SLOWMODE
    s_cbranch_vccz K2_MODE_DONE
    K2_SLOWMODE:
    """)
    wave_red(a, 122, "max_u32")
    a(f"""
    v_readlane_b32 s3, v122, 63
    s_add_u32 s3, s3, 287
    s_mul_i32 s3, s3, 14564
    s_lshr_b32 s{sNB}, s3, 22
    """)
    for k in range(3, NR): a(f"s_mov_b64 s[{MK+2*k}:{MK+2*k+1}], 0")
    a(f"""
    K2_MODE_DONE:
    v_and_b32 v3, 15, v2
    v_xor_b32 v{XR}, v{XR}, v3
    v_lshlrev_b32 v2, 8, v2
    v_lshl_add_u32 v{XR}, v{XR}, 4, v2
    v_add_u32 v{XR}, {EARR}, v{XR}
    s_lshr_b32 s3, s{sW}, 1
    s_lshl_b32 s{sT}, s3, 12
    s_add_u32 s{sT}, s{sT}, {EARR}
    v_add_u32 v120, s{sT}, v17
    """)
    for k in range(1, 4): a(f"v_xor_b32 v{120+k}, {64*k}, v120")
    w_frag_off(a, 16, 2, 3, 6)
    a(f"""
    s_and_b32 s{sT}, s{sW}, 1
    s_lshl_b32 s{sT}, s{sT}, 6
    v_xor_b32 v16, s{sT}, v16
    v_add_u32 v16, {HEAD}, v16
    v_xor_b32 v17, 32, v16
    s_lshl_b32 s3, s3, 4
    v_add_u32 v2, s3, v7                  ; node
    v_cmp_gt_u32 vcc, {NPB}, v2
    s_mov_b64 s[{TMP}:{TMP+1}], vcc
    v_mul_u32_u24 v{vCe}, s{sRST}, v2
    v_lshl_add_u32 v{vCe}, v6, 4, v{vCe}
    s_lshl_b32 s{sT}, s{sT}, 1
    v_add_u32 v{vCe}, s{sT}, v{vCe}
    s_mov_b32 s16, {NEGL2E}
    s_mov_b32 s17, {NEGL2E}
    s_mov_b32 s18, 0x05040100
    s_mov_b32 s19, 0x07060302
    s_mov_b64 s[{RMM}:{RMM+1}], 0
    v_mov_b32 v{CC}, {CBITS}
    v_mov_b32 v{CC+1}, {CBITS}
    v_bfe_u32 v3, v1, 2, 2                ; (l>>2)&3
    v_and_b32 v18, 3, v1
    v_mov_b32 v19, 0x3f80
    v_cmp_eq_u32 vcc, v6, v3
    v_cmp_eq_u32 s[{M0_}:{M0_+1}], 0, v18
    v_cmp_eq_u32 s[{M1_}:{M1_+1}], 1, v18
    v_cndmask_b32 v19, 0, v19, vcc
    v_cmp_eq_u32 s[{PAT}:{PAT+1}], 2, v18
    v_cmp_eq_u32 vcc, 3, v18
    v_cndmask_b32 v{SEL}, 0, v19, s[{M0_}:{M0_+1}]
    v_cndmask_b32 v{SEL+1}, 0, v19, s[{M1_}:{M1_+1}]
    v_cndmask_b32 v{SEL+2}, 0, v19, s[{PAT}:{PAT+1}]
    v_cndmask_b32 v{SEL+3}, 0, v19, vcc
    v_cmp_eq_u32 s[20:21], v6, v18
    s_lshl_b32 s3, s{sW}, 2
    v_add_u32 v{vS}, s3, v6
    v_add_u32 v{vE}, s3, v3
    v_mov_b32 v2, 64
    v_cndmask_b32 v{vEs}, 0, v2, s[20:21]
    v_mov_b32 v2, {TINY}
    v_mov_b32 v3, {TINY}
    v_mov_b32 v4, {f2u(-62.0)}
    v_mov_b32 v5, {f2u(-62.0)}
    """)
    if not OPT.get('NOTOUCH'):
        a(f"""
        s_lshr_b32 s3, s2, 3
        s_mul_i32 s3, s3, 782
        v_add_u32 v{vTch}, s3, v0
        v_lshlrev_b32 v{vTch}, 7, v{vTch}
        v_cmp_gt_u32 vcc, {OPT.get('TOUCHN', 782)}, v0
        v_mov_b32 v18, -1
        v_cndmask_b32 v{vTch}, v18, v{vTch}, vcc
        """)
    a(f"""
    s_waitcnt vmcnt(0) lgkmcnt(0)
    s_barrier
    """)
    st()
    def gemm(tag):
        a(f"ds_read_b128 v[{XR}:{XR+3}], v{XR}")
        for k in range(4): a(f"ds_read_u16 v{124+k}, v{WC} offset:{256*k}")
        a(f"s_cmp_ge_u32 s{sW}, 14\ns_cbranch_scc1 K2_NOGEMM{tag}")
        for ks in range(4): a(f"ds_read_b128 v[{XF+4*ks}:{XF+4*ks+3}], v{120+ks}")
        seq = [(ks, m, c) for ks in range(4) for m in range(2) for c in range(2)]
        def rd(s):
            ks, m, c = seq[s]; b = WF + 4 * (s % 4); o = m * 16384 + ks * 4096
            a(f"ds_read_b64_tr_b16 v[{b}:{b+1}], v{16+c} offset:{o}\nds_read_b64_tr_b16 v[{b+2}:{b+3}], v{16+c} offset:{o+512}")
        for s in range(3): rd(s)
        for s in range(16):
            if s + 3 < 16: rd(s + 3)
            a(f"s_waitcnt lgkmcnt({2*min(3, 15-s)})")
            ks, m, c = seq[s]; b = WF + 4 * (s % 4); d = ACC + (m * 2 + c) * 4
            a(f"v_mfma_f32_16x16x32_bf16 v[{d}:{d+3}], v[{b}:{b+3}], v[{XF+4*ks}:{XF+4*ks+3}], {'0' if ks == 0 else 'v[%d:%d]' % (d, d+3)}")
        a(f"s_mov_b32 s3, {f2u(60.0)}\nv_mov_b32 v18, {FLAG}")
        for i in range(4): a(pk('fma', ACC + 2 * i, ACC + 2 * i, "s[16:17]", 2))
        for i in range(4): a(pk('add', XF + 2 * i, ACC + 2 * i, 4))
        for i in range(8): a(f"v_exp_f32 v{XF+i}, v{XF+i}")
        for i in range(4): a(f"v_cvt_pk_bf16_f32 v{ACC+8+2*i}, v{ACC+8+2*i}, v{ACC+9+2*i}")
        a(f"""
        v_max3_f32 v2, |v{ACC}|, |v{ACC+1}|, |v{ACC+2}|
        v_max3_f32 v3, |v{ACC+3}|, |v{ACC+4}|, |v{ACC+5}|
        v_max3_f32 v2, v2, |v{ACC+6}|, |v{ACC+7}|
        v_max_f32 v2, v2, v3
        v_cmp_lt_f32 vcc, s3, v2
        s_and_b64 s[{RMM}:{RMM+1}], vcc, s[{TMP}:{TMP+1}]
        """)
        for i in range(4): pack_pair(a, XF + 2 * i, ACC + 8 + 2 * i, WF + 2 * i, WF + 2 * i + 1, "s18", "s19", cvt=False)
        a(f"""
        s_mov_b64 exec, s[{TMP}:{TMP+1}]
        ds_write_b128 v{vCe}, v[{WF}:{WF+3}] offset:512
        ds_write_b128 v{vCe}, v[{WF+4}:{WF+7}] offset:576
        s_mov_b64 exec, s[{RMM}:{RMM+1}]
        ds_write_b32 v18, v{vOne}
        s_mov_b64 exec, -1
        K2_NOGEMM{tag}:
        s_waitcnt lgkmcnt(0)
        """)
        for k in range(4): a(f"v_lshlrev_b32 v{124+k}, 16, v{124+k}\nv_mul_f32 v{124+k}, s16, v{124+k}")
        a(f"v_cvt_pk_bf16_f32 v{WC}, v124, v125\nv_cvt_pk_bf16_f32 v{WC+1}, v126, v127")
    a(f"s_cmp_lt_u32 s{sW}, {OPT.get('GFIRST', 8)}\ns_cbranch_scc1 K2_GEMM_FIRST")
    rec_issue(NR, "K2_RI_A")
    gemm("A")
    a("s_branch K2_BOTH_DONE\nK2_GEMM_FIRST:")
    gemm("B")
    rec_issue(NR, "K2_RI_B")
    a("K2_BOTH_DONE:")
    st()
    a("s_waitcnt vmcnt(0)")
    st()
    if not OPT.get('NOTOUCH'): a(f"buffer_load_dword v{vTch}, v{vTch}, s[{S_RAW}:{S_RAW+3}], 0 offen")
    a("K2_BATCH:")
    for k in range(NR):
        a(f"""
        s_mov_b64 exec, s[{MK+2*k}:{MK+2*k+1}]
        s_cbranch_execz K2_AT_DONE
        v_and_b32 v{CA+k}, 0x7f, v{REC+4*k+2}
        v_lshl_add_u32 v{CA+k}, v{CA+k}, 2, s{sCnt}
        ds_add_rtn_u32 v{REC+4*k+3}, v{CA+k}, v{vOne}
        """)
    a(f"""
    K2_AT_DONE:
    s_mov_b64 exec, -1
    v_mov_b32 v16, {FLAG}
    s_waitcnt lgkmcnt(0)
    s_barrier
    """)
    st()
    a(f"""
    ds_read_b64 v[2:3], v{vCntA}
    ds_read_b32 v16, v16
    s_waitcnt lgkmcnt(0)
    v_add_u32 v4, 4, v2
    v_add_u32 v5, 4, v3
    v_and_b32 v4, -8, v4
    v_and_b32 v5, -8, v5
    v_add_u32 v18, v4, v5
    v_mov_b32 v19, v18
    v_readfirstlane_b32 s{sRM}, v16
    """)
    wave_red(a, 19, "add_u32")
    a(f"""
    v_sub_u32 v16, v19, v18
    v_readlane_b32 s{sT}, v19, 63
    v_add_u32 v16, {SARR}, v16
    v_add_u32 v17, v16, v4
    ds_write_b64 v{vCntA}, v[16:17] offset:512
    s_add_u32 s{sL}, s{sT}, 511
    s_lshr_b32 s{sL}, s{sL}, 9
    """)
    if OPT.get('FINE'): st()
    for k in range(NR):
        a(f"s_mov_b64 exec, s[{MK+2*k}:{MK+2*k+1}]\ns_cbranch_execz K2_RD_DONE\nds_read_b32 v{CA+k}, v{CA+k} offset:512")
    a(f"""
    K2_RD_DONE:
    s_mov_b64 exec, -1
    s_lshl_b32 s3, s{sL}, 3               ; L*8
    v_lshlrev_b32 v{vRow}, 9, v{vS}
    v_mul_u32_u24 v{vS}, s3, v{vS}
    v_mul_u32_u24 v{vE}, s3, v{vE}
    v_add_u32 v{vS}, {SARR}, v{vS}
    v_lshlrev_b32 v{vE}, 1, v{vE}
    v_add_u32 v{vE}, {EARR}, v{vE}
    v_mov_b32 v120, {ZROW}
    v_cndmask_b32 v{vE}, v120, v{vE}, s[20:21]
    v_lshl_add_u32 v99, v7, 3, v{vS}
    v_add_u32 v{vRow}, v{vRow}, v{vJ16}
    v_add_u32 v{vRow}, {HEAD}, v{vRow}
    s_mov_b32 s3, {(EARR - 2*SARR) & 0xffffffff}
    v_mov_b32 v120, 0
    v_mov_b32 v121, 0
    v_mov_b32 v122, {N*256 + NPB}
    s_sub_u32 s{sRem}, s{sW}, 1
    s_cmp_gt_u32 s{sRem}, 2
    s_cbranch_scc1 K2_NOAUX
    s_cmp_eq_u32 s{sW}, 1
    s_cbranch_scc1 K2_AUXPAD
    s_sub_u32 s{sRem}, s{sW}, 2
    s_lshl_b32 s{sRem}, s{sRem}, 8
    s_add_u32 s{sRem}, s{sRem}, s{sT}
    s_add_u32 s{sRem}, s{sRem}, {SARR}
    v_lshl_add_u32 v123, v1, 2, s{sRem}
    ds_write_b32 v123, v122
    v_lshl_add_u32 v123, v123, 1, s3
    ds_write_b64 v123, v[120:121]
    s_branch K2_NOAUX
    K2_AUXPAD:
    """)
    for i in range(2):
        a(f"""
        v_and_b32 v123, 4, v{2+i}
        v_cmp_ne_u32 vcc, 0, v123
        v_add_u32 v123, v{16+i}, v{2+i}
        s_mov_b64 exec, vcc
        ds_write_b32 v123, v122
        v_lshl_add_u32 v123, v123, 1, s3
        ds_write_b64 v123, v[120:121]
        s_mov_b64 exec, -1
        """)
    a(f"""
    K2_NOAUX:
    s_waitcnt lgkmcnt(0)
    """)
    if OPT.get('FINE'): st()
    for k in range(NR):
        a(f"""
        s_mov_b64 exec, s[{MK+2*k}:{MK+2*k+1}]
        s_cbranch_execz K2_SC_DONE
        v_add_u32 v{CA+k}, v{CA+k}, v{REC+4*k+3}
        ds_write_b32 v{CA+k}, v{REC+4*k+2}
        """)
    a(f"""
    K2_SC_DONE:
    s_mov_b64 exec, -1
    s_cmp_lg_u32 s{sW}, 0
    s_cbranch_scc1 K2_NODESC
    s_max_u32 s{sRem}, s{sL}, 1
    v_cvt_f32_u32 v120, s{sRem}
    v_rcp_f32 v120, v120
    v_subrev_u32 v16, {SARR}, v16
    v_subrev_u32 v17, {SARR}, v17
    v_mul_f32 v120, {f2u(2.0**20)}, v120
    v_lshrrev_b32 v16, 3, v16
    v_lshrrev_b32 v17, 3, v17
    v_cvt_u32_f32 v120, v120
    v_lshrrev_b32 v19, 3, v19
    v_add_u32 v120, 2, v120
    s_sub_u32 s{sRem}, s{sRem}, 1
    """)
    for i, q in enumerate((16, 17, 19)):
        a(f"v_add_u32 v{121+i}, s{sRem}, v{q}\nv_mul_lo_u32 v{121+i}, v{121+i}, v120\nv_lshrrev_b32 v{121+i}, 20, v{121+i}")
    a(f"v_lshlrev_b32 v18, 1, v1\nv_mul_u32_u24 v18, s{sRST}, v18\nv_mov_b32 v120, {EPSR}")
    for i, (q0, q1) in enumerate(((16, 17), (17, 19))):
        a(f"""
        v_mul_u32_u24 v4, s{sL}, v{121+i}
        v_cmp_ne_u32 vcc, v4, v{q0}
        v_cmp_ne_u32 s[{TMP}:{TMP+1}], v{q0}, v{q1}
        s_and_b64 vcc, vcc, s[{TMP}:{TMP+1}]
        v_sub_u32 v5, v{122+i}, v{121+i}
        v_cndmask_b32 v4, v120, v18, vcc
        v_lshl_or_b32 v4, v{121+i}, 18, v4
        v_lshl_or_b32 v{2+i}, v5, 25, v4
        v_add_u32 v18, {RST}, v18
        """)
    a(f"""
    ds_write_b64 v{vCntA}, v[2:3] offset:1024
    K2_NODESC:
    s_cmp_eq_u32 s{sRM}, 4
    s_cbranch_scc0 K2_NORM
    s_cmp_ge_u32 s{sW}, 14
    s_cbranch_scc1 K2_NORM
    """)
    for i in range(4): pack_pair(a, ACC + 2 * i, ACC + 8 + 2 * i, WF + 2 * i, WF + 2 * i + 1, "s18", "s19", cvt=False)
    a(f"""
    s_lshr_b32 s3, s{sW}, 1
    s_lshl_b32 s3, s3, 4
    v_add_u32 v2, s3, v7
    v_cmp_gt_u32 vcc, {NPB}, v2
    s_mov_b64 exec, vcc
    ds_write_b128 v{vCe}, v[{WF}:{WF+3}] offset:512
    ds_write_b128 v{vCe}, v[{WF+4}:{WF+7}] offset:576
    s_mov_b64 exec, -1
    K2_NORM:
    """)
    a(f"""
    s_mov_b32 s{PAT}, 0x00010001
    s_mov_b32 s{PAT+1}, 0x00010001
    s_mov_b32 s{S_TBL+2}, {(N+1)*256}
    s_waitcnt lgkmcnt(0)
    s_barrier
    """)
    st()
    a(f"ds_read_b64 v[2:3], v{vS}")
    for p in range(1, 4): a(f"ds_read_b64 v[{R+2*p}:{R+2*p+1}], v{vS} offset:{8*p}")
    a(f"""
    ds_read2_b32 v[16:17], v99 offset0:0 offset1:2
    ds_read2_b32 v[18:19], v99 offset0:32 offset1:34
    ds_read_b64 v[{R}:{R+1}], v{vS} offset:32
    s_waitcnt lgkmcnt(3)
    """)
    def first_gathers(ps):
        for p in ps:
            s0 = 2 if p == 0 else R + 2 * p
            a(f"""
            v_and_or_b32 v{120+2*p}, v{s0}, s{sMsk}, v{vJ16}
            v_and_or_b32 v{121+2*p}, v{s0+1}, s{sMsk}, v{vJ16}
            buffer_load_dwordx4 v[{LD+8*p}:{LD+8*p+3}], v{120+2*p}, s[{S_TBL}:{S_TBL+3}], 0 offen
            buffer_load_dwordx4 v[{LD+8*p+4}:{LD+8*p+7}], v{121+2*p}, s[{S_TBL}:{S_TBL+3}], 0 offen
            """)
    NG1 = OPT.get('NG1', 1)
    first_gathers(range(NG1))
    a(f"""
    v_and_b32 v3, 0x7f, v2
    v_mad_u32_u24 v3, v3, s{sRST}, v{vJ16}
    ds_read_b128 v[{CEA}:{CEA+3}], v3 offset:512
    s_mov_b32 s3, {(EARR - 2*SARR) & 0xffffffff}
    """)
    for k in range(NR):
        a(f"""
        s_mov_b64 exec, s[{MK+2*k}:{MK+2*k+1}]
        s_cbranch_execz K2_SE_DONE
        v_lshl_add_u32 v{CA+k}, v{CA+k}, 1, s3
        ds_write_b64 v{CA+k}, v[{REC+4*k}:{REC+4*k+1}]
        """)
    a(f"""
    K2_SE_DONE:
    s_mov_b64 exec, -1
    """)
    for i in range(8): a(f"v_mov_b32 v{NUM+i}, 0")
    a(f"""
    s_waitcnt lgkmcnt(0)
    s_barrier
    ds_read_b128 v[{EE}:{EE+3}], v{vE}
    s_cmp_eq_u32 s{sL}, 0
    s_cbranch_scc1 K2_LOOP_DONE
    """)
    st()
    first_gathers(range(NG1, 4))
    a(f"""
    v_xor_b32 v16, v16, v17
    v_xor_b32 v18, v18, v19
    v_and_b32 v16, 0x7f, v16
    v_and_b32 v18, 0x7f, v18
    v_cmp_ne_u32 s[{M0_}:{M0_+1}], 0, v16
    v_cmp_ne_u32 s[{M1_}:{M1_+1}], 0, v18
    s_sub_u32 s{sRem}, s{sL}, 1
    s_and_b32 s{sT}, s{sRem}, 15
    s_lshl_b64 s[{TMP}:{TMP+1}], s[{PAT}:{PAT+1}], s{sT}
    s_cmp_lt_u32 s{sRem}, 16
    s_cbranch_scc1 K2_LAST_LO
    s_or_b64 s[{M1_}:{M1_+1}], s[{M1_}:{M1_+1}], s[{TMP}:{TMP+1}]
    s_branch K2_LAST_DONE
    K2_LAST_LO:
    s_or_b64 s[{M0_}:{M0_+1}], s[{M0_}:{M0_+1}], s[{TMP}:{TMP+1}]
    K2_LAST_DONE:
    s_sub_u32 s{sT}, s{sL}, 17
    s_cmp_gt_u32 s{sRem}, 3
    s_cselect_b32 s{S_TBL+2}, {(N+1)*256}, 0
    s_waitcnt vmcnt(6) lgkmcnt(0)
    v_mfma_f32_16x16x16_bf16 v[{T}:{T+3}], v[{EE}:{EE+1}], v[{WC}:{WC+1}], v[{LD}:{LD+3}]
    v_mfma_f32_16x16x16_bf16 v[{T+4}:{T+7}], v[{EE+2}:{EE+3}], v[{WC}:{WC+1}], v[{LD+4}:{LD+7}]
    s_nop 1
    ds_read_b128 v[{EE}:{EE+3}], v{vE} offset:16
    s_nop 4
    """)
    st()
    if OPT.get('FAIR', 1): a("s_setprio 3")
    a(f"s_cmp_lg_u32 s{sRM}, 0\ns_cbranch_scc1 K2_LOOP_1")
    for rm in range(2):
        a(f".p2align 6\nK2_LOOP_{rm}:") if rm == 0 else a(f"K2_LOOP_{rm}:")
        for u in range(4):
            la = LD + 8 * u; lb = la + 4; na = LD + 8 * ((u + 1) % 4); nb = na + 4
            ru = R + 2 * u; rn = R + 2 * ((u + 1) % 4)
            if rm:
                a("s_waitcnt lgkmcnt(0)")
                for i in range(4): a(pk('add', T + 2 * i, T + 2 * i, CEA + (2 * i) % 4))
            a(f"""
            v_mfma_f32_16x16x32_bf16 v[{V}:{V+3}], v[{SEL}:{SEL+3}], v[{la}:{la+3}], 0
            v_exp_f32 v{T}, v{T}
            v_exp_f32 v{T+1}, v{T+1}
            v_mfma_f32_16x16x32_bf16 v[{V+4}:{V+7}], v[{SEL}:{SEL+3}], v[{lb}:{lb+3}], 0
            """)
            for r in range(2, 8): a(f"v_exp_f32 v{T+r}, v{T+r}")
            a(f"""
            s_waitcnt lgkmcnt(0)
            v_and_or_b32 v{IA}, v{ru}, s{sMsk}, v{vJ16}
            v_and_or_b32 v{IB}, v{ru+1}, s{sMsk}, v{vJ16}
            buffer_load_dwordx4 v[{la}:{la+3}], v{IA}, s[{S_TBL}:{S_TBL+3}], 0 offen
            buffer_load_dwordx4 v[{lb}:{lb+3}], v{IB}, s[{S_TBL}:{S_TBL+3}], 0 offen
            """)
            for i in range(4):
                a(pk('fma', T + 2 * i, T + 2 * i, CC if rm else CEA + (2 * i) % 4, CC, mod=' clamp'))
            for i in (0, 2): a(pk('mul', D + i, T + i, T + 4 + i))
            for i in (0, 2): a(pk('add', ND + i, T + i, T + 4 + i))
            for i in (0, 2): a(pk('mul', W + i, V + i, T + 4 + i))
            for i in (0, 2): a(pk('fma', W + i, V + 4 + i, T + i, W + i))
            a(f"""
            s_waitcnt vmcnt(6)
            v_mfma_f32_16x16x16_bf16 v[{T}:{T+3}], v[{EE}:{EE+1}], v[{WC}:{WC+1}], v[{na}:{na+3}]
            v_rcp_f32 v{D}, v{D}
            v_rcp_f32 v{D+1}, v{D+1}
            v_mfma_f32_16x16x16_bf16 v[{T+4}:{T+7}], v[{EE+2}:{EE+3}], v[{WC}:{WC+1}], v[{nb}:{nb+3}]
            v_rcp_f32 v{D+2}, v{D+2}
            v_rcp_f32 v{D+3}, v{D+3}
            s_and_b64 s[{TMP}:{TMP+1}], s[{M0_}:{M0_+1}], s[{PAT}:{PAT+1}]
            """)
            for i in (0, 2): a(pk('fma', DEN + i, ND + i, D + i, DEN + i))
            for i in (0, 2): a(pk('fma', NUM + i, W + i, D + i, NUM + i))
            a(f"""
            s_cbranch_scc1 K2_FL_{rm}_{u}
            K2_BK_{rm}_{u}:
            ds_read_b64 v[{rn}:{rn+1}], v{vS} offset:{8*(u+5)}
            ds_read_b128 v[{EE}:{EE+3}], v{vE} offset:{16*(u+2)}
            s_lshr_b64 s[{M0_}:{M0_+1}], s[{M0_}:{M0_+1}], 1
            s_sub_u32 s{sRem}, s{sRem}, 1
            s_cmp_gt_u32 s{sRem}, 3
            s_cselect_b32 s{S_TBL+2}, {(N+1)*256}, 0
            """)
            if u == 3:
                a(f"""
                v_add_u32 v{vS}, 32, v{vS}
                v_add_u32 v{vE}, v{vEs}, v{vE}
                s_cmp_eq_u32 s{sRem}, s{sT}
                s_cselect_b64 s[{M0_}:{M0_+1}], s[{M1_}:{M1_+1}], s[{M0_}:{M0_+1}]
                """)
                if OPT.get('FAIR', 1):
                    a(f"""
                    s_cmp_ge_u32 s{sRem}, 16
                    s_cbranch_scc1 K2_LOOP_{rm}
                    s_setprio 2
                    s_cmp_ge_u32 s{sRem}, 8
                    s_cbranch_scc1 K2_LOOP_{rm}
                    s_setprio 1
                    s_cmp_ge_u32 s{sRem}, 4
                    s_cbranch_scc1 K2_LOOP_{rm}
                    s_setprio 0
                    """)
                a(f"s_branch K2_LOOP_{rm}")
        for u in range(4):
            rn = R + 2 * ((u + 1) % 4)
            a(f"""
            K2_FL_{rm}_{u}:
            s_mul_i32 exec_lo, s{TMP}, 0xffff
            s_mul_i32 exec_hi, s{TMP+1}, 0xffff
            ds_write_b128 v{vRow}, v[{NUM}:{NUM+3}]
            ds_write_b128 v{vRow}, v[{DEN}:{DEN+3}] offset:256
            v_and_b32 v{IA}, 0x7f, v{rn}
            v_mad_u32_u24 v{vRow}, v{IA}, s{sRST}, v{vJ16}
            s_cmp_lg_u32 s{sRem}, 0
            ds_read_b128 v[{CEA}:{CEA+3}], v{vRow} offset:512
            """)
            for i in range(2): a(f"v_pk_mov_b32 v[{NUM+2*i}:{NUM+2*i+1}], 0, 0")
            for i in range(2): a(f"v_pk_mov_b32 v[{DEN+2*i}:{DEN+2*i+1}], s[22:23], s[22:23]")
            a(f"""
            s_mov_b64 exec, -1
            s_cbranch_scc1 K2_BK_{rm}_{u}
            s_branch K2_LOOP_DONE
            """)
    a("K2_LOOP_DONE:\ns_setprio 0")
    st()
    a(f"""
    v_lshrrev_b32 v2, 3, v0
    v_lshlrev_b32 v3, 2, v2
    v_add_u32 v3, {DESC}, v3
    v_and_b32 v4, 7, v0
    v_lshlrev_b32 v4, 5, v4               ; 32*m
    v_mad_u32_u24 v2, v2, s{sRST}, v4
    s_waitcnt vmcnt(0)
    ds_read_b32 v3, v3
    ds_read_b128 v[48:51], v2 offset:512
    ds_read_b128 v[52:55], v2 offset:528
    v_add_u32 v5, {ZROW}, v4
    v_cmp_gt_u32 s[{TMP}:{TMP+1}], s{sRST}, v0
    """)
    for i in range(4):
        a(f"v_lshlrev_b32 v{56+2*i}, 16, v{XR+i}\nv_and_b32 v{57+2*i}, 0xffff0000, v{XR+i}")
    a(f"""
    s_waitcnt lgkmcnt(2)
    v_and_b32 v16, 0x3ffff, v3
    v_add_u32 v16, v16, v4
    v_bfe_u32 v17, v3, 18, 7
    v_lshl_add_u32 v17, v17, 9, v4
    v_add_u32 v17, {HEAD}, v17
    v_lshrrev_b32 v3, 25, v3
    v_cmp_ne_u32 vcc, 0, v3
    s_waitcnt lgkmcnt(0)
    """)
    for i in range(8): a(f"v_lshlrev_b32 v{48+i}, 16, v{48+i}")
    a("v_cndmask_b32 v5, v5, v17, vcc")
    for i in range(4): a(pk('add', 48 + 2 * i, 48 + 2 * i, 56 + 2 * i))
    a("s_barrier")
    st()
    a(f"""
    s_mov_b64 exec, s[{TMP}:{TMP+1}]
    ds_read_b128 v[40:43], v16 offset:256
    ds_read_b128 v[72:75], v5 offset:256
    ds_read_b128 v[44:47], v16 offset:272
    ds_read_b128 v[76:79], v5 offset:272
    ds_read_b128 v[32:35], v16
    ds_read_b128 v[64:67], v5
    ds_read_b128 v[36:39], v16 offset:16
    ds_read_b128 v[68:71], v5 offset:16
    v_cmp_lt_u32 vcc, 1, v3
    s_waitcnt lgkmcnt(0)
    """)
    for i in range(8): a(pk('add', 32 + 2 * i, 32 + 2 * i, 64 + 2 * i))
    a(f"""
    s_cbranch_vccz K2_HEADS_DONE
    K2_MORE_HEADS:
    s_mov_b64 exec, vcc
    v_add_u32 v17, 512, v17
    v_subrev_u32 v3, 1, v3
    ds_read_b128 v[64:67], v17
    ds_read_b128 v[68:71], v17 offset:16
    ds_read_b128 v[72:75], v17 offset:256
    ds_read_b128 v[76:79], v17 offset:272
    v_cmp_lt_u32 vcc, 1, v3
    s_waitcnt lgkmcnt(0)
    """)
    for i in range(8): a(pk('add', 32 + 2 * i, 32 + 2 * i, 64 + 2 * i))
    a(f"""
    s_cbranch_vccnz K2_MORE_HEADS
    s_mov_b64 exec, s[{TMP}:{TMP+1}]
    K2_HEADS_DONE:
    s_sub_u32 s{sNB}, s{sNB}, 1
    s_or_b32 s3, s{sNB}, s{sBase}
    s_cbranch_scc0 K2_FINAL
    s_lshl_b32 s3, s2, 16
    s_add_u32 s3, s3, {SCR_OFF}
    """)
    srd_off(a, S_W, 26, "s3", 65536)
    a(f"""
    v_lshlrev_b32 v2, 6, v0
    s_cmp_eq_u32 s{sBase}, 0
    s_cbranch_scc1 K2_NOLOAD
    """)
    for i in range(4): a(f"buffer_load_dwordx4 v[{64+4*i}:{67+4*i}], v2, s[{S_W}:{S_W+3}], 0 offen offset:{16*i}")
    a("s_waitcnt vmcnt(0)")
    for i in range(8): a(pk('add', 32 + 2 * i, 32 + 2 * i, 64 + 2 * i))
    a(f"""
    K2_NOLOAD:
    s_cmp_eq_u32 s{sNB}, 0
    s_cbranch_scc1 K2_FINAL
    """)
    for i in range(4): a(pk('add', 40 + 2 * i, 40 + 2 * i, "s[22:23]", mod=" neg_lo:[0,1] neg_hi:[0,1]"))
    for i in range(4): a(f"buffer_store_dwordx4 v[{32+4*i}:{35+4*i}], v2, s[{S_W}:{S_W+3}], 0 offen offset:{16*i}")
    a(f"""
    s_mov_b64 exec, -1
    s_waitcnt vmcnt(0) lgkmcnt(0)
    s_barrier
    v_lshrrev_b32 v2, 3, v0
    v_lshlrev_b32 v3, 2, v2
    buffer_load_dword v{vRem}, v3, s[{S_INFO}:{S_INFO+3}], 0 offen
    s_add_u32 s{sBase}, s{sBase}, 288
    s_mov_b32 s3, {RECREG}
    v_mul_u32_u24 v{vRecA}, s3, v2
    v_and_b32 v15, 7, v0
    v_mul_u32_u24 v15, 12, v15
    v_add_u32 v15, s{sBase}, v15
    v_add_u32 v{vRecA}, v{vRecA}, v15
    v_mov_b32 v{vOne}, 4
    s_lshl_b32 s3, s{sW}, 2
    v_bfe_u32 v16, v1, 2, 2
    v_add_u32 v{vS}, s3, v6
    v_add_u32 v{vE}, s3, v16
    v_mov_b32 v16, 0
    v_lshlrev_b32 v3, 2, v0
    v_add_u32 v3, {CNT}, v3
    v_cmp_gt_u32 vcc, 128, v0
    s_mov_b64 exec, vcc
    ds_write_b32 v3, v16
    s_mov_b64 exec, -1
    s_cmp_eq_u32 s{sRM}, 0
    s_cbranch_scc1 K2_NB_NOFLAG
    v_mov_b32 v4, {FLAG}
    v_mov_b32 v5, 5
    ds_write_b32 v4, v5
    K2_NB_NOFLAG:
    s_waitcnt vmcnt(0)
    v_and_b32 v3, 0xffff, v{vRem}
    v_lshrrev_b32 v{vRem}, 16, v{vRem}
    v_add_u32 v{vRecA}, v3, v{vRecA}
    v_sub_u32 v{vRem}, v{vRem}, v15
    """)
    rec_loads(3)
    a("s_waitcnt vmcnt(0) lgkmcnt(0)\ns_barrier\ns_branch K2_BATCH")
    a(f"""
    K2_FINAL:
    """)
    for i in range(8): a(f"v_rcp_f32 v{40+i}, v{40+i}")
    for i in range(4): a(pk('fma', 32 + 2 * i, 32 + 2 * i, 40 + 2 * i, 48 + 2 * i))
    for i in range(8): a(f"v_max_f32 v{32+i}, v{56+i}, v{32+i}")
    for i in range(4): a(f"v_cvt_pk_bf16_f32 v{40+i}, v{32+2*i}, v{33+2*i}")
    a(f"buffer_store_dwordx4 v[40:43], v{vXo}, s[{S_OUT}:{S_OUT+3}], 0 offen{OSTP}")
    if DIAG:
        a("s_waitcnt vmcnt(0)"); st(); st.dump(1, "s2", f"s{sW}", 2, S_REC)
    a("K2_END:\ns_endpgm")

HEADER = open('standalone__edge_featured_mpnn_gatedgcn__graph.s.ref').read().split('; Override launch')[0]

def kd(name, vgpr, sgpr):
    return f""".amdhsa_kernel {name}
  .amdhsa_next_free_vgpr {vgpr}
  .amdhsa_next_free_sgpr {sgpr}
  .amdhsa_accum_offset {(vgpr + 3) // 4 * 4}
  .amdhsa_group_segment_fixed_size 0
  .amdhsa_kernarg_size 96
  .amdhsa_user_sgpr_count 2
  .amdhsa_user_sgpr_kernarg_segment_ptr 1
  .amdhsa_system_sgpr_workgroup_id_x 1
.end_amdhsa_kernel
"""

def build(verbose=False):
    out = HEADER
    out += "; Two launches: prep_kernel (x @ [w_b | w_v] -> gather tables; edges partitioned by destination bucket),\n"
    out += "; agg_kernel (per bucket and feature half: gates, normalised aggregation, residual output).\n"
    out += f"; @launch kernel=prep_kernel grid=({K1_GRID},1,1) block=({K1_BLOCK},1,1) lds={K1_LDS}\n"
    out += f"; @launch kernel=agg_kernel grid=({K2_GRID},1,1) block=({K2_BLOCK},1,1) lds={K2_LDS}\n"
    ks = [("prep_kernel", gen_k1), ("agg_kernel", gen_k2)]
    if OPT.get('PROBE'):
        out += "; @launch kernel=probe_kernel grid=(1,1,1) block=(64,1,1) lds=0\n"; ks.append(("probe_kernel", gen_probe))
    out += '.amdgcn_target "amdgcn-amd-amdhsa--gfx950"\n.text\n'
    for name, g in ks:
        a = Asm(); g(a)
        out += f".globl {name}\n.p2align 8\n.type {name},@function\n" + a.finish(verbose)
    out += '.section .rodata,"a"\n.p2align 6\n' + kd("prep_kernel", 128, 102 if DIAG else 64) + '.p2align 6\n' + kd("agg_kernel", 128, 102 if DIAG else 84)
    if OPT.get('PROBE'): out += '.p2align 6\n' + kd("probe_kernel", 8, 32)
    return out

if __name__ == '__main__':
    args = sys.argv[1:]
    if '--diag' in args: DIAG = True; args.remove('--diag')
    for x in list(args):
        if x.startswith('-D'):
            k, _, val = x[2:].partition('='); OPT[k] = int(val or 1); args.remove(x)
    v = '-v' in args
    if v: args.remove('-v')
    open(args[0], 'w').write(build(v))
```

```python
import sys, struct, math
from asmlib import Asm

def f2u(x): return struct.unpack('<I', struct.pack('<f', x))[0]

N = 12500; E = 400000
NPB = 98; NB = 128
NC = 128; CH = 3128; HCH = CH // 2
RECREG = CH * 12
TBL_H = 0x310000
REC_OFF = 0x800000
OFFS_OFF = 0x1000000
SCR_OFF = 0x1100000
DIAG_OFF = 0x2800000
NEGL2E = f2u(-math.log2(math.e))
TINY = 0x0d800000
CBITS = (127 - 62) << 23
EPSP = f2u(1e-6 * 2.0 ** 62)

G_WG = 128; S_WG = 128; K1_GRID = G_WG + S_WG; K1_BLOCK = 512; K1_LDS = 65536 + 32768 + 32768
K2_GRID = 256; K2_BLOCK = 1024
LMAX = 28; RST = 784
CNT = 0; OFFA = 512; DESC = 1024; ZROW = 1536; EPSR = ZROW + 256; FLAG = ZROW + 768; SYNC = FLAG + 4; FLAG2 = FLAG + 8; MISC = FLAG + 16
RB = 2560; HEAD = 80384; EARR = HEAD + 32768; NPOS = LMAX * 128 + 128; SARR = EARR + NPOS * 8; K2_LDS = SARR + NPOS * 4
assert RB + 99 * RST <= HEAD
WS_SIZE = 0x2800000
NR = 7

assert RST == NPB * 8
DIAG = False
OPT = {}

def ws_shift(a):
    if OPT.get('WSOFF'): a(f"s_add_u32 s26, s26, {OPT['WSOFF'] << 20}\ns_addc_u32 s27, s27, 0")

def srd(a, s, lo, hi, size):
    a(f"s_mov_b32 s{s}, {lo}\ns_and_b32 s{s+1}, {hi}, 0xffff\ns_mov_b32 s{s+2}, {size}\ns_mov_b32 s{s+3}, 0x20000")

def srd_off(a, s, plo, off, size):
    a(f"s_add_u32 s{s}, s{plo}, {off}\ns_addc_u32 s{s+1}, s{plo+1}, 0\ns_and_b32 s{s+1}, s{s+1}, 0xffff")
    a(f"s_mov_b32 s{s+2}, {size}\ns_mov_b32 s{s+3}, 0x20000")

def wave_red(a, v, op):
    for sh in (1, 2, 4, 8):
        a(f"v_{op}_dpp v{v}, v{v}, v{v} row_shr:{sh} row_mask:0xf bank_mask:0xf bound_ctrl:1")
    a(f"v_{op}_dpp v{v}, v{v}, v{v} row_bcast:15 row_mask:0xa bank_mask:0xf")
    a(f"v_{op}_dpp v{v}, v{v}, v{v} row_bcast:31 row_mask:0xc bank_mask:0xf")

def pk(op, d, *srcs, mod=''):
    return f"v_pk_{op}_f32 v[{d}:{d+1}], " + ", ".join(s if isinstance(s, str) else f"v[{s}:{s+1}]" for s in srcs) + mod

def pack_pair(a, h, l, o0, o1, sel0, sel1, cvt=True):
    if cvt: a(f"v_cvt_pk_bf16_f32 v{l}, v{l}, v{l+1}")
    a(f"""
    v_sub_u32_sdwa v{h}, v{h}, v{l} dst_sel:DWORD dst_unused:UNUSED_PAD src0_sel:DWORD src1_sel:WORD_0
    v_sub_u32_sdwa v{h+1}, v{h+1}, v{l} dst_sel:DWORD dst_unused:UNUSED_PAD src0_sel:DWORD src1_sel:WORD_1
    v_cvt_pk_bf16_f32 v{h}, v{h}, v{h+1}
    v_perm_b32 v{o0}, v{h}, v{l}, {sel0}
    v_perm_b32 v{o1}, v{h}, v{l}, {sel1}
    """)

class Stamps:
    def __init__(self, a, base): self.a = a; self.base = base; self.n = 0
    def __call__(self):
        if not DIAG: return
        s = self.base + self.n; self.n += 1
        assert s < 100
        op = 's_memtime' if OPT.get('CYC') else 's_memrealtime'
        self.a(f"{op} s[100:101]\ns_waitcnt lgkmcnt(0)\ns_mov_b32 s{s}, s100")
    def dump(self, kern, wg, swave, vt, srdreg):
        if not DIAG: return
        a = self.a
        a(f"s_load_dwordx2 s[26:27], s[0:1], 88\ns_waitcnt lgkmcnt(0)")
        srd_off(a, srdreg, 26, DIAG_OFF + kern * 0x100000, 0x100000)
        a(f"s_lshl_b32 s3, {wg}, 4\ns_add_u32 s3, s3, {swave}\ns_lshl_b32 s3, s3, 6")
        a(f"s_mov_b64 exec, 1\nv_mov_b32 v{vt}, s3")
        for i in range(self.n):
            a(f"v_mov_b32 v{vt+1}, s{self.base+i}\nbuffer_store_dword v{vt+1}, v{vt}, s[{srdreg}:{srdreg+3}], 0 offen offset:{4*i}\ns_nop 1")

def probe_stamp(a, slot, nm):
    if not OPT.get('PROBE') or OPT['PROBE'] >= 10: return
    a(f"""
    s_cmp_lg_u32 s2, 0
    s_cbranch_scc1 {nm}_NOPROBE
    s_memrealtime s[8:9]
    s_load_dwordx2 s[4:5], s[0:1], 88
    s_waitcnt lgkmcnt(0)
    s_add_u32 s4, s4, {DIAG_OFF + 0x300000 + slot*256}
    s_addc_u32 s5, s5, 0
    v_mov_b32 v2, s8
    v_mov_b32 v3, 0
    s_mov_b64 exec, 1
    global_store_dword v3, v2, s[4:5]
    s_mov_b64 exec, -1
    {nm}_NOPROBE:
    """)

def gen_probe(a):
    P = OPT['PROBE']
    if P < 10:
        a(f"""
        probe_kernel:
        s_cmp_lg_u32 s2, 0
        s_cbranch_scc1 P_END
        s_memrealtime s[8:9]
        s_load_dwordx2 s[4:5], s[0:1], 88
        s_waitcnt lgkmcnt(0)
        s_add_u32 s4, s4, {DIAG_OFF + 0x300000}
        s_addc_u32 s5, s5, 0
        v_mov_b32 v3, 0
        global_load_dword v1, v3, s[4:5]
        global_load_dword v2, v3, s[4:5] offset:256
        s_waitcnt vmcnt(0)
        v_readfirstlane_b32 s10, v1
        v_readfirstlane_b32 s11, v2
        s_nop 4
        s_sub_u32 s12, {'s11' if P == 2 else 's8'}, s10
        """)
        if P == 3:
            a("""
            s_sub_u32 s13, s11, s10
            v_mov_b32 v4, s12
            v_mov_b32 v5, s13
            global_store_dwordx2 v3, v[4:5], s[4:5] offset:512
            s_endpgm
            """)
    else:
        kern = OPT.get('PK', 0); idx = P - 10; nw = 8 if kern == 0 else 16; w0 = OPT.get('PW0', 0); nwg = OPT.get('PNW', 256); kb = OPT.get('PB', 0)
        a(f"""
        probe_kernel:
        s_cmp_lg_u32 s2, 0
        s_cbranch_scc1 P_END
        s_memrealtime s[8:9]
        s_load_dwordx2 s[4:5], s[0:1], 88
        s_waitcnt lgkmcnt(0)
        s_add_u32 s4, s4, {DIAG_OFF}
        s_addc_u32 s5, s5, 0
        v_lshlrev_b32 v3, 10, v0
        v_mov_b32 v4, -1
        v_mov_b32 v5, 0
        """)
        for k in range(4):
            a(f"v_add_u32 v6, {kb*0x100000 + k*65536}, v3\nglobal_load_dword v1, v6, s[4:5]\ns_waitcnt vmcnt(0)\nv_min_u32 v4, v4, v1")
        for k in range(nwg // 64):
            for w in range(nw):
                a(f"v_add_u32 v6, {kern*0x100000 + (w0 + k*64)*1024 + w*64 + idx*4}, v3\nglobal_load_dword v1, v6, s[4:5]\ns_waitcnt vmcnt(0)\nv_max_u32 v5, v5, v1")
        a("v_not_b32 v4, v4")
        wave_red(a, 4, "max_u32"); wave_red(a, 5, "max_u32")
        a("""
        s_nop 1
        v_readlane_b32 s10, v4, 63
        v_readlane_b32 s11, v5, 63
        s_nop 4
        s_not_b32 s10, s10
        s_sub_u32 s12, s11, s10
        s_memrealtime s[8:9]
        s_waitcnt lgkmcnt(0)
        """)
    a(f"""
    s_min_u32 s12, s12, 20000
    s_mul_i32 s12, s12, {100 if P >= 10 else 10}
    P_SPIN:
    s_memrealtime s[14:15]
    s_waitcnt lgkmcnt(0)
    s_sub_u32 s13, s14, s8
    s_cmp_lt_u32 s13, s12
    s_cbranch_scc1 P_SPIN
    P_END:
    s_endpgm
    """)

def w_lane_off(a, d, t0, t1):
    a(f"""
    v_lshrrev_b32 v{t0}, 3, v1
    v_lshlrev_b32 v{t0}, 8, v{t0}
    v_bfe_u32 v{d}, v1, 4, 1
    v_lshlrev_b32 v{d}, 1, v{d}
    v_and_b32 v{t1}, 7, v1
    v_xor_b32 v{d}, v{d}, v{t1}
    v_lshl_add_u32 v{d}, v{d}, 4, v{t0}
    """)

def w_frag_off(a, d, t0, t1, vg):
    a(f"""
    v_bfe_u32 v{t0}, v1, 2, 2
    v_lshl_add_u32 v{d}, v{vg}, 3, v{t0}
    v_lshlrev_b32 v{d}, 7, v{d}
    v_and_b32 v{t1}, 3, v1
    v_lshl_add_u32 v{d}, v{t1}, 3, v{d}
    v_lshrrev_b32 v{t0}, 1, v{t0}
    v_and_b32 v{t1}, 1, v{vg}
    v_lshl_or_b32 v{t0}, v{t1}, 1, v{t0}
    v_lshl_add_u32 v{d}, v{t0}, 5, v{d}
    """)

def gen_k1(a):
    STP = {0: "", 1: " nt", 2: " sc1", 3: " sc0 sc1"}[OPT.get('STP', 2)]
    st = Stamps(a, 64)
    a("prep_kernel:")
    a(f"s_cmp_ge_u32 s2, {K1_GRID}\ns_cbranch_scc1 K1_END")
    probe_stamp(a, 0, "K1")
    if OPT.get('CPRE', 1):
        a(f"""
        s_cmp_ge_u32 s2, {OPT.get('CPREN', 16)}
        s_cbranch_scc1 K1_NOCPRE
        s_getpc_b64 s[4:5]
        K1_PC:
        v_lshlrev_b32 v2, 7, v0
        v_cmp_gt_u32 vcc, CODE_END-K1_PC, v2
        s_and_saveexec_b64 s[6:7], vcc
        s_cbranch_execz K1_CPRE_DONE
        v_mov_b32 v3, s5
        v_add_co_u32 v2, vcc, s4, v2
        v_addc_co_u32 v3, vcc, 0, v3, vcc
        global_load_dword v127, v[2:3], off
        K1_CPRE_DONE:
        s_mov_b64 exec, -1
        K1_NOCPRE:
        """)
    st()
    a("""
    s_load_dwordx16 s[4:19], s[0:1], 0
    s_load_dwordx8 s[20:27], s[0:1], 64
    v_lshrrev_b32 v2, 6, v0
    v_and_b32 v1, 63, v0
    v_readfirstlane_b32 s50, v2
    """)
    a(f"s_cmp_lt_u32 s2, {S_WG}\ns_cbranch_scc1 K1_SORT")
    NT = " nt" if OPT.get('NT', 1) else ""
    XF = [8, 24]; ACC = 40; WF = 104; WA = 120; FA = 124
    XST = 65536; BNC = XST + 32768
    def acc(t, m, ct): return ACC + ((t * 2 + m) * 4 + ct) * 4
    a(f"""
    s_sub_u32 s53, s2, {S_WG}
    s_and_b32 s51, s53, 3
    s_lshl_b32 s51, s51, 5
    s_bfe_u32 s52, s53, 0x10002
    s_lshl_b32 s56, s52, 4
    s_add_u32 s51, s51, s56
    s_lshr_b32 s56, s53, 3
    s_add_u32 s51, s51, s56              ; bucket
    s_mul_i32 s54, s51, {NPB*256}
    s_add_u32 s58, s54, {NPB*256}
    s_min_u32 s58, s58, {N*256}
    s_lshl_b32 s55, s50, 12
    s_add_u32 s56, s54, s55
    s_add_u32 s55, s55, {XST}
    v_lshrrev_b32 v6, 4, v1              ; l>>4
    v_and_b32 v7, 15, v1                 ; l&15
    v_xor_b32 v2, v6, v7
    v_lshlrev_b32 v2, 4, v2              ; ((l&15)^(l>>4))*16
    v_lshl_add_u32 v{FA}, v7, 8, v2
    v_lshl_add_u32 v2, v6, 8, v2
    v_add_u32 v8, s56, v2
    """)
    for q in range(1, 4): a(f"v_xor_b32 v{8+q}, {64*q}, v8")
    w_lane_off(a, 4, 5, 48)
    a("v_xor_b32 v5, 64, v4\ns_mov_b32 m0, s55\ns_waitcnt lgkmcnt(0)")
    ws_shift(a)
    srd(a, 28, "s4", "s5", "s58")
    for q in range(4): a(f"buffer_load_dwordx4 v{8+q}, s[28:31], 0 offen offset:{q*1024}{NT} lds")
    a("""
    s_cmp_lt_u32 s50, 4
    s_cselect_b32 s32, s14, s20
    s_cselect_b32 s33, s15, s21
    s_and_b32 s33, s33, 0xffff
    s_mov_b32 s34, 32768
    s_mov_b32 s35, 0x20000
    s_lshl_b32 s57, s50, 13
    s_mov_b32 m0, s57
    s_bfe_u32 s59, s50, 0x10001
    s_lshl_b32 s59, s59, 7
    s_and_b32 s56, s50, 1
    s_lshl_b32 s56, s56, 14
    s_add_u32 s59, s59, s56
    """)
    for i in range(8):
        if i == 4: a("s_add_u32 s57, s57, 4096\ns_mov_b32 m0, s57\ns_add_u32 s59, s59, 4096")
        a(f"buffer_load_dwordx4 v{4 + (i & 1)}, s[32:35], s59 offen offset:{(i%4)*1024} lds\ns_add_u32 s59, s59, 1024")
    a(f"""
    s_and_b32 s52, s50, 1
    s_lshr_b32 s56, s50, 1
    s_mul_i32 s57, s52, {TBL_H}
    """)
    srd_off(a, 36, 26, "s57", "s58")
    w_frag_off(a, WA, 48, 49, 6)
    a(f"""
    s_lshl_b32 s57, s52, 14
    v_add_u32 v{WA}, s57, v{WA}
    s_lshl_b32 s57, s56, 13
    s_add_u32 s59, s57, {XST}
    v_add_u32 v40, s59, v{FA}
    s_lshl_b32 s59, s50, 12
    s_add_u32 s59, s59, {BNC}
    v_add_u32 v{FA}, s59, v{FA}
    v_add_u32 v2, s59, v2
    s_add_u32 s57, s57, s54
    v_lshlrev_b32 v3, 4, v1
    v_add_u32 v3, s57, v3
    v_add_u32 v7, 4096, v3
    """)
    for k in range(1, 4): a(f"v_xor_b32 v{WA+k}, {32*k}, v{WA}\nv_xor_b32 v{FA+k}, {64*k}, v{FA}\nv_xor_b32 v{40+k}, {64*k}, v40")
    a(f"""
    s_mov_b32 s44, {NEGL2E}
    s_mov_b32 s45, {NEGL2E}
    s_mov_b32 s46, 0x05040100
    s_mov_b32 s47, 0x07060302
    s_xor_b32 s51, s51, 16
    s_mul_i32 s51, s51, {NPB*256}
    v_lshlrev_b32 v4, 7, v0
    v_add_u32 v4, s51, v4
    v_lshlrev_b32 v5, 8, v1
    s_mov_b32 s30, {N*256}
    s_waitcnt vmcnt(0)
    """)
    st()
    a("s_barrier")
    st()
    if OPT.get('PRE', 1):
        a(f"""
        s_cmp_lt_u32 s50, 4
        s_cbranch_scc0 K1_XPRE_DONE
        v_cmp_gt_u32 vcc, {NPB*2}, v0
        s_mov_b64 exec, vcc
        buffer_load_dword v6, v4, s[28:31], 0 offen
        s_mov_b64 exec, -1
        s_branch K1_PRE_DONE
        K1_XPRE_DONE:
        s_cmp_lt_u32 s53, 8
        s_cbranch_scc0 K1_PRE_DONE
        s_cmp_lt_u32 s50, 6
        s_cselect_b32 s32, s12, s18
        s_cselect_b32 s33, s13, s19
        s_and_b32 s33, s33, 0xffff
        s_lshl_b32 s57, s52, 14
        s_bfe_u32 s59, s53, 0x10002
        s_lshl_b32 s59, s59, 7
        s_add_u32 s57, s57, s59
        buffer_load_dword v6, v5, s[32:35], s57 offen
        K1_PRE_DONE:
        """)
    for t in range(2):
        for ks in range(4): a(f"ds_read_b128 v[{XF[t]+4*ks}:{XF[t]+4*ks+3}], v{40+ks} offset:{t*4096}")
    a(f"v_mov_b32 v4, {TINY}\nv_mov_b32 v5, {TINY}\ns_waitcnt lgkmcnt(0)")
    seq = [(ks, m, ct) for ct in range(4) for ks in range(4) for m in range(2)]
    def rd(s):
        ks, m, ct = seq[s]; b = WF + 4 * (s % 4); o = m * 32768 + ks * 4096
        a(f"ds_read_b64_tr_b16 v[{b}:{b+1}], v{WA+ct} offset:{o}\nds_read_b64_tr_b16 v[{b+2}:{b+3}], v{WA+ct} offset:{o+512}")
    for s in range(3): rd(s)
    for s in range(32):
        if s + 3 < 32: rd(s + 3)
        a(f"s_waitcnt lgkmcnt({2*min(3, 31-s)})")
        ks, m, ct = seq[s]; b = WF + 4 * (s % 4)
        for t in range(2):
            d = acc(t, m, ct); c = "0" if ks == 0 else f"v[{d}:{d+3}]"
            a(f"v_mfma_f32_16x16x32_bf16 v[{d}:{d+3}], v[{b}:{b+3}], v[{XF[t]+4*ks}:{XF[t]+4*ks+3}], {c}")
    st()
    for k in range(1, 4): a(f"v_xor_b32 v{WA+k}, {64*k}, v2")
    for t in range(2):
        for ct in range(4):
            O = XF[t] + 4 * ct
            for rp in (0, 2):
                h = acc(t, 0, ct) + rp; l = acc(t, 1, ct) + rp
                a(pk('fma', h, h, "s[44:45]", 4))
                pack_pair(a, h, l, O + rp, O + rp + 1, "s46", "s47")
            if t == 1 and ct == 0:
                for q in range(4):
                    a(f"s_waitcnt lgkmcnt({3-q})")
                    a(f"buffer_store_dwordx4 v[{XF[0]+4*q}:{XF[0]+4*q+3}], v3, s[36:39], 0 offen offset:{q*1024}{STP}")
            a(f"ds_write_b128 v{FA+ct}, v[{O}:{O+3}]")
        a("s_waitcnt lgkmcnt(0)")
        for q in range(4): a(f"ds_read_b128 v[{XF[t]+4*q}:{XF[t]+4*q+3}], v{2 if q == 0 else WA+q} offset:{q*1024}")
    for q in range(4):
        a(f"s_waitcnt lgkmcnt({3-q})")
        a(f"buffer_store_dwordx4 v[{XF[1]+4*q}:{XF[1]+4*q+3}], v7, s[36:39], 0 offen offset:{q*1024}{STP}")
    st()
    if DIAG:
        a("s_waitcnt vmcnt(0)"); st(); st.dump(0, "s2", "s50", 2, 60)
    a("s_endpgm")
    st = Stamps(a, 65)
    IMG = 1024
    DST = 8; SRC = 16; EA = 24; BK = 40; RK = 48; SN = 56
    a("K1_SORT:")
    a(f"""
    s_and_b32 s52, s2, 7
    s_lshl_b32 s52, s52, 4
    s_lshr_b32 s51, s2, 3
    s_add_u32 s51, s51, s52              ; chunk c
    s_mul_i32 s52, s51, {CH}
    v_lshl_add_u32 v2, v0, 2, s52
    v_add_u32 v3, {HCH}, v2
    s_mov_b32 s53, {E}
    v_cmp_gt_u32 vcc, {HCH//4}, v0
    v_cmp_gt_u32 s[48:49], s53, v2
    v_cmp_gt_u32 s[56:57], s53, v3
    s_and_b64 s[48:49], s[48:49], vcc
    s_and_b64 s[56:57], s[56:57], vcc
    v_lshlrev_b32 v4, 3, v2
    v_lshlrev_b32 v5, 3, v3
    v_lshlrev_b32 v2, 2, v2
    v_lshlrev_b32 v3, 2, v3
    s_sub_u32 s58, s53, s52
    s_min_u32 s58, s58, {CH}
    s_mul_i32 s58, s58, 12
    s_waitcnt lgkmcnt(0)
    """)
    ws_shift(a)
    srd(a, 28, "s10", "s11", E * 4)
    a(f"buffer_load_dwordx4 v[{DST}:{DST+3}], v2, s[28:31], 0 offen{NT}\nbuffer_load_dwordx4 v[{DST+4}:{DST+7}], v3, s[28:31], 0 offen{NT}")
    srd(a, 32, "s8", "s9", E * 4)
    a(f"buffer_load_dwordx4 v[{SRC}:{SRC+3}], v2, s[32:35], 0 offen{NT}\nbuffer_load_dwordx4 v[{SRC+4}:{SRC+7}], v3, s[32:35], 0 offen{NT}")
    srd(a, 36, "s6", "s7", E * 8)
    for g in range(2):
        for k in range(2): a(f"buffer_load_dwordx4 v[{EA+8*g+4*k}:{EA+8*g+4*k+3}], v{4+g}, s[36:39], 0 offen offset:{16*k}{NT}")
    a(f"""
    v_mov_b32 v6, 0
    v_lshlrev_b32 v7, 2, v0
    v_cmp_gt_u32 vcc, 128, v0
    s_and_saveexec_b64 s[60:61], vcc
    ds_write_b32 v7, v6
    s_mov_b64 exec, -1
    s_mul_i32 s53, s51, {RECREG}
    s_add_u32 s53, s53, {REC_OFF}
    """)
    srd_off(a, 40, 26, "s53", "s58")
    srd(a, 44, "s26", "s27", SCR_OFF)
    a(f"""
    s_mov_b32 s54, 42800
    s_mov_b32 s55, {NPB}
    v_mov_b32 v5, 12
    v_lshlrev_b32 v6, 3, v1
    s_waitcnt lgkmcnt(0)
    s_barrier
    s_waitcnt vmcnt(6)
    """)
    st()
    for g in range(2):
        a(f"s_mov_b64 exec, s[{48 if g == 0 else 56}:{49 if g == 0 else 57}]")
        for i in range(4 * g, 4 * g + 4):
            a(f"""
            v_mul_u32_u24 v{BK+i}, s54, v{DST+i}
            v_lshrrev_b32 v{BK+i}, 22, v{BK+i}           ; bucket
            v_mul_u32_u24 v{SN+i}, s55, v{BK+i}
            v_lshlrev_b32 v{BK+i}, 2, v{BK+i}
            ds_add_rtn_u32 v{RK+i}, v{BK+i}, v5
            v_sub_u32 v{SN+i}, v{DST+i}, v{SN+i}
            """)
    a("s_mov_b64 exec, -1\ns_waitcnt vmcnt(4)")
    for i in range(8): a(f"v_lshl_or_b32 v{SN+i}, v{SRC+i}, 8, v{SN+i}")
    a("""
    s_waitcnt lgkmcnt(0)
    s_barrier
    ds_read_b64 v[64:65], v6
    s_waitcnt lgkmcnt(0)
    v_add_u32 v67, v64, v65
    v_mov_b32 v68, v67
    """)
    wave_red(a, 68, "add_u32")
    a(f"""
    v_sub_u32 v70, v68, v67
    v_add_u32 v71, v70, v64
    v_add_u32 v72, {IMG}, v70
    v_add_u32 v73, {IMG}, v71
    ds_write_b64 v6, v[72:73] offset:512
    """)
    for g in range(2):
        a(f"s_mov_b64 exec, s[{48 if g == 0 else 56}:{49 if g == 0 else 57}]")
        for i in range(4 * g, 4 * g + 4): a(f"ds_read_b32 v{BK+i}, v{BK+i} offset:512")
    a("s_waitcnt vmcnt(0)")
    for g in range(2):
        a(f"s_mov_b64 exec, s[{48 if g == 0 else 56}:{49 if g == 0 else 57}]")
        for i in range(4 * g, 4 * g + 4):
            a(f"""
            s_waitcnt lgkmcnt({min(15, 7 - i + 2 * i)})
            v_add_u32 v{BK+i}, v{BK+i}, v{RK+i}
            ds_write2_b32 v{BK+i}, v{EA+2*i}, v{EA+2*i+1} offset0:0 offset1:1
            ds_write_b32 v{BK+i}, v{SN+i} offset:8
            """)
    a(f"""
    s_mov_b64 exec, -1
    s_cmp_lg_u32 s50, 7
    s_cbranch_scc1 K1_NOINFO
    s_mov_b32 s53, 43691
    v_mul_u32_u24 v64, s53, v64
    v_mul_u32_u24 v65, s53, v65
    v_lshrrev_b32 v64, 19, v64
    v_lshrrev_b32 v65, 19, v65
    v_lshl_or_b32 v70, v64, 16, v70
    v_lshl_or_b32 v71, v65, 16, v71
    s_lshl_b32 s53, s51, 2
    s_add_u32 s53, s53, {OFFS_OFF}
    v_lshlrev_b32 v7, 10, v1
    v_add_u32 v7, s53, v7
    buffer_store_dword v70, v7, s[44:47], 0 offen
    buffer_store_dword v71, v7, s[44:47], 0 offen offset:512
    s_cmp_lg_u32 s51, 0
    s_cbranch_scc1 K1_NOINFO
    v_mov_b32 v70, 0x7f000000
    v_lshlrev_b32 v7, 2, v1
    v_add_u32 v7, {N*256}, v7
    v_add_u32 v71, {TBL_H}, v7
    buffer_store_dword v70, v7, s[44:47], 0 offen
    buffer_store_dword v70, v71, s[44:47], 0 offen
    K1_NOINFO:
    v_lshlrev_b32 v7, 4, v0
    s_waitcnt lgkmcnt(0)
    s_barrier
    """)
    st()
    NCP = (RECREG + K1_BLOCK * 16 - 1) // (K1_BLOCK * 16)
    for i in range(NCP): a(f"ds_read_b128 v[{8+4*i}:{11+4*i}], v7 offset:{IMG + i*K1_BLOCK*16}")
    for i in range(1, NCP): a(f"v_add_u32 v{40+i}, {i*K1_BLOCK*16}, v7")
    for i in range(NCP):
        a(f"s_waitcnt lgkmcnt({NCP-1-i})")
        a(f"buffer_store_dwordx4 v[{8+4*i}:{11+4*i}], v{7 if i == 0 else 40+i}, s[40:43], 0 offen{STP}")
    st()
    if DIAG:
        a("s_waitcnt vmcnt(0)"); st(); st.base = 64; st.n += 1; st.dump(0, "s2", "s50", 2, 60)
    a("K1_END:\ns_endpgm")

def gen_k2(a):
    OSTP = {0: "", 1: " nt", 2: " sc1", 3: " sc0 sc1"}[OPT.get('OSTP', 2)]
    st = Stamps(a, 84)
    S_WS, S_W, S_TBL, S_WC, S_X, S_OUT = 28, 36, 40, 48, 52, 56
    MK = 60
    sBase, sRST, sH, sR0, sW, sL, sRem, sNB, sRM, sT = 74, 75, 76, 77, 78, 79, 80, 81, 82, 83
    M0_, M1_, PAT, TMP, sMsk, sInf, RMM, L2E, SEL0, SEL1, EMK, EPS, sWo = 4, 6, 8, 10, 12, 13, 14, 16, 18, 19, 20, 22, 24
    REC = 64
    CA = 92
    XF = 32; WF = 48; ACC = 100
    WCS = EARR + 32768
    vRem, vRecA, vOne, vZ = 116, 117, 118, 19
    LD = 32; T = 64; V = 72; D = 80; ND = 84; W = 88; NUM = 92; DEN = 96; CEA = 100; EE = 104; R = 108
    IA, IB, vRow, vS = 116, 117, 118, 119
    vE, vEs, vJ16 = 20, 21, 22
    WC = 24; CC = 26; SEL = 28
    XR = 8; vXo = 12; vCntA = 13; vCe = 14; vTch = 23
    XFL = [2, 3, 4, 5, 15, 16, 17, 18]
    T1 = OPT.get('TOUCH1', 2); T2 = OPT.get('TOUCH2', 2)
    TBLSZ = (N + 1) * 256
    def rounds(n, lbl, body, first_check=3):
        for k in range(n):
            a(f"s_mov_b64 exec, s[{MK+2*k}:{MK+2*k+1}]")
            if k >= first_check: a(f"s_cbranch_execz {lbl}")
            a(body(k))
        a(f"{lbl}:\ns_mov_b64 exec, -1")
    def rec_masks(n):
        for k in range(n): a(f"v_cmp_lt_i32 s[{MK+2*k}:{MK+2*k+1}], {8*k}, v{vRem}")
    def rec_issue(n, lbl):
        rounds(n, lbl, lambda k: f"buffer_load_dwordx3 v[{REC+4*k}:{REC+4*k+2}], v{vRecA}, s[{S_WS}:{S_WS+3}], 0 offen offset:{96*k}")
    a("agg_kernel:")
    a(f"s_cmp_ge_u32 s2, {K2_GRID}\ns_cbranch_scc1 K2_END")
    probe_stamp(a, 1, "K2")
    st()
    a(f"""
    s_load_dwordx2 s[{S_WS}:{S_WS+1}], s[0:1], 88
    s_load_dwordx2 s[{S_X}:{S_X+1}], s[0:1], 0
    s_load_dwordx2 s[{S_W}:{S_W+1}], s[0:1], 32
    s_load_dwordx2 s[4:5], s[0:1], 56
    s_load_dwordx2 s[{S_WC}:{S_WC+1}], s[0:1], 48
    s_load_dwordx2 s[{S_OUT}:{S_OUT+1}], s[0:1], 72
    s_setprio 3
    v_lshrrev_b32 v2, 6, v0
    v_and_b32 v1, 63, v0
    v_readfirstlane_b32 s{sW}, v2
    s_bfe_u32 s{sH}, s2, 0x10002
    s_lshr_b32 s{sR0}, s2, 3
    s_and_b32 s3, s2, 3
    s_lshl_b32 s3, s3, 5
    s_add_u32 s{sR0}, s{sR0}, s3          ; bucket
    s_lshl_b32 s{sInf}, s{sR0}, 9
    s_add_u32 s{sInf}, s{sInf}, {OFFS_OFF}
    s_mul_i32 s{sR0}, s{sR0}, {NPB*256}   ; first row of the bucket * 256
    s_mov_b32 s{S_WS+2}, {WS_SIZE}
    s_mov_b32 s{S_WS+3}, 0x20000
    s_mov_b32 s3, {RECREG}
    v_lshrrev_b32 v2, 3, v0               ; segment / finalisation node
    v_and_b32 v15, 7, v0                  ; sub
    v_lshl_add_u32 v3, v2, 2, s{sInf}     ; info offset
    v_mul_u32_u24 v{vRecA}, s3, v2
    v_mad_u32_u24 v{vRecA}, v15, 12, v{vRecA}
    v_add_u32 v{vRecA}, {REC_OFF}, v{vRecA}
    v_lshrrev_b32 v6, 4, v1               ; l>>4
    v_and_b32 v7, 15, v1                  ; l&15
    v_xor_b32 v16, v6, v7
    v_lshlrev_b32 v16, 4, v16
    v_mov_b32 v{vOne}, 4
    v_mov_b32 v{vZ}, 0
    s_cmp_lt_u32 s{sW}, 8
    s_cbranch_scc1 K2_GPRE
    s_cmp_lt_u32 s{sW}, 13
    s_cbranch_scc1 K2_PRE_DONE
    ; ---- waves 13..15: small LDS init (counters .. flags zeroed, eps row, trash row gate factor = 1)
    v_subrev_u32 v76, {13*64}, v0
    v_lshlrev_b32 v5, 4, v76
    v_subrev_u32 v77, {(ZROW+512)//16}, v76
    v_cmp_gt_u32 vcc, 16, v77
    v_mov_b32 v68, {EPSP}
    v_add_u32 v4, {RB + NPB*RST + 512 - MISC}, v5
    v_cndmask_b32 v68, 0, v68, vcc
    v_cmp_lt_u32 vcc, {MISC//16 - 1}, v76
    v_cmp_gt_u32 s[{TMP}:{TMP+1}], {MISC//16 + 16 - 128}, v77
    v_cndmask_b32 v68, v68, 1.0, vcc
    v_cndmask_b32 v5, v5, v4, vcc
    v_cmp_gt_u32 vcc, {MISC//16 + 16}, v76
    v_mov_b32 v69, v68
    v_mov_b32 v70, v68
    v_mov_b32 v71, v68
    s_mov_b64 exec, vcc
    ds_write_b128 v5, v[68:71]
    s_mov_b64 exec, -1
    s_branch K2_PRE_DONE
    ; ---- waves 0..7 stage the bucket's x rows, the w_a | w_u halves and w_c
    K2_GPRE:
    v_lshl_add_u32 v32, v6, 8, v16        ; row-linear pattern
    s_lshl_b32 s3, s{sW}, 12
    s_add_u32 s{sT}, s3, s{sR0}
    v_add_u32 v32, s{sT}, v32
    s_add_u32 s{sT}, s{sR0}, {NPB*256}
    s_min_u32 s{S_X+2}, s{sT}, {N*256}
    s_mov_b32 s{S_X+3}, 0x20000
    v_xor_b32 v33, 64, v32
    v_xor_b32 v34, 128, v32
    v_xor_b32 v35, 192, v32
    """.replace(f"    v_cmp_gt_u32 s[{TMP}:{TMP+1}], {MISC//16 + 16 - 128}, v77\n", ""))
    w_lane_off(a, 36, 37, 38)
    a(f"""
    v_xor_b32 v37, 64, v36
    v_lshlrev_b32 v38, 4, v1
    s_mov_b32 s{S_W+2}, 32768
    s_mov_b32 s{S_W+3}, 0x20000
    s_mov_b32 s{S_WC+2}, 1024
    s_mov_b32 s{S_WC+3}, 0x20000
    s_add_u32 s{sRem}, s3, {EARR}
    s_add_u32 s{sL}, s3, {HEAD}
    s_and_b32 s3, s{sW}, 3
    s_lshl_b32 s3, s3, 13
    s_lshl_b32 s{sT}, s{sH}, 7
    s_add_u32 s{sWo}, s3, s{sT}
    s_add_u32 s{sWo+1}, s{sWo}, 1024
    s_add_u32 s{sWo+2}, s{sWo}, 2048
    s_add_u32 s{sWo+3}, s{sWo}, 3072
    s_mov_b32 m0, {WCS}
    K2_PRE_DONE:
    s_mul_i32 s{sT}, s{sH}, {TBL_H}
    s_cmp_lt_u32 s{sW}, 8
    s_waitcnt lgkmcnt(0)
    buffer_load_dword v{vRem}, v3, s[{S_WS}:{S_WS+3}], 0 offen
    s_barrier
    s_cbranch_scc0 K2_NODMA
    s_cmp_lg_u32 s{sW}, 7
    s_cbranch_scc1 K2_NOWC
    buffer_load_dwordx4 v38, s[{S_WC}:{S_WC+3}], 0 offen lds
    K2_NOWC:
    s_mov_b32 m0, s{sRem}
    s_cmp_lt_u32 s{sW}, 4
    """)
    for q in range(4): a(f"buffer_load_dwordx4 v{32+q}, s[{S_X}:{S_X+3}], 0 offen offset:{q*1024} lds")
    a(f"s_mov_b32 m0, s{sL}\ns_cselect_b64 s[{S_W}:{S_W+1}], s[{S_W}:{S_W+1}], s[4:5]")
    for i in range(4): a(f"buffer_load_dwordx4 v{36 + (i & 1)}, s[{S_W}:{S_W+3}], s{sWo+i} offen offset:{i*1024} lds")
    a(f"""
    s_waitcnt vmcnt(8)
    s_branch K2_INFO
    K2_NODMA:
    s_waitcnt vmcnt(0)
    K2_INFO:
    v_and_b32 v3, 0xffff, v{vRem}
    v_lshrrev_b32 v{vRem}, 16, v{vRem}
    v_add_u32 v{vRecA}, v3, v{vRecA}
    v_sub_u32 v{vRem}, v{vRem}, v15
    """)
    rec_masks(NR)
    a(f"""
    s_add_u32 s{S_TBL}, s{S_WS}, s{sT}
    s_addc_u32 s{S_TBL+1}, s{S_WS+1}, 0
    s_mov_b32 s{S_TBL+3}, 0x20000
    s_cmp_lt_u32 s{sW}, 8
    s_cbranch_scc0 K2_NOSIG
    s_waitcnt vmcnt(0)
    s_mov_b64 exec, 1
    ds_add_u32 v{vZ}, v{vOne} offset:{SYNC}
    K2_NOSIG:
    """)
    if OPT.get('FINE'): st()
    rec_issue(NR, "K2_RI")
    a(f"""
    s_setprio 0
    s_lshr_b32 s3, s2, 3
    s_mul_i32 s3, s3, 782
    s_mov_b32 s{sT}, {64*(8 - T1)}
    s_cmp_lt_u32 s{sW}, 8
    s_cselect_b32 s{sT}, s{sT}, {64*(16 - T2) - 64*T1}
    s_sub_u32 s3, s3, s{sT}
    v_add_lshl_u32 v{vTch}, v0, s3, 7
    s_mov_b32 s{S_TBL+2}, {TBLSZ}
    s_sub_u32 s{sL}, s{sW}, {8 - T1}
    s_cmp_lt_u32 s{sL}, {T1}
    s_cbranch_scc0 K2_NOT1
    buffer_load_dword v{vTch}, v{vTch}, s[{S_TBL}:{S_TBL+3}], 0 offen
    K2_NOT1:
    v_cmp_lt_i32 vcc, {NR*8}, v{vRem}
    s_mov_b32 s{sBase}, 0
    s_mov_b32 s{sNB}, 0
    s_mov_b32 s{sRST}, {RST}
    s_mov_b32 s{sMsk}, 0xffffff00
    s_mov_b64 exec, vcc
    ds_write_b32 v{vZ}, v{vOne} offset:{FLAG2}
    s_mov_b64 exec, -1
    s_mov_b32 s{L2E}, {NEGL2E}
    s_mov_b32 s{L2E+1}, {NEGL2E}
    s_mov_b32 s{SEL0}, 0x07060100
    s_mov_b32 s{SEL1}, 0x07060302
    s_mov_b64 s[{RMM}:{RMM+1}], 0
    v_lshl_add_u32 v{XR}, s{sH}, 3, v15
    v_lshlrev_b32 v18, 8, v2
    v_lshl_add_u32 v{vXo}, v{XR}, 4, v18
    v_and_b32 v3, 15, v2
    v_xor_b32 v{XR}, v{XR}, v3
    v_lshl_add_u32 v{XR}, v{XR}, 4, v18
    v_add_u32 v{XR}, {EARR}, v{XR}
    v_lshlrev_b32 v{vCntA}, 3, v1
    v_lshlrev_b32 v{vJ16}, 4, v7
    s_lshl_b32 s3, s{sH}, 7
    s_add_u32 s3, s3, {WCS}
    v_lshl_add_u32 v{WC}, v7, 3, s3
    v_lshl_add_u32 v{WC}, v6, 1, v{WC}
    s_lshr_b32 s3, s{sW}, 1
    s_lshl_b32 s{sT}, s3, 12
    s_add_u32 s{sT}, s{sT}, {EARR}
    v_lshl_add_u32 v124, v7, 8, v16
    v_add_u32 v124, s{sT}, v124
    v_xor_b32 v125, 64, v124
    v_xor_b32 v126, 128, v124
    v_xor_b32 v127, 192, v124
    s_and_b32 s{sT}, s{sW}, 1
    s_lshl_b32 s{sT}, s{sT}, 6
    v_and_b32 v18, 3, v1
    v_bfe_u32 v17, v1, 3, 2
    v_bfe_u32 v3, v1, 2, 2
    v_lshlrev_b32 v16, 3, v18
    v_lshl_or_b32 v16, v17, 5, v16
    v_lshl_or_b32 v16, v3, 7, v16
    v_lshl_or_b32 v16, v6, 10, v16
    v_xor_b32 v16, s{sT}, v16
    v_add_u32 v16, {HEAD}, v16
    v_xor_b32 v17, 32, v16
    v_lshl_add_u32 v2, s3, 4, v7          ; node
    v_cmp_gt_u32 vcc, {NPB}, v2
    s_lshl_b32 s{sT}, s{sT}, 1
    v_mad_u32_u24 v{vCe}, v6, 16, s{sT}
    s_mov_b64 s[{TMP}:{TMP+1}], vcc
    v_mad_u32_u24 v{vCe}, v2, s{sRST}, v{vCe}
    v_cmp_eq_u32 s[{EMK}:{EMK+1}], v6, v18
    s_lshl_b32 s3, s{sW}, 2
    v_add_u32 v{vS}, s3, v6
    v_add_u32 v{vE}, s3, v3
    """)
    st()
    a(f"""
    K2_POLL:
    ds_read_b32 v18, v{vZ} offset:{SYNC}
    s_waitcnt lgkmcnt(0)
    v_readfirstlane_b32 s3, v18
    s_cmp_lt_u32 s3, 32
    s_cbranch_scc1 K2_POLL
    """)
    st()
    a(f"ds_read_b128 v[{XR}:{XR+3}], v{XR}")
    for k in (3, 2, 1, 0): a(f"ds_read_u16 v{WC+k}, v{WC} offset:{256*k}")
    a(f"s_cmp_ge_u32 s{sW}, 14\ns_cbranch_scc1 K2_NOGEMM")
    for ks in range(4): a(f"ds_read_b128 v[{XF+4*ks}:{XF+4*ks+3}], v{124+ks}")
    seq = [(ks, m, c) for ks in range(4) for m in range(2) for c in range(2)]
    def rd(s):
        ks, m, c = seq[s]; b = WF + 4 * (s % 4); o = m * 16384 + ks * 4096
        a(f"ds_read_b64_tr_b16 v[{b}:{b+1}], v{16+c} offset:{o}\nds_read_b64_tr_b16 v[{b+2}:{b+3}], v{16+c} offset:{o+512}")
    rd(0); rd(1)
    a(f"v_mov_b32 v4, {f2u(-62.0)}\nv_mov_b32 v5, {f2u(-62.0)}\ns_mov_b32 s3, {f2u(60.0 / math.log2(math.e))}")
    for s in range(0, 16, 2):
        if s + 2 < 16: rd(s + 2); rd(s + 3)
        a(f"s_waitcnt lgkmcnt({4 if s + 2 < 16 else 0})")
        for z in (s, s + 1):
            ks, m, c = seq[z]; b = WF + 4 * (z % 4); d = ACC + (m * 2 + c) * 4
            a(f"v_mfma_f32_16x16x32_bf16 v[{d}:{d+3}], v[{b}:{b+3}], v[{XF+4*ks}:{XF+4*ks+3}], {'0' if ks == 0 else 'v[%d:%d]' % (d, d+3)}")
    a(f"""
    v_max3_f32 v2, |v{ACC}|, |v{ACC+1}|, |v{ACC+2}|
    v_max3_f32 v3, |v{ACC+3}|, |v{ACC+4}|, |v{ACC+5}|
    v_max3_f32 v2, v2, |v{ACC+6}|, |v{ACC+7}|
    v_max_f32 v2, v2, v3
    v_cmp_lt_f32 vcc, s3, v2
    """)
    for i in range(4): a(pk('fma', XF + 2 * i, ACC + 2 * i, f"s[{L2E}:{L2E+1}]", 4))
    a(f"s_and_b64 s[{RMM}:{RMM+1}], vcc, s[{TMP}:{TMP+1}]")
    for i in range(8): a(f"v_exp_f32 v{XF+i}, v{XF+i}")
    for i in range(4): a(f"v_cvt_pk_bf16_f32 v{ACC+8+2*i}, v{ACC+8+2*i}, v{ACC+9+2*i}")
    for i in range(8): a(f"v_perm_b32 v{WF+i}, v{XF+i}, v{ACC+8+(i&6)}, s{SEL0 + (i&1)}")
    a(f"""
    s_mov_b64 exec, s[{TMP}:{TMP+1}]
    ds_write_b128 v{vCe}, v[{WF}:{WF+3}] offset:{RB+512}
    ds_write_b128 v{vCe}, v[{WF+4}:{WF+7}] offset:{RB+576}
    s_mov_b64 exec, s[{RMM}:{RMM+1}]
    ds_write_b32 v{vZ}, v{vOne} offset:{FLAG}
    K2_NOGEMM:
    """)
    st()
    a(f"s_cmp_lt_u32 s{sL}, {T1}\ns_cbranch_scc1 K2_W1\ns_waitcnt vmcnt(0)\nK2_W1:\ns_waitcnt vmcnt(1)")
    st()
    a("K2_BATCH:")
    rounds(NR, "K2_AT_DONE", lambda k: f"""
        v_lshlrev_b32_sdwa v{CA+k}, 2, v{REC+4*k+2} dst_sel:DWORD dst_unused:UNUSED_PAD src0_sel:DWORD src1_sel:BYTE_0
        ds_add_rtn_u32 v{REC+4*k+3}, v{CA+k}, v{vOne}""")
    a("s_waitcnt lgkmcnt(0)\ns_barrier")
    st()
    a(f"""
    ds_read_b64 v[2:3], v{vCntA}
    ds_read2_b32 v[16:17], v{vZ} offset0:{FLAG//4 - 512} offset1:{FLAG2//4 - 512}
    """.replace(f"ds_read2_b32 v[16:17], v{vZ} offset0:{FLAG//4 - 512} offset1:{FLAG2//4 - 512}", f"ds_read_b96 v[16:18], v{vZ} offset:{FLAG}"))
    if T2:
        a(f"""
        s_cmp_ge_u32 s{sW}, {16 - T2}
        s_cbranch_scc0 K2_NOTOUCH
        buffer_load_dword v{vTch}, v{vTch}, s[{S_TBL}:{S_TBL+3}], 0 offen
        K2_NOTOUCH:
        """)
    a(f"""
    s_waitcnt lgkmcnt(0)
    v_add_u32 v4, 4, v2
    v_add_u32 v5, 4, v3
    v_and_b32 v4, -8, v4
    v_and_b32 v5, -8, v5
    v_add_u32 v120, v4, v5
    v_add_u32 v121, v4, v5
    v_readfirstlane_b32 s{sRM}, v16
    v_readfirstlane_b32 s{sRem}, v18
    """)
    wave_red(a, 121, "add_u32")
    a(f"""
    v_sub_u32 v16, v121, v120
    v_readlane_b32 s{sT}, v121, 63
    v_add_u32 v16, {SARR}, v16
    v_add_u32 v17, v16, v4
    ds_write_b64 v{vCntA}, v[16:17] offset:{OFFA}
    s_cmp_gt_u32 s{sT}, {LMAX*512}
    s_cselect_b32 s{sRem}, 1, s{sRem}
    s_cmp_lg_u32 s{sRem}, 0
    s_cbranch_scc1 K2_SLOWINIT
    K2_DECIDED:
    s_add_u32 s{sL}, s{sT}, 511
    s_lshr_b32 s{sL}, s{sL}, 9
    """)
    if OPT.get('FINE'): st()
    rounds(NR, "K2_RD_DONE", lambda k: f"ds_read_b32 v{CA+k}, v{CA+k} offset:{OFFA}")
    a(f"""
    s_lshl_b32 s3, s{sL}, 3               ; L*8
    v_lshl_add_u32 v{vRow}, v{vS}, 9, v{vJ16}
    v_mul_u32_u24 v{vS}, s3, v{vS}
    s_lshl_b32 s3, s3, 1
    v_mul_u32_u24 v{vE}, s3, v{vE}
    v_add_u32 v{vS}, {SARR}, v{vS}
    v_add_u32 v{vE}, {EARR - ZROW}, v{vE}
    v_add_u32 v{vRow}, {HEAD - RB}, v{vRow}
    v_cndmask_b32 v{vE}, 0, v{vE}, s[{EMK}:{EMK+1}]
    v_lshl_add_u32 v18, v7, 3, v{vS}
    s_mov_b32 s{PAT}, {(EARR - 2*SARR) & 0xffffffff}
    s_cmp_gt_u32 s{sW}, 3
    s_cbranch_scc1 K2_NOAUX
    v_mov_b32 v124, 0
    v_mov_b32 v125, 0
    v_mov_b32 v122, {N*256 + NPB}
    s_cmp_lt_u32 s{sW}, 2
    s_cbranch_scc1 K2_AUXPAD
    s_lshl_b32 s{sRem}, s{sW}, 8
    s_add_u32 s{sRem}, s{sRem}, s{sT}
    s_add_u32 s{sRem}, s{sRem}, {SARR - 512}
    v_lshl_add_u32 v123, v1, 2, s{sRem}
    s_branch K2_AUXW
    K2_AUXPAD:
    s_cmp_eq_u32 s{sW}, 0
    s_cselect_b64 vcc, -1, 0
    v_cndmask_b32 v126, v3, v2, vcc
    v_cndmask_b32 v123, v17, v16, vcc
    v_add_u32 v123, v123, v126
    v_and_b32 v126, 4, v126
    v_cmp_ne_u32 vcc, 0, v126
    s_mov_b64 exec, vcc
    K2_AUXW:
    ds_write_b32 v123, v122
    v_lshl_add_u32 v123, v123, 1, s{PAT}
    ds_write_b64 v123, v[124:125]
    K2_NOAUX:
    s_waitcnt lgkmcnt(0)
    """)
    if OPT.get('FINE'): st()
    rounds(NR, "K2_SC_DONE", lambda k: f"v_add_u32 v{CA+k}, v{CA+k}, v{REC+4*k+3}\nds_write_b32 v{CA+k}, v{REC+4*k+2}")
    a(f"""
    s_cmp_eq_u32 s{sRM}, 4
    s_cbranch_scc1 K2_RMFIX
    K2_NORM:
    s_waitcnt lgkmcnt(0)
    s_barrier
    """)
    st()
    a(f"ds_read_b64 v[2:3], v{vS}")
    for p in range(1, 4): a(f"ds_read_b64 v[{R+2*p}:{R+2*p+1}], v{vS} offset:{8*p}")
    a(f"""
    ds_read2_b32 v[4:5], v18 offset0:0 offset1:2
    ds_read2_b32 v[18:19], v18 offset0:32 offset1:34
    ds_read_b64 v[{R}:{R+1}], v{vS} offset:32
    s_waitcnt lgkmcnt(6)
    """)
    def first_gathers(ps):
        for p in ps:
            s0 = 2 if p == 0 else R + 2 * p
            a(f"""
            v_and_or_b32 v{IA}, v{s0}, s{sMsk}, v{vJ16}
            v_and_or_b32 v{IB}, v{s0+1}, s{sMsk}, v{vJ16}
            buffer_load_dwordx4 v[{LD+8*p}:{LD+8*p+3}], v{IA}, s[{S_TBL}:{S_TBL+3}], 0 offen
            buffer_load_dwordx4 v[{LD+8*p+4}:{LD+8*p+7}], v{IB}, s[{S_TBL}:{S_TBL+3}], 0 offen
            """)
    first_gathers([0])
    a(f"""
    v_and_b32 v3, 0x7f, v2
    v_mad_u32_u24 v3, v3, s{sRST}, v{vJ16}
    ds_read_b128 v[{CEA}:{CEA+3}], v3 offset:{RB+512}
    """)
    rounds(NR, "K2_SE_DONE", lambda k: f"v_lshl_add_u32 v{CA+k}, v{CA+k}, 1, s{PAT}\nds_write_b64 v{CA+k}, v[{REC+4*k}:{REC+4*k+1}]")
    a(f"""
    s_cmp_lg_u32 s{sW}, 0
    s_cbranch_scc1 K2_NODESC
    s_max_u32 s{sRem}, s{sL}, 1
    v_cvt_f32_u32 v120, s{sRem}
    v_rcp_f32 v120, v120
    v_subrev_u32 v16, {SARR}, v16
    v_subrev_u32 v17, {SARR}, v17
    v_mul_f32 v120, {f2u(2.0**20)}, v120
    v_lshrrev_b32 v16, 3, v16
    v_lshrrev_b32 v17, 3, v17
    v_cvt_u32_f32 v120, v120
    v_lshrrev_b32 v121, 3, v121
    v_add_u32 v120, 2, v120
    s_sub_u32 s{sRem}, s{sRem}, 1
    """)
    for i, q in enumerate((16, 17, 121)):
        a(f"v_add_u32 v{122+i}, s{sRem}, v{q}\nv_mul_lo_u32 v{122+i}, v{122+i}, v120\nv_lshrrev_b32 v{122+i}, 20, v{122+i}")
    a(f"v_lshlrev_b32 v125, 1, v1\nv_mul_u32_u24 v125, s{sRST}, v125\nv_add_u32 v125, {RB}, v125\nv_mov_b32 v120, {EPSR}")
    for i, (q0, q1) in enumerate(((16, 17), (17, 121))):
        a(f"""
        v_mul_u32_u24 v126, s{sL}, v{122+i}
        v_cmp_ne_u32 vcc, v126, v{q0}
        v_cmp_ne_u32 s[{TMP}:{TMP+1}], v{q0}, v{q1}
        s_and_b64 vcc, vcc, s[{TMP}:{TMP+1}]
        v_sub_u32 v127, v{123+i}, v{122+i}
        v_cndmask_b32 v126, v120, v125, vcc
        v_lshl_or_b32 v126, v{122+i}, 18, v126
        v_lshl_or_b32 v{2+i}, v127, 25, v126
        v_add_u32 v125, {RST}, v125
        """)
    a(f"""
    ds_write_b64 v{vCntA}, v[2:3] offset:{DESC}
    K2_NODESC:
    s_cmp_lg_u32 s{sBase}, 0
    s_cbranch_scc1 K2_NOLATE
    s_mov_b32 s{S_OUT+2}, {N*256}
    s_mov_b32 s{S_OUT+3}, 0x20000
    s_mov_b32 s{EPS}, {EPSP}
    s_mov_b32 s{EPS+1}, {EPSP}
    v_add_u32 v{vXo}, s{sR0}, v{vXo}
    """)
    for k in range(4): a(f"v_lshlrev_b32 v{WC+k}, 16, v{WC+k}\nv_mul_f32 v{WC+k}, s{L2E}, v{WC+k}")
    a(f"""
    v_cvt_pk_bf16_f32 v{WC}, v{WC}, v{WC+1}
    v_cvt_pk_bf16_f32 v{WC+1}, v{WC+2}, v{WC+3}
    v_mov_b32 v{CC}, {CBITS}
    v_mov_b32 v{CC+1}, {CBITS}
    v_bfe_u32 v120, v1, 2, 2
    v_and_b32 v121, 3, v1
    v_mov_b32 v122, 0x3f80
    v_cmp_eq_u32 vcc, v6, v120
    v_cmp_eq_u32 s[{M0_}:{M0_+1}], 0, v121
    v_cmp_eq_u32 s[{M1_}:{M1_+1}], 1, v121
    v_cndmask_b32 v122, 0, v122, vcc
    v_cmp_eq_u32 s[{TMP}:{TMP+1}], 2, v121
    v_cmp_eq_u32 vcc, 3, v121
    v_cndmask_b32 v{SEL}, 0, v122, s[{M0_}:{M0_+1}]
    v_cndmask_b32 v{SEL+1}, 0, v122, s[{M1_}:{M1_+1}]
    v_cndmask_b32 v{SEL+2}, 0, v122, s[{TMP}:{TMP+1}]
    v_cndmask_b32 v{SEL+3}, 0, v122, vcc
    v_cndmask_b32 v{vEs}, 0, 64, s[{EMK}:{EMK+1}]
    K2_NOLATE:
    """)
    for i in range(4): a(f"v_pk_mov_b32 v[{NUM+2*i}:{NUM+2*i+1}], 0, 0")
    a(f"""
    s_mov_b32 s{PAT}, 0x00010001
    s_mov_b32 s{PAT+1}, 0x00010001
    s_sub_u32 s{sRem}, s{sL}, 1
    s_and_b32 s{sT}, s{sRem}, 15
    s_lshl_b64 s[{TMP}:{TMP+1}], s[{PAT}:{PAT+1}], s{sT}
    s_waitcnt lgkmcnt(0)
    v_xor_b32 v4, v4, v5
    v_xor_b32 v18, v18, v19
    v_and_b32 v4, 0x7f, v4
    v_and_b32 v18, 0x7f, v18
    v_cmp_ne_u32 s[{M0_}:{M0_+1}], 0, v4
    v_cmp_ne_u32 s[{M1_}:{M1_+1}], 0, v18
    s_barrier
    ds_read_b128 v[{EE}:{EE+3}], v{vE} offset:{ZROW}
    s_cmp_eq_u32 s{sL}, 0
    s_cbranch_scc1 K2_EMPTY
    """)
    st()
    first_gathers([1, 2, 3])
    a(f"""
    s_cmp_lt_u32 s{sRem}, 16
    s_cselect_b64 vcc, s[{TMP}:{TMP+1}], 0
    s_cselect_b64 s[{TMP}:{TMP+1}], 0, s[{TMP}:{TMP+1}]
    s_or_b64 s[{M0_}:{M0_+1}], s[{M0_}:{M0_+1}], vcc
    s_or_b64 s[{M1_}:{M1_+1}], s[{M1_}:{M1_+1}], s[{TMP}:{TMP+1}]
    """)
    def fin_prep():
        a(f"""
        v_lshrrev_b32 v19, 3, v0
        v_lshlrev_b32 v7, 2, v19
        v_and_b32 v14, 7, v0
        v_lshlrev_b32 v14, 5, v14             ; 32*m
        v_mad_u32_u24 v19, v19, s{sRST}, v14
        ds_read_b32 v7, v7 offset:{DESC}
        ds_read_b128 v[120:123], v19 offset:{RB+512}
        ds_read_b128 v[124:127], v19 offset:{RB+528}
        v_add_u32 v6, {ZROW}, v14
        """)
        for i in range(4):
            a(f"v_lshlrev_b32 v{XFL[2*i]}, 16, v{XR+i}\nv_and_b32 v{XFL[2*i+1]}, 0xffff0000, v{XR+i}")
        a(f"""
        s_waitcnt lgkmcnt(0)
        v_and_b32 v19, 0x3ffff, v7
        v_add_u32 v19, v19, v14
        v_bfe_u32 v{D}, v7, 18, 7
        v_lshl_add_u32 v14, v{D}, 9, v14
        v_add_u32 v14, {HEAD}, v14
        v_lshrrev_b32 v7, 25, v7
        v_cmp_ne_u32 vcc, 0, v7
        """)
        for i in range(8): a(f"v_lshlrev_b32 v{120+i}, 16, v{120+i}")
        a("v_cndmask_b32 v6, v6, v14, vcc")
        for i in range(8): a(f"v_add_f32 v{120+i}, v{XFL[i]}, v{120+i}")
    fin_prep()
    a(f"""
    s_sub_u32 s{sT}, s{sL}, 17
    s_cmp_gt_u32 s{sRem}, 3
    s_cselect_b32 s{S_TBL+2}, {TBLSZ}, 0
    s_waitcnt vmcnt(6)
    v_mfma_f32_16x16x16_bf16 v[{T}:{T+3}], v[{EE}:{EE+1}], v[{WC}:{WC+1}], v[{LD}:{LD+3}]
    v_mfma_f32_16x16x16_bf16 v[{T+4}:{T+7}], v[{EE+2}:{EE+3}], v[{WC}:{WC+1}], v[{LD+4}:{LD+7}]
    s_setprio 3
    s_cmp_lg_u32 s{sRM}, 0
    ds_read_b128 v[{EE}:{EE+3}], v{vE} offset:{ZROW+16}
    s_nop 3
    """)
    st()
    a(f"s_cbranch_scc1 K2_LOOP_1")
    def loop(rm):
        a(f"K2_LOOP_{rm}:")
        for u in range(4):
            la = LD + 8 * u; lb = la + 4; na = LD + 8 * ((u + 1) % 4); nb = na + 4
            ru = R + 2 * u; rn = R + 2 * ((u + 1) % 4)
            if rm:
                a("s_waitcnt lgkmcnt(0)")
                for i in range(4): a(pk('add', T + 2 * i, T + 2 * i, CEA + (2 * i) % 4))
            a(f"""
            v_mfma_f32_16x16x32_bf16 v[{V}:{V+3}], v[{SEL}:{SEL+3}], v[{la}:{la+3}], 0
            v_exp_f32 v{T}, v{T}
            v_exp_f32 v{T+1}, v{T+1}
            v_mfma_f32_16x16x32_bf16 v[{V+4}:{V+7}], v[{SEL}:{SEL+3}], v[{lb}:{lb+3}], 0
            """)
            for r in range(2, 8): a(f"v_exp_f32 v{T+r}, v{T+r}")
            a(f"""
            s_waitcnt lgkmcnt(0)
            v_and_or_b32 v{IA}, v{ru}, s{sMsk}, v{vJ16}
            v_and_or_b32 v{IB}, v{ru+1}, s{sMsk}, v{vJ16}
            buffer_load_dwordx4 v[{la}:{la+3}], v{IA}, s[{S_TBL}:{S_TBL+3}], 0 offen
            buffer_load_dwordx4 v[{lb}:{lb+3}], v{IB}, s[{S_TBL}:{S_TBL+3}], 0 offen
            """)
            for i in range(4):
                a(pk('fma', T + 2 * i, T + 2 * i, CC if rm else CEA + (2 * i) % 4, CC, mod=' clamp'))
            for i in (0, 2): a(pk('mul', D + i, T + i, T + 4 + i))
            for i in (0, 2): a(pk('add', ND + i, T + i, T + 4 + i))
            for i in (0, 2): a(pk('mul', W + i, V + i, T + 4 + i))
            for i in (0, 2): a(pk('fma', W + i, V + 4 + i, T + i, W + i))
            a(f"""
            s_waitcnt vmcnt(6)
            v_mfma_f32_16x16x16_bf16 v[{T}:{T+3}], v[{EE}:{EE+1}], v[{WC}:{WC+1}], v[{na}:{na+3}]
            v_rcp_f32 v{D}, v{D}
            v_rcp_f32 v{D+1}, v{D+1}
            v_mfma_f32_16x16x16_bf16 v[{T+4}:{T+7}], v[{EE+2}:{EE+3}], v[{WC}:{WC+1}], v[{nb}:{nb+3}]
            v_rcp_f32 v{D+2}, v{D+2}
            v_rcp_f32 v{D+3}, v{D+3}
            s_and_b64 s[{TMP}:{TMP+1}], s[{M0_}:{M0_+1}], s[{PAT}:{PAT+1}]
            """)
            for i in (0, 2): a(pk('fma', DEN + i, ND + i, D + i, DEN + i))
            for i in (0, 2): a(pk('fma', NUM + i, W + i, D + i, NUM + i))
            a(f"""
            s_cbranch_scc1 K2_FL_{rm}_{u}
            K2_BK_{rm}_{u}:
            ds_read_b64 v[{rn}:{rn+1}], v{vS} offset:{8*(u+5)}
            ds_read_b128 v[{EE}:{EE+3}], v{vE} offset:{ZROW + 16*(u+2)}
            s_lshr_b64 s[{M0_}:{M0_+1}], s[{M0_}:{M0_+1}], 1
            s_sub_u32 s{sRem}, s{sRem}, 1
            s_cmp_gt_u32 s{sRem}, 3
            s_cselect_b32 s{S_TBL+2}, {TBLSZ}, 0
            """)
            if u == 3:
                a(f"""
                v_add_u32 v{vS}, 32, v{vS}
                v_add_u32 v{vE}, v{vEs}, v{vE}
                s_cmp_eq_u32 s{sRem}, s{sT}
                s_cselect_b64 s[{M0_}:{M0_+1}], s[{M1_}:{M1_+1}], s[{M0_}:{M0_+1}]
                s_cmp_ge_u32 s{sRem}, 16
                s_cbranch_scc1 K2_LOOP_{rm}
                s_setprio 2
                s_cmp_ge_u32 s{sRem}, 8
                s_cbranch_scc1 K2_LOOP_{rm}
                s_setprio 1
                s_cmp_ge_u32 s{sRem}, 4
                s_cbranch_scc1 K2_LOOP_{rm}
                s_setprio 0
                s_branch K2_LOOP_{rm}
                """)
        for u in range(4):
            rn = R + 2 * ((u + 1) % 4)
            a(f"""
            K2_FL_{rm}_{u}:
            s_mul_i32 exec_lo, s{TMP}, 0xffff
            s_mul_i32 exec_hi, s{TMP+1}, 0xffff
            ds_write_b128 v{vRow}, v[{NUM}:{NUM+3}] offset:{RB}
            ds_write_b128 v{vRow}, v[{DEN}:{DEN+3}] offset:{RB+256}
            v_and_b32 v{IA}, 0x7f, v{rn}
            v_mad_u32_u24 v{vRow}, v{IA}, s{sRST}, v{vJ16}
            s_cmp_lg_u32 s{sRem}, 0
            ds_read_b128 v[{CEA}:{CEA+3}], v{vRow} offset:{RB+512}
            """)
            for i in range(2): a(f"v_pk_mov_b32 v[{NUM+2*i}:{NUM+2*i+1}], 0, 0")
            for i in range(2): a(f"v_pk_mov_b32 v[{DEN+2*i}:{DEN+2*i+1}], s[{EPS}:{EPS+1}], s[{EPS}:{EPS+1}]")
            a(f"s_mov_b64 exec, -1\ns_cbranch_scc1 K2_BK_{rm}_{u}")
            if not (rm == 0 and u == 3): a("s_branch K2_LOOP_DONE")
    if OPT.get('ALIGN', 1): a(".p2align 6")
    loop(0)
    a("K2_LOOP_DONE:\ns_setprio 0")
    st()
    a(f"""
    v_cmp_gt_u32 s[{TMP}:{TMP+1}], s{sRST}, v0
    s_waitcnt vmcnt(0) lgkmcnt(0)
    s_barrier
    """)
    st()
    a(f"""
    s_mov_b64 exec, s[{TMP}:{TMP+1}]
    ds_read_b128 v[40:43], v19 offset:256
    ds_read_b128 v[72:75], v6 offset:256
    ds_read_b128 v[44:47], v19 offset:272
    ds_read_b128 v[76:79], v6 offset:272
    ds_read_b128 v[32:35], v19
    ds_read_b128 v[64:67], v6
    ds_read_b128 v[36:39], v19 offset:16
    ds_read_b128 v[68:71], v6 offset:16
    v_cmp_lt_u32 vcc, 1, v7
    s_or_b32 s3, s{sNB}, s{sBase}
    s_cselect_b64 s[{M0_}:{M0_+1}], -1, vcc
    s_waitcnt lgkmcnt(4)
    """)
    for i in range(4, 8): a(pk('add', 32 + 2 * i, 32 + 2 * i, 64 + 2 * i))
    a(f"s_cmp_lg_u64 s[{M0_}:{M0_+1}], 0\ns_cbranch_scc1 K2_RARE_FIN")
    for i in range(8): a(f"v_rcp_f32 v{40+i}, v{40+i}")
    a("s_waitcnt lgkmcnt(0)")
    for i in range(4): a(pk('add', 32 + 2 * i, 32 + 2 * i, 64 + 2 * i))
    a("K2_FINAL:")
    for i in range(4): a(pk('fma', 32 + 2 * i, 32 + 2 * i, 40 + 2 * i, 120 + 2 * i))
    for i in range(8): a(f"v_max_f32 v{32+i}, v{XFL[i]}, v{32+i}")
    for i in range(4): a(f"v_cvt_pk_bf16_f32 v{40+i}, v{32+2*i}, v{33+2*i}")
    a(f"buffer_store_dwordx4 v[40:43], v{vXo}, s[{S_OUT}:{S_OUT+3}], 0 offen{OSTP}")
    if DIAG:
        a("s_waitcnt vmcnt(0)"); st(); st.dump(1, "s2", f"s{sW}", 2, S_WS)
    a("K2_END:\ns_endpgm")
    a("K2_EMPTY:")
    fin_prep()
    a("s_branch K2_LOOP_DONE")
    a(f"""
    K2_RMFIX:
    s_cmp_ge_u32 s{sW}, 14
    s_cbranch_scc1 K2_NORM
    v_mov_b32 v4, {TINY}
    v_mov_b32 v5, {TINY}
    s_mov_b32 s{SEL0}, 0x05040100
    """)
    for i in range(4): a(pk('fma', ACC + 2 * i, ACC + 2 * i, f"s[{L2E}:{L2E+1}]", 4))
    for i in range(4): pack_pair(a, ACC + 2 * i, ACC + 8 + 2 * i, WF + 2 * i, WF + 2 * i + 1, f"s{SEL0}", f"s{SEL1}", cvt=False)
    a(f"""
    s_lshr_b32 s3, s{sW}, 1
    v_lshl_add_u32 v4, s3, 4, v7
    v_cmp_gt_u32 vcc, {NPB}, v4
    s_mov_b64 exec, vcc
    ds_write_b128 v{vCe}, v[{WF}:{WF+3}] offset:{RB+512}
    ds_write_b128 v{vCe}, v[{WF+4}:{WF+7}] offset:{RB+576}
    s_mov_b64 exec, -1
    s_branch K2_NORM
    """)
    loop(1)
    a(f"""
    K2_SLOWINIT:
    s_cmp_lg_u32 s{sNB}, 0
    s_cbranch_scc1 K2_DECIDED
    v_lshl_add_u32 v2, v1, 3, s{sInf}
    buffer_load_dwordx2 v[2:3], v2, s[{S_WS}:{S_WS+3}], 0 offen
    s_waitcnt vmcnt(0)
    v_lshrrev_b32 v2, 16, v2
    v_lshrrev_b32 v3, 16, v3
    v_max_u32 v2, v2, v3
    """)
    wave_red(a, 2, "max_u32")
    a(f"""
    v_readlane_b32 s3, v2, 63
    s_add_u32 s3, s3, 23
    s_mul_i32 s3, s3, 43691
    s_lshr_b32 s{sNB}, s3, 20
    """)
    for k in range(3, NR): a(f"s_mov_b64 s[{MK+2*k}:{MK+2*k+1}], 0")
    a(f"""
    s_barrier
    v_mov_b32 v2, 0
    v_mov_b32 v3, 0
    ds_write_b64 v{vCntA}, v[2:3]
    s_waitcnt lgkmcnt(0)
    s_barrier
    s_branch K2_BATCH
    K2_RARE_FIN:
    s_waitcnt lgkmcnt(0)
    """)
    for i in range(4): a(pk('add', 32 + 2 * i, 32 + 2 * i, 64 + 2 * i))
    a(f"""
    s_cbranch_vccz K2_HEADS_DONE
    K2_MORE_HEADS:
    s_mov_b64 exec, vcc
    v_add_u32 v14, 512, v14
    v_subrev_u32 v7, 1, v7
    ds_read_b128 v[64:67], v14
    ds_read_b128 v[68:71], v14 offset:16
    ds_read_b128 v[72:75], v14 offset:256
    ds_read_b128 v[76:79], v14 offset:272
    v_cmp_lt_u32 vcc, 1, v7
    s_waitcnt lgkmcnt(0)
    """)
    for i in range(8): a(pk('add', 32 + 2 * i, 32 + 2 * i, 64 + 2 * i))
    a(f"""
    s_cbranch_vccnz K2_MORE_HEADS
    s_mov_b64 exec, s[{TMP}:{TMP+1}]
    K2_HEADS_DONE:
    s_cmp_eq_u32 s{sNB}, 0
    s_cbranch_scc1 K2_RCP
    s_sub_u32 s{sNB}, s{sNB}, 1
    s_lshl_b32 s3, s2, 16
    s_add_u32 s3, s3, {SCR_OFF}
    v_lshl_add_u32 v48, v0, 6, s3
    s_cmp_eq_u32 s{sBase}, 0
    s_cbranch_scc1 K2_NOLOAD
    """)
    for i in range(4): a(f"buffer_load_dwordx4 v[{64+4*i}:{67+4*i}], v48, s[{S_WS}:{S_WS+3}], 0 offen offset:{16*i}")
    a("s_waitcnt vmcnt(0)")
    for i in range(8): a(pk('add', 32 + 2 * i, 32 + 2 * i, 64 + 2 * i))
    a(f"""
    K2_NOLOAD:
    s_cmp_lg_u32 s{sNB}, 0
    s_cbranch_scc1 K2_NEXT
    K2_RCP:
    """)
    for i in range(8): a(f"v_rcp_f32 v{40+i}, v{40+i}")
    a("s_nop 0\ns_branch K2_FINAL\nK2_NEXT:")
    for i in range(4): a(pk('add', 40 + 2 * i, 40 + 2 * i, f"s[{EPS}:{EPS+1}]", mod=" neg_lo:[0,1] neg_hi:[0,1]"))
    for i in range(4): a(f"buffer_store_dwordx4 v[{32+4*i}:{35+4*i}], v48, s[{S_WS}:{S_WS+3}], 0 offen offset:{16*i}")
    a(f"""
    s_mov_b64 exec, -1
    s_waitcnt vmcnt(0) lgkmcnt(0)
    s_barrier
    v_lshrrev_b32 v2, 3, v0
    v_lshl_add_u32 v3, v2, 2, s{sInf}
    buffer_load_dword v{vRem}, v3, s[{S_WS}:{S_WS+3}], 0 offen
    s_add_u32 s{sBase}, s{sBase}, 24
    s_mov_b32 s3, {RECREG}
    v_mul_u32_u24 v{vRecA}, s3, v2
    v_and_b32 v15, 7, v0
    v_add_u32 v15, s{sBase}, v15
    v_mad_u32_u24 v{vRecA}, v15, 12, v{vRecA}
    v_add_u32 v{vRecA}, {REC_OFF}, v{vRecA}
    v_mov_b32 v{vOne}, 4
    v_mov_b32 v{vZ}, 0
    v_lshrrev_b32 v6, 4, v1
    v_and_b32 v7, 15, v1
    s_lshl_b32 s3, s{sW}, 2
    v_bfe_u32 v16, v1, 2, 2
    v_add_u32 v{vS}, s3, v6
    v_add_u32 v{vE}, s3, v16
    v_mov_b32 v2, 0
    v_mov_b32 v3, 0
    ds_write_b64 v{vCntA}, v[2:3]
    s_mov_b32 s{S_TBL+2}, {TBLSZ}
    s_cmp_eq_u32 s{sRM}, 0
    s_cbranch_scc1 K2_NB_NOFLAG
    v_mov_b32 v5, 5
    ds_write_b32 v{vZ}, v5 offset:{FLAG}
    K2_NB_NOFLAG:
    s_waitcnt vmcnt(0)
    v_and_b32 v3, 0xffff, v{vRem}
    v_lshrrev_b32 v{vRem}, 16, v{vRem}
    v_add_u32 v{vRecA}, v3, v{vRecA}
    v_sub_u32 v{vRem}, v{vRem}, v15
    """)
    rec_masks(3); rec_issue(3, "K2_RI_SLOW")
    a("s_waitcnt vmcnt(0) lgkmcnt(0)\ns_barrier\ns_branch K2_BATCH\nCODE_END:")

HEADER = open('standalone__edge_featured_mpnn_gatedgcn__graph.s.ref').read().split('; Override launch')[0]

def kd(name, vgpr, sgpr):
    return f""".amdhsa_kernel {name}
  .amdhsa_next_free_vgpr {vgpr}
  .amdhsa_next_free_sgpr {sgpr}
  .amdhsa_accum_offset {(vgpr + 3) // 4 * 4}
  .amdhsa_group_segment_fixed_size 0
  .amdhsa_kernarg_size 96
  .amdhsa_user_sgpr_count 2
  .amdhsa_user_sgpr_kernarg_segment_ptr 1
  .amdhsa_system_sgpr_workgroup_id_x 1
.end_amdhsa_kernel
"""

def build(verbose=False):
    out = HEADER
    out += "; Two launches: prep_kernel (x @ [w_b | w_v] -> gather tables; edges partitioned by destination bucket),\n"
    out += "; agg_kernel (per bucket and feature half: gates, normalised aggregation, residual output).\n"
    out += f"; @launch kernel=prep_kernel grid=({K1_GRID},1,1) block=({K1_BLOCK},1,1) lds={K1_LDS}\n"
    out += f"; @launch kernel=agg_kernel grid=({K2_GRID},1,1) block=({K2_BLOCK},1,1) lds={K2_LDS}\n"
    ks = [("prep_kernel", gen_k1), ("agg_kernel", gen_k2)]
    if OPT.get('PROBE'):
        out += "; @launch kernel=probe_kernel grid=(1,1,1) block=(64,1,1) lds=0\n"; ks.append(("probe_kernel", gen_probe))
    out += '.amdgcn_target "amdgcn-amd-amdhsa--gfx950"\n.text\n'
    for name, g in ks:
        a = Asm(); g(a)
        out += f".globl {name}\n.p2align 8\n.type {name},@function\n" + a.finish(verbose)
    out += '.section .rodata,"a"\n.p2align 6\n' + kd("prep_kernel", 128, 102 if DIAG else 64) + '.p2align 6\n' + kd("agg_kernel", 128, 102 if DIAG else 84)
    if OPT.get('PROBE'): out += '.p2align 6\n' + kd("probe_kernel", 8, 32)
    return out

if __name__ == '__main__':
    args = sys.argv[1:]
    if '--diag' in args: DIAG = True; args.remove('--diag')
    for x in list(args):
        if x.startswith('-D'):
            k, _, val = x[2:].partition('='); OPT[k] = int(val or 1); args.remove(x)
    v = '-v' in args
    if v: args.remove('-v')
    open(args[0], 'w').write(build(v))
```

```python
import sys, struct, math
from asmlib import Asm

def f2u(x): return struct.unpack('<I', struct.pack('<f', x))[0]

N = 12500; E = 400000
NPB = 98; NB = 128
NC = 128; CH = 3128; HCH = CH // 2
RECREG = CH * 12
TBL_H = 0x310000
REC_OFF = 0x800000
OFFS_OFF = 0x1000000
SCR_OFF = 0x1100000
DIAG_OFF = 0x2800000
NEGL2E = f2u(-math.log2(math.e))
TINY = 0x0d800000
CBITS = (127 - 62) << 23
EPSP = f2u(1e-6 * 2.0 ** 62)

G_WG = 128; S_WG = 128; K1_GRID = G_WG + S_WG; K1_BLOCK = 512; K1_LDS = 65536 + 32768 + 32768
K2_GRID = 256; K2_BLOCK = 1024
LMAX = 28; RST = 784
CNT = 0; OFFA = 512; DESC = 1024; ZROW = 1536; EPSR = ZROW + 256; FLAG = ZROW + 768; SYNC = FLAG + 4; FLAG2 = FLAG + 8; MISC = FLAG + 16
RB = 2560; HEAD = 80384; EARR = HEAD + 32768; NPOS = LMAX * 128 + 128; SARR = EARR + NPOS * 8; K2_LDS = SARR + NPOS * 4
assert RB + 99 * RST <= HEAD
WS_SIZE = 0x2800000
NR = 7

assert RST == NPB * 8
DIAG = False
OPT = {}

def ws_shift(a):
    if OPT.get('WSOFF'): a(f"s_add_u32 s26, s26, {OPT['WSOFF'] << 20}\ns_addc_u32 s27, s27, 0")

def srd(a, s, lo, hi, size):
    a(f"s_mov_b32 s{s}, {lo}\ns_and_b32 s{s+1}, {hi}, 0xffff\ns_mov_b32 s{s+2}, {size}\ns_mov_b32 s{s+3}, 0x20000")

def srd_off(a, s, plo, off, size):
    a(f"s_add_u32 s{s}, s{plo}, {off}\ns_addc_u32 s{s+1}, s{plo+1}, 0\ns_and_b32 s{s+1}, s{s+1}, 0xffff")
    a(f"s_mov_b32 s{s+2}, {size}\ns_mov_b32 s{s+3}, 0x20000")

def wave_red(a, v, op):
    for sh in (1, 2, 4, 8):
        a(f"v_{op}_dpp v{v}, v{v}, v{v} row_shr:{sh} row_mask:0xf bank_mask:0xf bound_ctrl:1")
    a(f"v_{op}_dpp v{v}, v{v}, v{v} row_bcast:15 row_mask:0xa bank_mask:0xf")
    a(f"v_{op}_dpp v{v}, v{v}, v{v} row_bcast:31 row_mask:0xc bank_mask:0xf")

def pk(op, d, *srcs, mod=''):
    return f"v_pk_{op}_f32 v[{d}:{d+1}], " + ", ".join(s if isinstance(s, str) else f"v[{s}:{s+1}]" for s in srcs) + mod

def pack_pair(a, h, l, o0, o1, sel0, sel1, cvt=True):
    if cvt: a(f"v_cvt_pk_bf16_f32 v{l}, v{l}, v{l+1}")
    a(f"""
    v_sub_u32_sdwa v{h}, v{h}, v{l} dst_sel:DWORD dst_unused:UNUSED_PAD src0_sel:DWORD src1_sel:WORD_0
    v_sub_u32_sdwa v{h+1}, v{h+1}, v{l} dst_sel:DWORD dst_unused:UNUSED_PAD src0_sel:DWORD src1_sel:WORD_1
    v_cvt_pk_bf16_f32 v{h}, v{h}, v{h+1}
    v_perm_b32 v{o0}, v{h}, v{l}, {sel0}
    v_perm_b32 v{o1}, v{h}, v{l}, {sel1}
    """)

class Stamps:
    def __init__(self, a, base): self.a = a; self.base = base; self.n = 0
    def __call__(self, cyc=False):
        if not DIAG: return
        s = self.base + self.n; self.n += 1
        assert s < 100
        op = 's_memtime' if (OPT.get('CYC') or cyc) else 's_memrealtime'
        self.a(f"{op} s[100:101]\ns_waitcnt lgkmcnt(0)\ns_mov_b32 s{s}, s100")
    def dump(self, kern, wg, swave, vt, srdreg):
        if not DIAG: return
        a = self.a
        a(f"s_load_dwordx2 s[26:27], s[0:1], 88\ns_waitcnt lgkmcnt(0)")
        srd_off(a, srdreg, 26, DIAG_OFF + kern * 0x100000, 0x100000)
        a(f"s_lshl_b32 s3, {wg}, 4\ns_add_u32 s3, s3, {swave}\ns_lshl_b32 s3, s3, 6")
        a(f"s_mov_b64 exec, 1\nv_mov_b32 v{vt}, s3")
        for i in range(self.n):
            a(f"v_mov_b32 v{vt+1}, s{self.base+i}\nbuffer_store_dword v{vt+1}, v{vt}, s[{srdreg}:{srdreg+3}], 0 offen offset:{4*i}\ns_nop 1")

def probe_stamp(a, slot, nm):
    if not OPT.get('PROBE') or OPT['PROBE'] >= 10: return
    a(f"""
    s_cmp_lg_u32 s2, 0
    s_cbranch_scc1 {nm}_NOPROBE
    s_memrealtime s[8:9]
    s_load_dwordx2 s[4:5], s[0:1], 88
    s_waitcnt lgkmcnt(0)
    s_add_u32 s4, s4, {DIAG_OFF + 0x300000 + slot*256}
    s_addc_u32 s5, s5, 0
    v_mov_b32 v2, s8
    v_mov_b32 v3, 0
    s_mov_b64 exec, 1
    global_store_dword v3, v2, s[4:5]
    s_mov_b64 exec, -1
    {nm}_NOPROBE:
    """)

def gen_probe(a):
    P = OPT['PROBE']
    if P < 10:
        a(f"""
        probe_kernel:
        s_cmp_lg_u32 s2, 0
        s_cbranch_scc1 P_END
        s_memrealtime s[8:9]
        s_load_dwordx2 s[4:5], s[0:1], 88
        s_waitcnt lgkmcnt(0)
        s_add_u32 s4, s4, {DIAG_OFF + 0x300000}
        s_addc_u32 s5, s5, 0
        v_mov_b32 v3, 0
        global_load_dword v1, v3, s[4:5]
        global_load_dword v2, v3, s[4:5] offset:256
        s_waitcnt vmcnt(0)
        v_readfirstlane_b32 s10, v1
        v_readfirstlane_b32 s11, v2
        s_nop 4
        s_sub_u32 s12, {'s11' if P == 2 else 's8'}, s10
        """)
        if P == 3:
            a("""
            s_sub_u32 s13, s11, s10
            v_mov_b32 v4, s12
            v_mov_b32 v5, s13
            global_store_dwordx2 v3, v[4:5], s[4:5] offset:512
            s_endpgm
            """)
    else:
        kern = OPT.get('PK', 0); idx = P - 10; nw = 8 if kern == 0 else 16; w0 = OPT.get('PW0', 0); nwg = OPT.get('PNW', 256); kb = OPT.get('PB', 0)
        a(f"""
        probe_kernel:
        s_cmp_lg_u32 s2, 0
        s_cbranch_scc1 P_END
        s_memrealtime s[8:9]
        s_load_dwordx2 s[4:5], s[0:1], 88
        s_waitcnt lgkmcnt(0)
        s_add_u32 s4, s4, {DIAG_OFF}
        s_addc_u32 s5, s5, 0
        v_lshlrev_b32 v3, 10, v0
        v_mov_b32 v4, -1
        v_mov_b32 v5, 0
        """)
        for k in range(4):
            a(f"v_add_u32 v6, {kb*0x100000 + k*65536}, v3\nglobal_load_dword v1, v6, s[4:5]\ns_waitcnt vmcnt(0)\nv_min_u32 v4, v4, v1")
        for k in range(nwg // 64):
            for w in range(nw):
                a(f"v_add_u32 v6, {kern*0x100000 + (w0 + k*64)*1024 + w*64 + idx*4}, v3\nglobal_load_dword v1, v6, s[4:5]\ns_waitcnt vmcnt(0)\nv_max_u32 v5, v5, v1")
        a("v_not_b32 v4, v4")
        wave_red(a, 4, "max_u32"); wave_red(a, 5, "max_u32")
        a("""
        s_nop 1
        v_readlane_b32 s10, v4, 63
        v_readlane_b32 s11, v5, 63
        s_nop 4
        s_not_b32 s10, s10
        s_sub_u32 s12, s11, s10
        s_memrealtime s[8:9]
        s_waitcnt lgkmcnt(0)
        """)
    a(f"""
    s_min_u32 s12, s12, 20000
    s_mul_i32 s12, s12, {100 if P >= 10 else 10}
    P_SPIN:
    s_memrealtime s[14:15]
    s_waitcnt lgkmcnt(0)
    s_sub_u32 s13, s14, s8
    s_cmp_lt_u32 s13, s12
    s_cbranch_scc1 P_SPIN
    P_END:
    s_endpgm
    """)

def w_lane_off(a, d, t0, t1):
    a(f"""
    v_lshrrev_b32 v{t0}, 3, v1
    v_lshlrev_b32 v{t0}, 8, v{t0}
    v_bfe_u32 v{d}, v1, 4, 1
    v_lshlrev_b32 v{d}, 1, v{d}
    v_and_b32 v{t1}, 7, v1
    v_xor_b32 v{d}, v{d}, v{t1}
    v_lshl_add_u32 v{d}, v{d}, 4, v{t0}
    """)

def w_frag_off(a, d, t0, t1, vg):
    a(f"""
    v_bfe_u32 v{t0}, v1, 2, 2
    v_lshl_add_u32 v{d}, v{vg}, 3, v{t0}
    v_lshlrev_b32 v{d}, 7, v{d}
    v_and_b32 v{t1}, 3, v1
    v_lshl_add_u32 v{d}, v{t1}, 3, v{d}
    v_lshrrev_b32 v{t0}, 1, v{t0}
    v_and_b32 v{t1}, 1, v{vg}
    v_lshl_or_b32 v{t0}, v{t1}, 1, v{t0}
    v_lshl_add_u32 v{d}, v{t0}, 5, v{d}
    """)

def gen_k1(a):
    STP = {0: "", 1: " nt", 2: " sc1", 3: " sc0 sc1"}[OPT.get('STP', 2)]
    st = Stamps(a, 64)
    a("prep_kernel:")
    a(f"s_cmp_ge_u32 s2, {K1_GRID}\ns_cbranch_scc1 K1_END")
    probe_stamp(a, 0, "K1")
    if OPT.get('CPRE', 1):
        a(f"""
        s_cmp_ge_u32 s2, {OPT.get('CPREN', 16)}
        s_cbranch_scc1 K1_NOCPRE
        s_getpc_b64 s[4:5]
        K1_PC:
        v_lshlrev_b32 v2, 7, v0
        v_cmp_gt_u32 vcc, CODE_END-K1_PC, v2
        s_and_saveexec_b64 s[6:7], vcc
        s_cbranch_execz K1_CPRE_DONE
        v_mov_b32 v3, s5
        v_add_co_u32 v2, vcc, s4, v2
        v_addc_co_u32 v3, vcc, 0, v3, vcc
        global_load_dword v127, v[2:3], off
        K1_CPRE_DONE:
        s_mov_b64 exec, -1
        K1_NOCPRE:
        """)
    st()
    a("""
    s_load_dwordx16 s[4:19], s[0:1], 0
    s_load_dwordx8 s[20:27], s[0:1], 64
    v_lshrrev_b32 v2, 6, v0
    v_and_b32 v1, 63, v0
    v_readfirstlane_b32 s50, v2
    """)
    a(f"s_cmp_lt_u32 s2, {S_WG}\ns_cbranch_scc1 K1_SORT")
    NT = " nt" if OPT.get('NT', 1) else ""
    XF = [8, 24]; ACC = 40; WF = 104; WA = 120; FA = 124
    XST = 65536; BNC = XST + 32768
    def acc(t, m, ct): return ACC + ((t * 2 + m) * 4 + ct) * 4
    a(f"""
    s_sub_u32 s53, s2, {S_WG}
    s_and_b32 s51, s53, 3
    s_lshl_b32 s51, s51, 5
    s_bfe_u32 s52, s53, 0x10002
    s_lshl_b32 s56, s52, 4
    s_add_u32 s51, s51, s56
    s_lshr_b32 s56, s53, 3
    s_add_u32 s51, s51, s56              ; bucket
    s_mul_i32 s54, s51, {NPB*256}
    s_add_u32 s58, s54, {NPB*256}
    s_min_u32 s58, s58, {N*256}
    s_lshl_b32 s55, s50, 12
    s_add_u32 s56, s54, s55
    s_add_u32 s55, s55, {XST}
    v_lshrrev_b32 v6, 4, v1              ; l>>4
    v_and_b32 v7, 15, v1                 ; l&15
    v_xor_b32 v2, v6, v7
    v_lshlrev_b32 v2, 4, v2              ; ((l&15)^(l>>4))*16
    v_lshl_add_u32 v{FA}, v7, 8, v2
    v_lshl_add_u32 v2, v6, 8, v2
    v_add_u32 v8, s56, v2
    """)
    for q in range(1, 4): a(f"v_xor_b32 v{8+q}, {64*q}, v8")
    w_lane_off(a, 4, 5, 48)
    a("v_xor_b32 v5, 64, v4\ns_mov_b32 m0, s55\ns_waitcnt lgkmcnt(0)")
    ws_shift(a)
    srd(a, 28, "s4", "s5", "s58")
    for q in range(4): a(f"buffer_load_dwordx4 v{8+q}, s[28:31], 0 offen offset:{q*1024}{NT} lds")
    a("""
    s_cmp_lt_u32 s50, 4
    s_cselect_b32 s32, s14, s20
    s_cselect_b32 s33, s15, s21
    s_and_b32 s33, s33, 0xffff
    s_mov_b32 s34, 32768
    s_mov_b32 s35, 0x20000
    s_lshl_b32 s57, s50, 13
    s_mov_b32 m0, s57
    s_bfe_u32 s59, s50, 0x10001
    s_lshl_b32 s59, s59, 7
    s_and_b32 s56, s50, 1
    s_lshl_b32 s56, s56, 14
    s_add_u32 s59, s59, s56
    """)
    for i in range(8):
        if i == 4: a("s_add_u32 s57, s57, 4096\ns_mov_b32 m0, s57\ns_add_u32 s59, s59, 4096")
        a(f"buffer_load_dwordx4 v{4 + (i & 1)}, s[32:35], s59 offen offset:{(i%4)*1024} lds\ns_add_u32 s59, s59, 1024")
    a(f"""
    s_and_b32 s52, s50, 1
    s_lshr_b32 s56, s50, 1
    s_mul_i32 s57, s52, {TBL_H}
    """)
    srd_off(a, 36, 26, "s57", "s58")
    if OPT.get('TLB'): a("v_mov_b32 v48, s54\ns_mov_b64 exec, 1\nbuffer_load_dword v12, v48, s[36:39], 0 offen\ns_mov_b64 exec, -1")
    w_frag_off(a, WA, 48, 49, 6)
    a(f"""
    s_lshl_b32 s57, s52, 14
    v_add_u32 v{WA}, s57, v{WA}
    s_lshl_b32 s57, s56, 13
    s_add_u32 s59, s57, {XST}
    v_add_u32 v40, s59, v{FA}
    s_lshl_b32 s59, s50, 12
    s_add_u32 s59, s59, {BNC}
    v_add_u32 v{FA}, s59, v{FA}
    v_add_u32 v2, s59, v2
    s_add_u32 s57, s57, s54
    v_lshlrev_b32 v3, 4, v1
    v_add_u32 v3, s57, v3
    v_add_u32 v7, 4096, v3
    """)
    for k in range(1, 4): a(f"v_xor_b32 v{WA+k}, {32*k}, v{WA}\nv_xor_b32 v{FA+k}, {64*k}, v{FA}\nv_xor_b32 v{40+k}, {64*k}, v40")
    a(f"""
    s_mov_b32 s44, {NEGL2E}
    s_mov_b32 s45, {NEGL2E}
    s_mov_b32 s46, 0x05040100
    s_mov_b32 s47, 0x07060302
    s_xor_b32 s51, s51, 16
    s_mul_i32 s51, s51, {NPB*256}
    v_lshlrev_b32 v4, 7, v0
    v_add_u32 v4, s51, v4
    v_lshlrev_b32 v5, 8, v1
    s_mov_b32 s30, {N*256}
    s_waitcnt vmcnt(0)
    """)
    st()
    a("s_barrier")
    st()
    if OPT.get('PRE', 1):
        a(f"""
        s_cmp_lt_u32 s50, 4
        s_cbranch_scc0 K1_XPRE_DONE
        v_cmp_gt_u32 vcc, {NPB*2}, v0
        s_mov_b64 exec, vcc
        buffer_load_dword v6, v4, s[28:31], 0 offen
        s_mov_b64 exec, -1
        s_branch K1_PRE_DONE
        K1_XPRE_DONE:
        s_cmp_lt_u32 s53, 8
        s_cbranch_scc0 K1_PRE_DONE
        s_cmp_lt_u32 s50, 6
        s_cselect_b32 s32, s12, s18
        s_cselect_b32 s33, s13, s19
        s_and_b32 s33, s33, 0xffff
        s_lshl_b32 s57, s52, 14
        s_bfe_u32 s59, s53, 0x10002
        s_lshl_b32 s59, s59, 7
        s_add_u32 s57, s57, s59
        buffer_load_dword v6, v5, s[32:35], s57 offen
        K1_PRE_DONE:
        """)
    for t in range(2):
        for ks in range(4): a(f"ds_read_b128 v[{XF[t]+4*ks}:{XF[t]+4*ks+3}], v{40+ks} offset:{t*4096}")
    a(f"v_mov_b32 v4, {TINY}\nv_mov_b32 v5, {TINY}\ns_waitcnt lgkmcnt(0)")
    seq = [(ks, m, ct) for ct in range(4) for ks in range(4) for m in range(2)]
    def rd(s):
        ks, m, ct = seq[s]; b = WF + 4 * (s % 4); o = m * 32768 + ks * 4096
        a(f"ds_read_b64_tr_b16 v[{b}:{b+1}], v{WA+ct} offset:{o}\nds_read_b64_tr_b16 v[{b+2}:{b+3}], v{WA+ct} offset:{o+512}")
    for s in range(3): rd(s)
    for s in range(32):
        if s + 3 < 32: rd(s + 3)
        a(f"s_waitcnt lgkmcnt({2*min(3, 31-s)})")
        ks, m, ct = seq[s]; b = WF + 4 * (s % 4)
        for t in range(2):
            d = acc(t, m, ct); c = "0" if ks == 0 else f"v[{d}:{d+3}]"
            a(f"v_mfma_f32_16x16x32_bf16 v[{d}:{d+3}], v[{b}:{b+3}], v[{XF[t]+4*ks}:{XF[t]+4*ks+3}], {c}")
    st()
    for k in range(1, 4): a(f"v_xor_b32 v{WA+k}, {64*k}, v2")
    for t in range(2):
        for ct in range(4):
            O = XF[t] + 4 * ct
            for rp in (0, 2):
                h = acc(t, 0, ct) + rp; l = acc(t, 1, ct) + rp
                a(pk('fma', h, h, "s[44:45]", 4))
                pack_pair(a, h, l, O + rp, O + rp + 1, "s46", "s47")
            if t == 1 and ct == 0:
                for q in range(4):
                    a(f"s_waitcnt lgkmcnt({3-q})")
                    a(f"buffer_store_dwordx4 v[{XF[0]+4*q}:{XF[0]+4*q+3}], v3, s[36:39], 0 offen offset:{q*1024}{STP}")
            a(f"ds_write_b128 v{FA+ct}, v[{O}:{O+3}]")
        a("s_waitcnt lgkmcnt(0)")
        for q in range(4): a(f"ds_read_b128 v[{XF[t]+4*q}:{XF[t]+4*q+3}], v{2 if q == 0 else WA+q} offset:{q*1024}")
    for q in range(4):
        a(f"s_waitcnt lgkmcnt({3-q})")
        a(f"buffer_store_dwordx4 v[{XF[1]+4*q}:{XF[1]+4*q+3}], v7, s[36:39], 0 offen offset:{q*1024}{STP}")
    st()
    if DIAG:
        a("s_waitcnt vmcnt(0)"); st(); st.dump(0, "s2", "s50", 2, 60)
    a("s_endpgm")
    st = Stamps(a, 65)
    IMG = 1024
    DST = 8; SRC = 16; EA = 24; BK = 40; RK = 48; SN = 56
    a("K1_SORT:")
    a(f"""
    s_and_b32 s52, s2, 7
    s_lshl_b32 s52, s52, 4
    s_lshr_b32 s51, s2, 3
    s_add_u32 s51, s51, s52              ; chunk c
    s_mul_i32 s52, s51, {CH}
    v_lshl_add_u32 v2, v0, 2, s52
    v_add_u32 v3, {HCH}, v2
    s_mov_b32 s53, {E}
    v_cmp_gt_u32 vcc, {HCH//4}, v0
    v_cmp_gt_u32 s[48:49], s53, v2
    v_cmp_gt_u32 s[56:57], s53, v3
    s_and_b64 s[48:49], s[48:49], vcc
    s_and_b64 s[56:57], s[56:57], vcc
    v_lshlrev_b32 v4, 3, v2
    v_lshlrev_b32 v5, 3, v3
    v_lshlrev_b32 v2, 2, v2
    v_lshlrev_b32 v3, 2, v3
    s_sub_u32 s58, s53, s52
    s_min_u32 s58, s58, {CH}
    s_mul_i32 s58, s58, 12
    s_waitcnt lgkmcnt(0)
    """)
    ws_shift(a)
    srd(a, 28, "s10", "s11", E * 4)
    a(f"buffer_load_dwordx4 v[{DST}:{DST+3}], v2, s[28:31], 0 offen{NT}\nbuffer_load_dwordx4 v[{DST+4}:{DST+7}], v3, s[28:31], 0 offen{NT}")
    srd(a, 32, "s8", "s9", E * 4)
    a(f"buffer_load_dwordx4 v[{SRC}:{SRC+3}], v2, s[32:35], 0 offen{NT}\nbuffer_load_dwordx4 v[{SRC+4}:{SRC+7}], v3, s[32:35], 0 offen{NT}")
    srd(a, 36, "s6", "s7", E * 8)
    for g in range(2):
        for k in range(2): a(f"buffer_load_dwordx4 v[{EA+8*g+4*k}:{EA+8*g+4*k+3}], v{4+g}, s[36:39], 0 offen offset:{16*k}{NT}")
    a(f"""
    v_mov_b32 v6, 0
    v_lshlrev_b32 v7, 2, v0
    v_cmp_gt_u32 vcc, 128, v0
    s_and_saveexec_b64 s[60:61], vcc
    ds_write_b32 v7, v6
    s_mov_b64 exec, -1
    s_mul_i32 s53, s51, {RECREG}
    s_add_u32 s53, s53, {REC_OFF}
    """)
    srd_off(a, 40, 26, "s53", "s58")
    srd(a, 44, "s26", "s27", SCR_OFF)
    if OPT.get('TLB'): a(f"v_mov_b32 v74, 0\nv_mov_b32 v75, {OFFS_OFF}\ns_mov_b64 exec, 1\nbuffer_load_dword v74, v74, s[40:43], 0 offen\nbuffer_load_dword v75, v75, s[44:47], 0 offen\ns_mov_b64 exec, -1")
    a(f"""
    s_mov_b32 s54, 42800
    s_mov_b32 s55, {NPB}
    v_mov_b32 v5, 12
    v_lshlrev_b32 v6, 3, v1
    s_waitcnt lgkmcnt(0)
    s_barrier
    s_waitcnt vmcnt({8 if OPT.get('TLB') else 6})
    """)
    st()
    for g in range(2):
        a(f"s_mov_b64 exec, s[{48 if g == 0 else 56}:{49 if g == 0 else 57}]")
        for i in range(4 * g, 4 * g + 4):
            a(f"""
            v_mul_u32_u24 v{BK+i}, s54, v{DST+i}
            v_lshrrev_b32 v{BK+i}, 22, v{BK+i}           ; bucket
            v_mul_u32_u24 v{SN+i}, s55, v{BK+i}
            v_lshlrev_b32 v{BK+i}, 2, v{BK+i}
            ds_add_rtn_u32 v{RK+i}, v{BK+i}, v5
            v_sub_u32 v{SN+i}, v{DST+i}, v{SN+i}
            """)
    a(f"s_mov_b64 exec, -1\ns_waitcnt vmcnt({6 if OPT.get('TLB') else 4})")
    for i in range(8): a(f"v_lshl_or_b32 v{SN+i}, v{SRC+i}, 8, v{SN+i}")
    a("""
    s_waitcnt lgkmcnt(0)
    s_barrier
    ds_read_b64 v[64:65], v6
    s_waitcnt lgkmcnt(0)
    v_add_u32 v67, v64, v65
    v_mov_b32 v68, v67
    """)
    wave_red(a, 68, "add_u32")
    a(f"""
    v_sub_u32 v70, v68, v67
    v_add_u32 v71, v70, v64
    v_add_u32 v72, {IMG}, v70
    v_add_u32 v73, {IMG}, v71
    ds_write_b64 v6, v[72:73] offset:512
    """)
    for g in range(2):
        a(f"s_mov_b64 exec, s[{48 if g == 0 else 56}:{49 if g == 0 else 57}]")
        for i in range(4 * g, 4 * g + 4): a(f"ds_read_b32 v{BK+i}, v{BK+i} offset:512")
    a("s_waitcnt vmcnt(0)")
    for g in range(2):
        a(f"s_mov_b64 exec, s[{48 if g == 0 else 56}:{49 if g == 0 else 57}]")
        for i in range(4 * g, 4 * g + 4):
            a(f"""
            s_waitcnt lgkmcnt({min(15, 7 - i + 2 * i)})
            v_add_u32 v{BK+i}, v{BK+i}, v{RK+i}
            ds_write2_b32 v{BK+i}, v{EA+2*i}, v{EA+2*i+1} offset0:0 offset1:1
            ds_write_b32 v{BK+i}, v{SN+i} offset:8
            """)
    a(f"""
    s_mov_b64 exec, -1
    s_cmp_lg_u32 s50, 7
    s_cbranch_scc1 K1_NOINFO
    s_mov_b32 s53, 43691
    v_mul_u32_u24 v64, s53, v64
    v_mul_u32_u24 v65, s53, v65
    v_lshrrev_b32 v64, 19, v64
    v_lshrrev_b32 v65, 19, v65
    v_lshl_or_b32 v70, v64, 16, v70
    v_lshl_or_b32 v71, v65, 16, v71
    s_lshl_b32 s53, s51, 2
    s_add_u32 s53, s53, {OFFS_OFF}
    v_lshlrev_b32 v7, 10, v1
    v_add_u32 v7, s53, v7
    buffer_store_dword v70, v7, s[44:47], 0 offen
    buffer_store_dword v71, v7, s[44:47], 0 offen offset:512
    s_cmp_lg_u32 s51, 0
    s_cbranch_scc1 K1_NOINFO
    v_mov_b32 v70, 0x7f000000
    v_lshlrev_b32 v7, 2, v1
    v_add_u32 v7, {N*256}, v7
    v_add_u32 v71, {TBL_H}, v7
    buffer_store_dword v70, v7, s[44:47], 0 offen
    buffer_store_dword v70, v71, s[44:47], 0 offen
    K1_NOINFO:
    v_lshlrev_b32 v7, 4, v0
    s_waitcnt lgkmcnt(0)
    s_barrier
    """)
    st()
    NCP = (RECREG + K1_BLOCK * 16 - 1) // (K1_BLOCK * 16)
    for i in range(NCP): a(f"ds_read_b128 v[{8+4*i}:{11+4*i}], v7 offset:{IMG + i*K1_BLOCK*16}")
    for i in range(1, NCP): a(f"v_add_u32 v{40+i}, {i*K1_BLOCK*16}, v7")
    for i in range(NCP):
        a(f"s_waitcnt lgkmcnt({NCP-1-i})")
        a(f"buffer_store_dwordx4 v[{8+4*i}:{11+4*i}], v{7 if i == 0 else 40+i}, s[40:43], 0 offen{STP}")
    st()
    if DIAG:
        a("s_waitcnt vmcnt(0)"); st(); st.base = 64; st.n += 1; st.dump(0, "s2", "s50", 2, 60)
    a("K1_END:\ns_endpgm")

def gen_k2(a):
    OSTP = {0: "", 1: " nt", 2: " sc1", 3: " sc0 sc1"}[OPT.get('OSTP', 2)]
    st = Stamps(a, 84)
    S_WS, S_W, S_TBL, S_WC, S_X, S_OUT = 28, 36, 40, 48, 52, 56
    MK = 60
    sBase, sRST, sH, sR0, sW, sL, sRem, sNB, sRM, sT = 74, 75, 76, 77, 78, 79, 80, 81, 82, 83
    M0_, M1_, PAT, TMP, sMsk, sInf, RMM, L2E, SEL0, SEL1, EMK, EPS, sWo = 4, 6, 8, 10, 12, 13, 14, 16, 18, 19, 20, 22, 24
    REC = 64
    CA = 92
    XF = 32; WF = 48; ACC = 100
    WCS = EARR + 32768
    vRem, vRecA, vOne, vZ = 116, 117, 118, 19
    LD = 32; T = 64; V = 72; D = 80; ND = 84; W = 88; NUM = 92; DEN = 96; CEA = 100; EE = 104; R = 108
    IA, IB, vRow, vS = 116, 117, 118, 119
    vE, vEs, vJ16 = 20, 21, 22
    WC = 24; CC = 26; SEL = 28
    XR = 8; vXo = 12; vCntA = 13; vCe = 14; vTch = 23
    XFL = [2, 3, 4, 5, 15, 16, 17, 18]
    T1 = OPT.get('TOUCH1', 2); T2 = OPT.get('TOUCH2', 2)
    TBLSZ = (N + 1) * 256
    def rounds(n, lbl, body, first_check=3):
        for k in range(n):
            a(f"s_mov_b64 exec, s[{MK+2*k}:{MK+2*k+1}]")
            if k >= first_check: a(f"s_cbranch_execz {lbl}")
            a(body(k))
        a(f"{lbl}:\ns_mov_b64 exec, -1")
    def rec_masks(n):
        for k in range(n): a(f"v_cmp_lt_i32 s[{MK+2*k}:{MK+2*k+1}], {8*k}, v{vRem}")
    def rec_issue(n, lbl):
        rounds(n, lbl, lambda k: f"buffer_load_dwordx3 v[{REC+4*k}:{REC+4*k+2}], v{vRecA}, s[{S_WS}:{S_WS+3}], 0 offen offset:{96*k}")
    a("agg_kernel:")
    a(f"s_cmp_ge_u32 s2, {K2_GRID}\ns_cbranch_scc1 K2_END")
    probe_stamp(a, 1, "K2")
    st()
    a(f"""
    s_load_dwordx2 s[{S_WS}:{S_WS+1}], s[0:1], 88
    s_load_dwordx2 s[{S_X}:{S_X+1}], s[0:1], 0
    s_load_dwordx2 s[{S_W}:{S_W+1}], s[0:1], 32
    s_load_dwordx2 s[4:5], s[0:1], 56
    s_load_dwordx2 s[{S_WC}:{S_WC+1}], s[0:1], 48
    s_load_dwordx2 s[{S_OUT}:{S_OUT+1}], s[0:1], 72
    s_setprio 3
    v_lshrrev_b32 v2, 6, v0
    v_and_b32 v1, 63, v0
    v_readfirstlane_b32 s{sW}, v2
    s_bfe_u32 s{sH}, s2, 0x10002
    s_lshr_b32 s{sR0}, s2, 3
    s_and_b32 s3, s2, 3
    s_lshl_b32 s3, s3, 5
    s_add_u32 s{sR0}, s{sR0}, s3          ; bucket
    s_lshl_b32 s{sInf}, s{sR0}, 9
    s_add_u32 s{sInf}, s{sInf}, {OFFS_OFF}
    s_mul_i32 s{sR0}, s{sR0}, {NPB*256}   ; first row of the bucket * 256
    s_mov_b32 s{S_WS+2}, {WS_SIZE}
    s_mov_b32 s{S_WS+3}, 0x20000
    s_mov_b32 s3, {RECREG}
    v_lshrrev_b32 v2, 3, v0               ; segment / finalisation node
    v_and_b32 v15, 7, v0                  ; sub
    v_lshl_add_u32 v3, v2, 2, s{sInf}     ; info offset
    v_mul_u32_u24 v{vRecA}, s3, v2
    v_mad_u32_u24 v{vRecA}, v15, 12, v{vRecA}
    v_add_u32 v{vRecA}, {REC_OFF}, v{vRecA}
    v_lshrrev_b32 v6, 4, v1               ; l>>4
    v_and_b32 v7, 15, v1                  ; l&15
    v_xor_b32 v16, v6, v7
    v_lshlrev_b32 v16, 4, v16
    v_mov_b32 v{vOne}, 4
    v_mov_b32 v{vZ}, 0
    s_cmp_lt_u32 s{sW}, 8
    s_cbranch_scc1 K2_GPRE
    s_cmp_lt_u32 s{sW}, 13
    s_cbranch_scc1 K2_PRE_DONE
    ; ---- waves 13..15: small LDS init (counters .. flags zeroed, eps row, trash row gate factor = 1)
    v_subrev_u32 v76, {13*64}, v0
    v_lshlrev_b32 v5, 4, v76
    v_subrev_u32 v77, {(ZROW+512)//16}, v76
    v_cmp_gt_u32 vcc, 16, v77
    v_mov_b32 v68, {EPSP}
    v_add_u32 v4, {RB + NPB*RST + 512 - MISC}, v5
    v_cndmask_b32 v68, 0, v68, vcc
    v_cmp_lt_u32 vcc, {MISC//16 - 1}, v76
    v_cmp_gt_u32 s[{TMP}:{TMP+1}], {MISC//16 + 16 - 128}, v77
    v_cndmask_b32 v68, v68, 1.0, vcc
    v_cndmask_b32 v5, v5, v4, vcc
    v_cmp_gt_u32 vcc, {MISC//16 + 16}, v76
    v_mov_b32 v69, v68
    v_mov_b32 v70, v68
    v_mov_b32 v71, v68
    s_mov_b64 exec, vcc
    ds_write_b128 v5, v[68:71]
    s_mov_b64 exec, -1
    s_branch K2_PRE_DONE
    ; ---- waves 0..7 stage the bucket's x rows, the w_a | w_u halves and w_c
    K2_GPRE:
    v_lshl_add_u32 v32, v6, 8, v16        ; row-linear pattern
    s_lshl_b32 s3, s{sW}, 12
    s_add_u32 s{sT}, s3, s{sR0}
    v_add_u32 v32, s{sT}, v32
    s_add_u32 s{sT}, s{sR0}, {NPB*256}
    s_min_u32 s{S_X+2}, s{sT}, {N*256}
    s_mov_b32 s{S_X+3}, 0x20000
    v_xor_b32 v33, 64, v32
    v_xor_b32 v34, 128, v32
    v_xor_b32 v35, 192, v32
    """.replace(f"    v_cmp_gt_u32 s[{TMP}:{TMP+1}], {MISC//16 + 16 - 128}, v77\n", ""))
    w_lane_off(a, 36, 37, 38)
    a(f"""
    v_xor_b32 v37, 64, v36
    v_lshlrev_b32 v38, 4, v1
    s_mov_b32 s{S_W+2}, 32768
    s_mov_b32 s{S_W+3}, 0x20000
    s_mov_b32 s{S_WC+2}, 1024
    s_mov_b32 s{S_WC+3}, 0x20000
    s_add_u32 s{sRem}, s3, {EARR}
    s_add_u32 s{sL}, s3, {HEAD}
    s_and_b32 s3, s{sW}, 3
    s_lshl_b32 s3, s3, 13
    s_lshl_b32 s{sT}, s{sH}, 7
    s_add_u32 s{sWo}, s3, s{sT}
    s_add_u32 s{sWo+1}, s{sWo}, 1024
    s_add_u32 s{sWo+2}, s{sWo}, 2048
    s_add_u32 s{sWo+3}, s{sWo}, 3072
    s_mov_b32 m0, {WCS}
    K2_PRE_DONE:
    s_mul_i32 s{sT}, s{sH}, {TBL_H}
    s_cmp_lt_u32 s{sW}, 8
    s_waitcnt lgkmcnt(0)
    buffer_load_dword v{vRem}, v3, s[{S_WS}:{S_WS+3}], 0 offen
    {'' if OPT.get('BARLATE') else 's_barrier'}
    s_cbranch_scc0 K2_NODMA
    s_cmp_lg_u32 s{sW}, 7
    s_cbranch_scc1 K2_NOWC
    buffer_load_dwordx4 v38, s[{S_WC}:{S_WC+3}], 0 offen lds
    K2_NOWC:
    s_mov_b32 m0, s{sRem}
    s_cmp_lt_u32 s{sW}, 4
    """)
    for q in range(4): a(f"buffer_load_dwordx4 v{32+q}, s[{S_X}:{S_X+3}], 0 offen offset:{q*1024} lds")
    a(f"s_mov_b32 m0, s{sL}\ns_cselect_b64 s[{S_W}:{S_W+1}], s[{S_W}:{S_W+1}], s[4:5]")
    for i in range(4): a(f"buffer_load_dwordx4 v{36 + (i & 1)}, s[{S_W}:{S_W+3}], s{sWo+i} offen offset:{i*1024} lds")
    a(f"""
    s_waitcnt vmcnt(8)
    s_branch K2_INFO
    K2_NODMA:
    s_waitcnt vmcnt(0)
    K2_INFO:
    {'s_barrier' if OPT.get('BARLATE') else ''}
    v_and_b32 v3, 0xffff, v{vRem}
    v_lshrrev_b32 v{vRem}, 16, v{vRem}
    v_add_u32 v{vRecA}, v3, v{vRecA}
    v_sub_u32 v{vRem}, v{vRem}, v15
    """)
    rec_masks(NR)
    a(f"""
    s_add_u32 s{S_TBL}, s{S_WS}, s{sT}
    s_addc_u32 s{S_TBL+1}, s{S_WS+1}, 0
    s_mov_b32 s{S_TBL+3}, 0x20000
    s_cmp_lt_u32 s{sW}, 8
    s_cbranch_scc0 K2_NOSIG
    s_waitcnt vmcnt(0)
    s_mov_b64 exec, 1
    ds_add_u32 v{vZ}, v{vOne} offset:{SYNC}
    K2_NOSIG:
    """)
    if OPT.get('FINE'): st()
    GF = OPT.get('GF', 4)
    if GF: a(f"s_cmp_lt_u32 s{sW}, {GF}\ns_cbranch_scc1 K2_RI")
    rec_issue(NR, "K2_RI")
    a(f"""
    s_setprio 0
    s_lshr_b32 s3, s2, 3
    s_mul_i32 s3, s3, 782
    s_mov_b32 s{sT}, {64*(8 - T1)}
    s_cmp_lt_u32 s{sW}, 8
    s_cselect_b32 s{sT}, s{sT}, {64*(16 - T2) - 64*T1}
    s_sub_u32 s3, s3, s{sT}
    v_add_lshl_u32 v{vTch}, v0, s3, 7
    s_mov_b32 s{S_TBL+2}, {TBLSZ}
    s_sub_u32 s{sL}, s{sW}, {8 - T1}
    s_cmp_lt_u32 s{sL}, {T1}
    s_cbranch_scc0 K2_NOT1
    buffer_load_dword v{vTch}, v{vTch}, s[{S_TBL}:{S_TBL+3}], 0 offen
    K2_NOT1:
    v_cmp_lt_i32 vcc, {NR*8}, v{vRem}
    s_mov_b32 s{sBase}, 0
    s_mov_b32 s{sNB}, 0
    s_mov_b32 s{sRST}, {RST}
    s_mov_b32 s{sMsk}, 0xffffff00
    s_mov_b64 exec, vcc
    ds_write_b32 v{vZ}, v{vOne} offset:{FLAG2}
    s_mov_b64 exec, -1
    s_mov_b32 s{L2E}, {NEGL2E}
    s_mov_b32 s{L2E+1}, {NEGL2E}
    s_mov_b32 s{SEL0}, 0x07060100
    s_mov_b32 s{SEL1}, 0x07060302
    s_mov_b64 s[{RMM}:{RMM+1}], 0
    v_lshl_add_u32 v{XR}, s{sH}, 3, v15
    v_lshlrev_b32 v18, 8, v2
    v_lshl_add_u32 v{vXo}, v{XR}, 4, v18
    v_and_b32 v3, 15, v2
    v_xor_b32 v{XR}, v{XR}, v3
    v_lshl_add_u32 v{XR}, v{XR}, 4, v18
    v_add_u32 v{XR}, {EARR}, v{XR}
    v_lshlrev_b32 v{vCntA}, 3, v1
    v_lshlrev_b32 v{vJ16}, 4, v7
    s_lshl_b32 s3, s{sH}, 7
    s_add_u32 s3, s3, {WCS}
    v_lshl_add_u32 v{WC}, v7, 3, s3
    v_lshl_add_u32 v{WC}, v6, 1, v{WC}
    s_lshr_b32 s3, s{sW}, 1
    s_lshl_b32 s{sT}, s3, 12
    s_add_u32 s{sT}, s{sT}, {EARR}
    v_lshl_add_u32 v124, v7, 8, v16
    v_add_u32 v124, s{sT}, v124
    v_xor_b32 v125, 64, v124
    v_xor_b32 v126, 128, v124
    v_xor_b32 v127, 192, v124
    s_and_b32 s{sT}, s{sW}, 1
    s_lshl_b32 s{sT}, s{sT}, 6
    v_and_b32 v18, 3, v1
    v_bfe_u32 v17, v1, 3, 2
    v_bfe_u32 v3, v1, 2, 2
    v_lshlrev_b32 v16, 3, v18
    v_lshl_or_b32 v16, v17, 5, v16
    v_lshl_or_b32 v16, v3, 7, v16
    v_lshl_or_b32 v16, v6, 10, v16
    v_xor_b32 v16, s{sT}, v16
    v_add_u32 v16, {HEAD}, v16
    v_xor_b32 v17, 32, v16
    v_lshl_add_u32 v2, s3, 4, v7          ; node
    v_cmp_gt_u32 vcc, {NPB}, v2
    s_lshl_b32 s{sT}, s{sT}, 1
    v_mad_u32_u24 v{vCe}, v6, 16, s{sT}
    s_mov_b64 s[{TMP}:{TMP+1}], vcc
    v_mad_u32_u24 v{vCe}, v2, s{sRST}, v{vCe}
    v_cmp_eq_u32 s[{EMK}:{EMK+1}], v6, v18
    s_lshl_b32 s3, s{sW}, 2
    v_add_u32 v{vS}, s3, v6
    v_add_u32 v{vE}, s3, v3
    """)
    st()
    a(f"""
    K2_POLL:
    ds_read_b32 v18, v{vZ} offset:{SYNC}
    s_waitcnt lgkmcnt(0)
    v_readfirstlane_b32 s3, v18
    s_cmp_lt_u32 s3, 32
    s_cbranch_scc1 K2_POLL
    """)
    st()
    a(f"ds_read_b128 v[{XR}:{XR+3}], v{XR}")
    for k in (3, 2, 1, 0): a(f"ds_read_u16 v{WC+k}, v{WC} offset:{256*k}")
    a(f"s_cmp_ge_u32 s{sW}, 14\ns_cbranch_scc1 K2_NOGEMM")
    for ks in range(4): a(f"ds_read_b128 v[{XF+4*ks}:{XF+4*ks+3}], v{124+ks}")
    seq = [(ks, m, c) for ks in range(4) for m in range(2) for c in range(2)]
    def rd(s):
        ks, m, c = seq[s]; b = WF + 4 * (s % 4); o = m * 16384 + ks * 4096
        a(f"ds_read_b64_tr_b16 v[{b}:{b+1}], v{16+c} offset:{o}\nds_read_b64_tr_b16 v[{b+2}:{b+3}], v{16+c} offset:{o+512}")
    rd(0); rd(1)
    a(f"v_mov_b32 v4, {f2u(-62.0)}\nv_mov_b32 v5, {f2u(-62.0)}\ns_mov_b32 s3, {f2u(60.0 / math.log2(math.e))}")
    for s in range(0, 16, 2):
        if s + 2 < 16: rd(s + 2); rd(s + 3)
        a(f"s_waitcnt lgkmcnt({4 if s + 2 < 16 else 0})")
        for z in (s, s + 1):
            ks, m, c = seq[z]; b = WF + 4 * (z % 4); d = ACC + (m * 2 + c) * 4
            a(f"v_mfma_f32_16x16x32_bf16 v[{d}:{d+3}], v[{b}:{b+3}], v[{XF+4*ks}:{XF+4*ks+3}], {'0' if ks == 0 else 'v[%d:%d]' % (d, d+3)}")
    a(f"""
    v_max3_f32 v2, |v{ACC}|, |v{ACC+1}|, |v{ACC+2}|
    v_max3_f32 v3, |v{ACC+3}|, |v{ACC+4}|, |v{ACC+5}|
    v_max3_f32 v2, v2, |v{ACC+6}|, |v{ACC+7}|
    v_max_f32 v2, v2, v3
    v_cmp_lt_f32 vcc, s3, v2
    """)
    for i in range(4): a(pk('fma', XF + 2 * i, ACC + 2 * i, f"s[{L2E}:{L2E+1}]", 4))
    a(f"s_and_b64 s[{RMM}:{RMM+1}], vcc, s[{TMP}:{TMP+1}]")
    for i in range(8): a(f"v_exp_f32 v{XF+i}, v{XF+i}")
    for i in range(4): a(f"v_cvt_pk_bf16_f32 v{ACC+8+2*i}, v{ACC+8+2*i}, v{ACC+9+2*i}")
    for i in range(8): a(f"v_perm_b32 v{WF+i}, v{XF+i}, v{ACC+8+(i&6)}, s{SEL0 + (i&1)}")
    a(f"""
    s_mov_b64 exec, s[{TMP}:{TMP+1}]
    ds_write_b128 v{vCe}, v[{WF}:{WF+3}] offset:{RB+512}
    ds_write_b128 v{vCe}, v[{WF+4}:{WF+7}] offset:{RB+576}
    s_mov_b64 exec, s[{RMM}:{RMM+1}]
    ds_write_b32 v{vZ}, v{vOne} offset:{FLAG}
    K2_NOGEMM:
    """)
    if GF:
        a(f"s_cmp_lt_u32 s{sW}, {GF}\ns_cbranch_scc0 K2_RI2")
        rec_issue(NR, "K2_RI2")
    st()
    a(f"s_cmp_lt_u32 s{sL}, {T1}\ns_cbranch_scc1 K2_W1\ns_waitcnt vmcnt(0)\nK2_W1:\ns_waitcnt vmcnt(1)")
    st()
    a("K2_BATCH:")
    rounds(NR, "K2_AT_DONE", lambda k: f"""
        v_lshlrev_b32_sdwa v{CA+k}, 2, v{REC+4*k+2} dst_sel:DWORD dst_unused:UNUSED_PAD src0_sel:DWORD src1_sel:BYTE_0
        ds_add_rtn_u32 v{REC+4*k+3}, v{CA+k}, v{vOne}""")
    a("s_waitcnt lgkmcnt(0)\ns_barrier")
    st()
    a(f"""
    ds_read_b64 v[2:3], v{vCntA}
    ds_read2_b32 v[16:17], v{vZ} offset0:{FLAG//4 - 512} offset1:{FLAG2//4 - 512}
    """.replace(f"ds_read2_b32 v[16:17], v{vZ} offset0:{FLAG//4 - 512} offset1:{FLAG2//4 - 512}", f"ds_read_b96 v[16:18], v{vZ} offset:{FLAG}"))
    if T2:
        a(f"""
        s_cmp_ge_u32 s{sW}, {16 - T2}
        s_cbranch_scc0 K2_NOTOUCH
        buffer_load_dword v{vTch}, v{vTch}, s[{S_TBL}:{S_TBL+3}], 0 offen
        K2_NOTOUCH:
        """)
    a(f"""
    s_waitcnt lgkmcnt(0)
    v_add_u32 v4, 4, v2
    v_add_u32 v5, 4, v3
    v_and_b32 v4, -8, v4
    v_and_b32 v5, -8, v5
    v_add_u32 v59, v4, v5
    v_add_u32 v58, v4, v5
    v_readfirstlane_b32 s{sRM}, v16
    v_readfirstlane_b32 s{sRem}, v18
    """)
    wave_red(a, 58, "add_u32")
    a(f"""
    v_sub_u32 v56, v58, v59
    v_readlane_b32 s{sT}, v58, 63
    v_add_u32 v56, {SARR}, v56
    v_add_u32 v57, v56, v4
    ds_write_b64 v{vCntA}, v[56:57] offset:{OFFA}
    s_cmp_gt_u32 s{sT}, {LMAX*512}
    s_cselect_b32 s{sRem}, 1, s{sRem}
    s_cmp_lg_u32 s{sRem}, 0
    s_cbranch_scc1 K2_SLOWINIT
    K2_DECIDED:
    s_add_u32 s{sL}, s{sT}, 511
    s_lshr_b32 s{sL}, s{sL}, 9
    """)
    if OPT.get('FINE'): st()
    rounds(NR, "K2_RD_DONE", lambda k: f"ds_read_b32 v{CA+k}, v{CA+k} offset:{OFFA}")
    a(f"""
    s_lshl_b32 s3, s{sL}, 3               ; L*8
    v_lshl_add_u32 v{vRow}, v{vS}, 9, v{vJ16}
    v_mul_u32_u24 v{vS}, s3, v{vS}
    s_lshl_b32 s3, s3, 1
    v_mul_u32_u24 v{vE}, s3, v{vE}
    v_add_u32 v{vS}, {SARR}, v{vS}
    v_add_u32 v{vE}, {EARR - ZROW}, v{vE}
    v_add_u32 v{vRow}, {HEAD - RB}, v{vRow}
    v_cndmask_b32 v{vE}, 0, v{vE}, s[{EMK}:{EMK+1}]
    v_lshl_add_u32 v62, v7, 3, v{vS}
    s_mov_b32 s{PAT}, {(EARR - 2*SARR) & 0xffffffff}
    s_cmp_gt_u32 s{sW}, 3
    s_cbranch_scc1 K2_NOAUX
    v_mov_b32 v124, 0
    v_mov_b32 v125, 0
    v_mov_b32 v122, {N*256 + NPB}
    s_cmp_lt_u32 s{sW}, 2
    s_cbranch_scc1 K2_AUXPAD
    s_lshl_b32 s{sRem}, s{sW}, 8
    s_add_u32 s{sRem}, s{sRem}, s{sT}
    s_add_u32 s{sRem}, s{sRem}, {SARR - 512}
    v_lshl_add_u32 v123, v1, 2, s{sRem}
    s_branch K2_AUXW
    K2_AUXPAD:
    s_cmp_eq_u32 s{sW}, 0
    s_cselect_b64 vcc, -1, 0
    v_cndmask_b32 v126, v3, v2, vcc
    v_cndmask_b32 v123, v57, v56, vcc
    v_add_u32 v123, v123, v126
    v_and_b32 v126, 4, v126
    v_cmp_ne_u32 vcc, 0, v126
    s_mov_b64 exec, vcc
    K2_AUXW:
    ds_write_b32 v123, v122
    v_lshl_add_u32 v123, v123, 1, s{PAT}
    ds_write_b64 v123, v[124:125]
    K2_NOAUX:
    s_waitcnt lgkmcnt(0)
    """)
    if OPT.get('FINE'): st()
    rounds(NR, "K2_SC_DONE", lambda k: f"v_add_u32 v{CA+k}, v{CA+k}, v{REC+4*k+3}\nds_write_b32 v{CA+k}, v{REC+4*k+2}")
    a(f"""
    s_cmp_eq_u32 s{sRM}, 4
    s_cbranch_scc1 K2_RMFIX
    K2_NORM:
    s_waitcnt lgkmcnt(0)
    s_barrier
    """)
    st()
    a(f"ds_read_b64 v[40:41], v{vS}")
    for p in range(1, 4): a(f"ds_read_b64 v[{R+2*p}:{R+2*p+1}], v{vS} offset:{8*p}")
    a(f"""
    ds_read2_b32 v[60:61], v62 offset0:0 offset1:2
    ds_read2_b32 v[62:63], v62 offset0:32 offset1:34
    ds_read_b64 v[{R}:{R+1}], v{vS} offset:32
    v_lshrrev_b32 v19, 3, v0
    v_and_b32 v14, 7, v0
    v_lshlrev_b32 v14, 5, v14             ; 32*m
    v_lshlrev_b32 v42, 2, v19
    v_mad_u32_u24 v19, v19, s{sRST}, v14
    s_waitcnt lgkmcnt(6)
    """)
    def first_gathers(ps):
        for p in ps:
            s0 = 40 if p == 0 else R + 2 * p
            a(f"""
            v_and_or_b32 v{IA}, v{s0}, s{sMsk}, v{vJ16}
            v_and_or_b32 v{IB}, v{s0+1}, s{sMsk}, v{vJ16}
            buffer_load_dwordx4 v[{LD+8*p}:{LD+8*p+3}], v{IA}, s[{S_TBL}:{S_TBL+3}], 0 offen
            buffer_load_dwordx4 v[{LD+8*p+4}:{LD+8*p+7}], v{IB}, s[{S_TBL}:{S_TBL+3}], 0 offen
            """)
    first_gathers([0])
    a(f"""
    v_and_b32 v41, 0x7f, v40
    v_mad_u32_u24 v41, v41, s{sRST}, v{vJ16}
    ds_read_b128 v[{CEA}:{CEA+3}], v41 offset:{RB+512}
    ds_read_b128 v[120:123], v19 offset:{RB+512}
    ds_read_b128 v[124:127], v19 offset:{RB+528}
    """)
    def side_work(tag):
        a(f"""
        s_cmp_lg_u32 s{sBase}, 0
        s_cbranch_scc1 K2_NOLATE{tag}
        v_add_u32 v{vXo}, s{sR0}, v{vXo}
        """)
        for k in range(4): a(f"v_lshlrev_b32 v{WC+k}, 16, v{WC+k}\nv_mul_f32 v{WC+k}, s{L2E}, v{WC+k}")
        a(f"""
        v_cvt_pk_bf16_f32 v{WC}, v{WC}, v{WC+1}
        v_cvt_pk_bf16_f32 v{WC+1}, v{WC+2}, v{WC+3}
        v_mov_b32 v{CC}, {CBITS}
        v_mov_b32 v{CC+1}, {CBITS}
        v_bfe_u32 v44, v1, 2, 2
        v_and_b32 v45, 3, v1
        v_mov_b32 v46, 0x3f80
        v_cmp_eq_u32 vcc, v6, v44
        v_cmp_eq_u32 s[{M0_}:{M0_+1}], 0, v45
        v_cmp_eq_u32 s[{M1_}:{M1_+1}], 1, v45
        v_cndmask_b32 v46, 0, v46, vcc
        v_cmp_eq_u32 s[{TMP}:{TMP+1}], 2, v45
        v_cmp_eq_u32 vcc, 3, v45
        v_cndmask_b32 v{SEL}, 0, v46, s[{M0_}:{M0_+1}]
        v_cndmask_b32 v{SEL+1}, 0, v46, s[{M1_}:{M1_+1}]
        v_cndmask_b32 v{SEL+2}, 0, v46, s[{TMP}:{TMP+1}]
        v_cndmask_b32 v{SEL+3}, 0, v46, vcc
        v_cndmask_b32 v{vEs}, 0, 64, s[{EMK}:{EMK+1}]
        K2_NOLATE{tag}:
        """)
        for i in range(4):
            a(f"v_lshlrev_b32 v{XFL[2*i]}, 16, v{XR+i}\nv_and_b32 v{XFL[2*i+1]}, 0xffff0000, v{XR+i}")
        a(f"""
        v_add_u32 v6, {ZROW}, v14
        s_waitcnt lgkmcnt({0 if tag == 'A' else 3})
        v_xor_b32 v60, v60, v61
        v_xor_b32 v62, v62, v63
        v_and_b32 v60, 0x7f, v60
        v_and_b32 v62, 0x7f, v62
        v_cmp_ne_u32 s[{M0_}:{M0_+1}], 0, v60
        v_cmp_ne_u32 s[{M1_}:{M1_+1}], 0, v62
        """)
        for i in range(8): a(f"v_lshlrev_b32 v{120+i}, 16, v{120+i}")
        for i in range(8): a(f"v_add_f32 v{120+i}, v{XFL[i]}, v{120+i}")
    a(f"s_cmp_lt_u32 s{sW}, 4\ns_cbranch_scc1 K2_SE\ns_setprio 1")
    side_work("A")
    a("K2_SE:")
    rounds(NR, "K2_SE_DONE", lambda k: f"v_lshl_add_u32 v{CA+k}, v{CA+k}, 1, s{PAT}\nds_write_b64 v{CA+k}, v[{REC+4*k}:{REC+4*k+1}]")
    a(f"""
    s_cmp_lt_u32 s{sW}, 4
    s_cbranch_scc0 K2_NODESC
    s_cmp_lg_u32 s{sW}, 0
    s_cbranch_scc1 K2_OLDSIDE
    s_max_u32 s{sRem}, s{sL}, 1
    v_cvt_f32_u32 v44, s{sRem}
    v_rcp_f32 v44, v44
    v_subrev_u32 v56, {SARR}, v56
    v_subrev_u32 v57, {SARR}, v57
    v_mul_f32 v44, {f2u(2.0**20)}, v44
    v_lshrrev_b32 v56, 3, v56
    v_lshrrev_b32 v57, 3, v57
    v_cvt_u32_f32 v44, v44
    v_lshrrev_b32 v58, 3, v58
    v_add_u32 v44, 2, v44
    s_sub_u32 s{sRem}, s{sRem}, 1
    """)
    for i, q in enumerate((56, 57, 58)):
        a(f"v_add_u32 v{48+i}, s{sRem}, v{q}\nv_mul_lo_u32 v{48+i}, v{48+i}, v44\nv_lshrrev_b32 v{48+i}, 20, v{48+i}")
    a(f"v_lshlrev_b32 v45, 1, v1\nv_mul_u32_u24 v45, s{sRST}, v45\nv_add_u32 v45, {RB}, v45\nv_mov_b32 v44, {EPSR}")
    for i in range(2):
        a(f"""
        v_mul_u32_u24 v46, s{sL}, v{48+i}
        v_cmp_ne_u32 vcc, v46, v{56+i}
        v_cmp_ne_u32 s[{TMP}:{TMP+1}], v{56+i}, v{57+i}
        s_and_b64 vcc, vcc, s[{TMP}:{TMP+1}]
        v_sub_u32 v47, v{49+i}, v{48+i}
        v_cndmask_b32 v46, v44, v45, vcc
        v_lshl_or_b32 v46, v{48+i}, 18, v46
        v_lshl_or_b32 v{52+i}, v47, 25, v46
        v_add_u32 v45, {RST}, v45
        """)
    a(f"""
    ds_write_b64 v{vCntA}, v[52:53] offset:{DESC}
    K2_OLDSIDE:
    """)
    side_work("B")
    a(f"""
    K2_NODESC:
    s_mov_b32 s{S_OUT+2}, {N*256}
    s_mov_b32 s{S_OUT+3}, 0x20000
    s_mov_b32 s{PAT}, 0x00010001
    s_mov_b32 s{PAT+1}, 0x00010001
    s_sub_u32 s{sRem}, s{sL}, 1
    s_and_b32 s{sT}, s{sRem}, 15
    s_lshl_b64 s[{TMP}:{TMP+1}], s[{PAT}:{PAT+1}], s{sT}
    s_cmp_lt_u32 s{sRem}, 16
    s_cselect_b64 vcc, s[{TMP}:{TMP+1}], 0
    s_cselect_b64 s[{TMP}:{TMP+1}], 0, s[{TMP}:{TMP+1}]
    s_or_b64 s[{M0_}:{M0_+1}], s[{M0_}:{M0_+1}], vcc
    s_or_b64 s[{M1_}:{M1_+1}], s[{M1_}:{M1_+1}], s[{TMP}:{TMP+1}]
    s_waitcnt lgkmcnt(0)
    s_barrier
    {f"s_mov_b64 exec, 1{chr(10)}buffer_load_dword v{vTch}, v{vXo}, s[{S_OUT}:{S_OUT+3}], 0 offen{chr(10)}s_mov_b64 exec, -1" if OPT.get('TLB') else ""}
    ds_read_b128 v[{EE}:{EE+3}], v{vE} offset:{ZROW}
    ds_read_b32 v7, v42 offset:{DESC}
    ds_read_b128 v[{NUM}:{NUM+3}], v{vJ16} offset:{ZROW}
    ds_read_b128 v[{DEN}:{DEN+3}], v{vJ16} offset:{ZROW}
    s_setprio 3
    """)
    st()
    first_gathers([1, 2, 3])
    a(f"""
    s_waitcnt lgkmcnt(0)
    v_and_b32 v19, 0x3ffff, v7
    v_add_u32 v19, v19, v14
    v_bfe_u32 v{D}, v7, 18, 7
    v_lshl_add_u32 v14, v{D}, 9, v14
    v_lshrrev_b32 v7, 25, v7
    v_cmp_ne_u32 vcc, 0, v7
    v_add_u32 v14, {HEAD}, v14
    s_cmp_eq_u32 s{sL}, 0
    v_cndmask_b32 v6, v6, v14, vcc
    s_cbranch_scc1 K2_LOOP_DONE
    """)
    a(f"""
    s_sub_u32 s{sT}, s{sL}, 17
    s_cmp_gt_u32 s{sRem}, 3
    s_cselect_b32 s{S_TBL+2}, {TBLSZ}, 0
    s_waitcnt vmcnt(6)
    v_mfma_f32_16x16x16_bf16 v[{T}:{T+3}], v[{EE}:{EE+1}], v[{WC}:{WC+1}], v[{LD}:{LD+3}]
    v_mfma_f32_16x16x16_bf16 v[{T+4}:{T+7}], v[{EE+2}:{EE+3}], v[{WC}:{WC+1}], v[{LD+4}:{LD+7}]
    s_cmp_lg_u32 s{sRM}, 0
    s_nop 0
    ds_read_b128 v[{EE}:{EE+3}], v{vE} offset:{ZROW+16}
    s_nop 3
    """)
    st()
    if OPT.get('BOTH'): st(True)
    a(f"s_cbranch_scc1 K2_LOOP_1")
    a_real = a
    def afilt(txt):
        out = []
        for l in txt.strip('\n').split('\n'):
            t = l.strip()
            if OPT.get('XVMEM') and t.startswith('s_cselect_b32') and str(TBLSZ) in t: t = f"s_mov_b32 s{S_TBL+2}, 0"
            if OPT.get('XVMEM2') and t.startswith('buffer_load'): continue
            if OPT.get('XLDS') and t.startswith('ds_read') and 'offset:%d' % (RB+512) not in t: continue
            if OPT.get('XAND') and t.startswith('v_and_or'): continue
            if OPT.get('XFL') and t.startswith('s_and_b64'): t = f"s_cmp_eq_u32 s{sRem}, 0\ns_mov_b64 s[{TMP}:{TMP+1}], s[{PAT}:{PAT+1}]"
            if OPT.get('XSALU') and t.startswith(('s_lshr_b64', 's_cmp_gt_u32', 's_cselect_b32')): continue
            if OPT.get('XWAIT') and t.startswith('s_waitcnt'): continue
            if OPT.get('XMV') and t.startswith('v_mfma_f32_16x16x32'): continue
            if OPT.get('XMT') and t.startswith('v_mfma_f32_16x16x16'): continue
            if OPT.get('XPK') and t.startswith('v_pk_') and 'mov' not in t: continue
            if OPT.get('XTRANS') and t.startswith(('v_exp', 'v_rcp')): continue
            if OPT.get('VSHL') and t.startswith('v_mfma_f32_16x16x32'):
                import re
                m = re.findall(r'v\[(\d+):', t); d = int(m[0]); b = int(m[2])
                for r in range(4): out.append(f"v_lshlrev_b32 v{d+r}, 16, v{b+r}")
                continue
            out.append(t)
        a_real('\n'.join(out))
    def loop(rm):
        a = afilt
        a(f"K2_LOOP_{rm}:")
        for u in range(4):
            la = LD + 8 * u; lb = la + 4; na = LD + 8 * ((u + 1) % 4); nb = na + 4
            ru = R + 2 * u; rn = R + 2 * ((u + 1) % 4)
            if rm:
                a("s_waitcnt lgkmcnt(0)")
                for i in range(4): a(pk('add', T + 2 * i, T + 2 * i, CEA + (2 * i) % 4))
            a(f"""
            v_mfma_f32_16x16x32_bf16 v[{V}:{V+3}], v[{SEL}:{SEL+3}], v[{la}:{la+3}], 0
            v_exp_f32 v{T}, v{T}
            v_exp_f32 v{T+1}, v{T+1}
            v_mfma_f32_16x16x32_bf16 v[{V+4}:{V+7}], v[{SEL}:{SEL+3}], v[{lb}:{lb+3}], 0
            """)
            for r in range(2, 8): a(f"v_exp_f32 v{T+r}, v{T+r}")
            a(f"""
            s_waitcnt lgkmcnt(0)
            v_and_or_b32 v{IA}, v{ru}, s{sMsk}, v{vJ16}
            v_and_or_b32 v{IB}, v{ru+1}, s{sMsk}, v{vJ16}
            buffer_load_dwordx4 v[{la}:{la+3}], v{IA}, s[{S_TBL}:{S_TBL+3}], 0 offen
            buffer_load_dwordx4 v[{lb}:{lb+3}], v{IB}, s[{S_TBL}:{S_TBL+3}], 0 offen
            """)
            for i in range(4):
                a(pk('fma', T + 2 * i, T + 2 * i, CC if rm else CEA + (2 * i) % 4, CC, mod=' clamp'))
            for i in (0, 2): a(pk('mul', D + i, T + i, T + 4 + i))
            for i in (0, 2): a(pk('add', ND + i, T + i, T + 4 + i))
            for i in (0, 2): a(pk('mul', W + i, V + i, T + 4 + i))
            for i in (0, 2): a(pk('fma', W + i, V + 4 + i, T + i, W + i))
            a(f"""
            s_waitcnt vmcnt(6)
            v_mfma_f32_16x16x16_bf16 v[{T}:{T+3}], v[{EE}:{EE+1}], v[{WC}:{WC+1}], v[{na}:{na+3}]
            v_rcp_f32 v{D}, v{D}
            v_rcp_f32 v{D+1}, v{D+1}
            v_mfma_f32_16x16x16_bf16 v[{T+4}:{T+7}], v[{EE+2}:{EE+3}], v[{WC}:{WC+1}], v[{nb}:{nb+3}]
            v_rcp_f32 v{D+2}, v{D+2}
            v_rcp_f32 v{D+3}, v{D+3}
            s_and_b64 s[{TMP}:{TMP+1}], s[{M0_}:{M0_+1}], s[{PAT}:{PAT+1}]
            """)
            for i in (0, 2): a(pk('fma', DEN + i, ND + i, D + i, DEN + i))
            for i in (0, 2): a(pk('fma', NUM + i, W + i, D + i, NUM + i))
            a(f"""
            s_cbranch_scc1 K2_FL_{rm}_{u}
            K2_BK_{rm}_{u}:
            ds_read_b64 v[{rn}:{rn+1}], v{vS} offset:{8*(u+5)}
            ds_read_b128 v[{EE}:{EE+3}], v{vE} offset:{ZROW + 16*(u+2)}
            s_lshr_b64 s[{M0_}:{M0_+1}], s[{M0_}:{M0_+1}], 1
            s_sub_u32 s{sRem}, s{sRem}, 1
            s_cmp_gt_u32 s{sRem}, 3
            s_cselect_b32 s{S_TBL+2}, {TBLSZ}, 0
            """)
            if u == 3:
                a(f"""
                v_add_u32 v{vS}, 32, v{vS}
                v_add_u32 v{vE}, v{vEs}, v{vE}
                s_cmp_eq_u32 s{sRem}, s{sT}
                s_cselect_b64 s[{M0_}:{M0_+1}], s[{M1_}:{M1_+1}], s[{M0_}:{M0_+1}]
                s_cmp_ge_u32 s{sRem}, 16
                s_cbranch_scc1 K2_LOOP_{rm}
                s_setprio 2
                s_cmp_ge_u32 s{sRem}, 8
                s_cbranch_scc1 K2_LOOP_{rm}
                s_setprio 1
                s_cmp_ge_u32 s{sRem}, 4
                s_cbranch_scc1 K2_LOOP_{rm}
                s_setprio 0
                s_branch K2_LOOP_{rm}
                """)
        for u in range(4):
            rn = R + 2 * ((u + 1) % 4)
            a(f"""
            K2_FL_{rm}_{u}:
            s_mul_i32 exec_lo, s{TMP}, 0xffff
            s_mul_i32 exec_hi, s{TMP+1}, 0xffff
            ds_write_b128 v{vRow}, v[{NUM}:{NUM+3}] offset:{RB}
            ds_write_b128 v{vRow}, v[{DEN}:{DEN+3}] offset:{RB+256}
            v_and_b32 v{IA}, 0x7f, v{rn}
            v_mad_u32_u24 v{vRow}, v{IA}, s{sRST}, v{vJ16}
            s_cmp_lg_u32 s{sRem}, 0
            ds_read_b128 v[{CEA}:{CEA+3}], v{vRow} offset:{RB+512}
            """)
            a(f"ds_read_b128 v[{NUM}:{NUM+3}], v{vJ16} offset:{ZROW}\nds_read_b128 v[{DEN}:{DEN+3}], v{vJ16} offset:{ZROW+512}")
            a(f"s_mov_b64 exec, -1\ns_cbranch_scc1 K2_BK_{rm}_{u}")
            if not (rm == 0 and u == 3): a("s_branch K2_LOOP_DONE")
    if OPT.get('ALIGN', 1): a(".p2align 6")
    loop(0)
    a("K2_LOOP_DONE:\ns_setprio 0")
    st()
    if OPT.get('BOTH'): st(True)
    a(f"""
    v_cmp_gt_u32 s[{TMP}:{TMP+1}], s{sRST}, v0
    s_waitcnt vmcnt(0) lgkmcnt(0)
    s_barrier
    """)
    st()
    a(f"""
    s_mov_b64 exec, s[{TMP}:{TMP+1}]
    ds_read_b128 v[40:43], v19 offset:256
    ds_read_b128 v[72:75], v6 offset:256
    ds_read_b128 v[44:47], v19 offset:272
    ds_read_b128 v[76:79], v6 offset:272
    ds_read_b128 v[32:35], v19
    ds_read_b128 v[64:67], v6
    ds_read_b128 v[36:39], v19 offset:16
    ds_read_b128 v[68:71], v6 offset:16
    v_cmp_lt_u32 vcc, 1, v7
    s_or_b32 s3, s{sNB}, s{sBase}
    s_cselect_b64 s[{M0_}:{M0_+1}], -1, vcc
    s_waitcnt lgkmcnt(4)
    """)
    for i in range(4, 8): a(pk('add', 32 + 2 * i, 32 + 2 * i, 64 + 2 * i))
    a(f"s_cmp_lg_u64 s[{M0_}:{M0_+1}], 0\ns_cbranch_scc1 K2_RARE_FIN")
    for i in range(8): a(f"v_rcp_f32 v{40+i}, v{40+i}")
    a("s_waitcnt lgkmcnt(0)")
    for i in range(4): a(pk('add', 32 + 2 * i, 32 + 2 * i, 64 + 2 * i))
    a("K2_FINAL:")
    for i in range(4): a(pk('fma', 32 + 2 * i, 32 + 2 * i, 40 + 2 * i, 120 + 2 * i))
    for i in range(8): a(f"v_max_f32 v{32+i}, v{XFL[i]}, v{32+i}")
    for i in range(4): a(f"v_cvt_pk_bf16_f32 v{40+i}, v{32+2*i}, v{33+2*i}")
    a(f"buffer_store_dwordx4 v[40:43], v{vXo}, s[{S_OUT}:{S_OUT+3}], 0 offen{OSTP}")
    if DIAG:
        a("s_waitcnt vmcnt(0)"); st(); st.dump(1, "s2", f"s{sW}", 2, S_WS)
    a("K2_END:\ns_endpgm")
    a(f"""
    K2_RMFIX:
    s_cmp_ge_u32 s{sW}, 14
    s_cbranch_scc1 K2_NORM
    v_mov_b32 v4, {TINY}
    v_mov_b32 v5, {TINY}
    s_mov_b32 s{SEL0}, 0x05040100
    """)
    for i in range(4): a(pk('fma', ACC + 2 * i, ACC + 2 * i, f"s[{L2E}:{L2E+1}]", 4))
    for i in range(4): pack_pair(a, ACC + 2 * i, ACC + 8 + 2 * i, WF + 2 * i, WF + 2 * i + 1, f"s{SEL0}", f"s{SEL1}", cvt=False)
    a(f"""
    s_lshr_b32 s3, s{sW}, 1
    v_lshl_add_u32 v4, s3, 4, v7
    v_cmp_gt_u32 vcc, {NPB}, v4
    s_mov_b64 exec, vcc
    ds_write_b128 v{vCe}, v[{WF}:{WF+3}] offset:{RB+512}
    ds_write_b128 v{vCe}, v[{WF+4}:{WF+7}] offset:{RB+576}
    s_mov_b64 exec, -1
    s_branch K2_NORM
    """)
    loop(1)
    a(f"""
    K2_SLOWINIT:
    s_cmp_lg_u32 s{sNB}, 0
    s_cbranch_scc1 K2_DECIDED
    v_lshl_add_u32 v2, v1, 3, s{sInf}
    buffer_load_dwordx2 v[2:3], v2, s[{S_WS}:{S_WS+3}], 0 offen
    s_waitcnt vmcnt(0)
    v_lshrrev_b32 v2, 16, v2
    v_lshrrev_b32 v3, 16, v3
    v_max_u32 v2, v2, v3
    """)
    wave_red(a, 2, "max_u32")
    a(f"""
    v_readlane_b32 s3, v2, 63
    s_add_u32 s3, s3, 23
    s_mul_i32 s3, s3, 43691
    s_lshr_b32 s{sNB}, s3, 20
    """)
    for k in range(3, NR): a(f"s_mov_b64 s[{MK+2*k}:{MK+2*k+1}], 0")
    a(f"""
    s_barrier
    v_mov_b32 v2, 0
    v_mov_b32 v3, 0
    ds_write_b64 v{vCntA}, v[2:3]
    s_waitcnt lgkmcnt(0)
    s_barrier
    s_branch K2_BATCH
    K2_RARE_FIN:
    s_waitcnt lgkmcnt(0)
    """)
    for i in range(4): a(pk('add', 32 + 2 * i, 32 + 2 * i, 64 + 2 * i))
    a(f"""
    s_cbranch_vccz K2_HEADS_DONE
    K2_MORE_HEADS:
    s_mov_b64 exec, vcc
    v_add_u32 v14, 512, v14
    v_subrev_u32 v7, 1, v7
    ds_read_b128 v[64:67], v14
    ds_read_b128 v[68:71], v14 offset:16
    ds_read_b128 v[72:75], v14 offset:256
    ds_read_b128 v[76:79], v14 offset:272
    v_cmp_lt_u32 vcc, 1, v7
    s_waitcnt lgkmcnt(0)
    """)
    for i in range(8): a(pk('add', 32 + 2 * i, 32 + 2 * i, 64 + 2 * i))
    a(f"""
    s_cbranch_vccnz K2_MORE_HEADS
    s_mov_b64 exec, s[{TMP}:{TMP+1}]
    K2_HEADS_DONE:
    s_cmp_eq_u32 s{sNB}, 0
    s_cbranch_scc1 K2_RCP
    s_sub_u32 s{sNB}, s{sNB}, 1
    s_lshl_b32 s3, s2, 16
    s_add_u32 s3, s3, {SCR_OFF}
    v_lshl_add_u32 v48, v0, 6, s3
    s_cmp_eq_u32 s{sBase}, 0
    s_cbranch_scc1 K2_NOLOAD
    """)
    for i in range(4): a(f"buffer_load_dwordx4 v[{64+4*i}:{67+4*i}], v48, s[{S_WS}:{S_WS+3}], 0 offen offset:{16*i}")
    a("s_waitcnt vmcnt(0)")
    for i in range(8): a(pk('add', 32 + 2 * i, 32 + 2 * i, 64 + 2 * i))
    a(f"""
    K2_NOLOAD:
    s_cmp_lg_u32 s{sNB}, 0
    s_cbranch_scc1 K2_NEXT
    K2_RCP:
    """)
    for i in range(8): a(f"v_rcp_f32 v{40+i}, v{40+i}")
    a("s_nop 0\ns_branch K2_FINAL\nK2_NEXT:")
    a(f"s_mov_b32 s{EPS}, {EPSP}\ns_mov_b32 s{EPS+1}, {EPSP}")
    for i in range(4): a(pk('add', 40 + 2 * i, 40 + 2 * i, f"s[{EPS}:{EPS+1}]", mod=" neg_lo:[0,1] neg_hi:[0,1]"))
    for i in range(4): a(f"buffer_store_dwordx4 v[{32+4*i}:{35+4*i}], v48, s[{S_WS}:{S_WS+3}], 0 offen offset:{16*i}")
    a(f"""
    s_mov_b64 exec, -1
    s_waitcnt vmcnt(0) lgkmcnt(0)
    s_barrier
    v_lshrrev_b32 v2, 3, v0
    v_lshl_add_u32 v3, v2, 2, s{sInf}
    buffer_load_dword v{vRem}, v3, s[{S_WS}:{S_WS+3}], 0 offen
    s_add_u32 s{sBase}, s{sBase}, 24
    s_mov_b32 s3, {RECREG}
    v_mul_u32_u24 v{vRecA}, s3, v2
    v_and_b32 v15, 7, v0
    v_add_u32 v15, s{sBase}, v15
    v_mad_u32_u24 v{vRecA}, v15, 12, v{vRecA}
    v_add_u32 v{vRecA}, {REC_OFF}, v{vRecA}
    v_mov_b32 v{vOne}, 4
    v_mov_b32 v{vZ}, 0
    v_lshrrev_b32 v6, 4, v1
    v_and_b32 v7, 15, v1
    s_lshl_b32 s3, s{sW}, 2
    v_bfe_u32 v16, v1, 2, 2
    v_add_u32 v{vS}, s3, v6
    v_add_u32 v{vE}, s3, v16
    v_mov_b32 v2, 0
    v_mov_b32 v3, 0
    ds_write_b64 v{vCntA}, v[2:3]
    s_mov_b32 s{S_TBL+2}, {TBLSZ}
    s_cmp_eq_u32 s{sRM}, 0
    s_cbranch_scc1 K2_NB_NOFLAG
    v_mov_b32 v5, 5
    ds_write_b32 v{vZ}, v5 offset:{FLAG}
    K2_NB_NOFLAG:
    s_waitcnt vmcnt(0)
    v_and_b32 v3, 0xffff, v{vRem}
    v_lshrrev_b32 v{vRem}, 16, v{vRem}
    v_add_u32 v{vRecA}, v3, v{vRecA}
    v_sub_u32 v{vRem}, v{vRem}, v15
    """)
    rec_masks(3); rec_issue(3, "K2_RI_SLOW")
    a("s_waitcnt vmcnt(0) lgkmcnt(0)\ns_barrier\ns_branch K2_BATCH\nCODE_END:")

HEADER = open('standalone__edge_featured_mpnn_gatedgcn__graph.s.ref').read().split('; Override launch')[0]

def kd(name, vgpr, sgpr):
    return f""".amdhsa_kernel {name}
  .amdhsa_next_free_vgpr {vgpr}
  .amdhsa_next_free_sgpr {sgpr}
  .amdhsa_accum_offset {(vgpr + 3) // 4 * 4}
  .amdhsa_group_segment_fixed_size 0
  .amdhsa_kernarg_size 96
  .amdhsa_user_sgpr_count 2
  .amdhsa_user_sgpr_kernarg_segment_ptr 1
  .amdhsa_system_sgpr_workgroup_id_x 1
.end_amdhsa_kernel
"""

def build(verbose=False):
    out = HEADER
    out += "; Two launches: prep_kernel (x @ [w_b | w_v] -> gather tables; edges partitioned by destination bucket),\n"
    out += "; agg_kernel (per bucket and feature half: gates, normalised aggregation, residual output).\n"
    out += f"; @launch kernel=prep_kernel grid=({K1_GRID},1,1) block=({K1_BLOCK},1,1) lds={K1_LDS}\n"
    out += f"; @launch kernel=agg_kernel grid=({K2_GRID},1,1) block=({K2_BLOCK},1,1) lds={K2_LDS}\n"
    ks = [("prep_kernel", gen_k1), ("agg_kernel", gen_k2)]
    if OPT.get('PROBE'):
        out += "; @launch kernel=probe_kernel grid=(1,1,1) block=(64,1,1) lds=0\n"; ks.append(("probe_kernel", gen_probe))
    out += '.amdgcn_target "amdgcn-amd-amdhsa--gfx950"\n.text\n'
    for name, g in ks:
        a = Asm(); g(a)
        out += f".globl {name}\n.p2align 8\n.type {name},@function\n" + a.finish(verbose)
    out += '.section .rodata,"a"\n.p2align 6\n' + kd("prep_kernel", 128, 102 if DIAG else 64) + '.p2align 6\n' + kd("agg_kernel", 128, 102 if DIAG else 84)
    if OPT.get('PROBE'): out += '.p2align 6\n' + kd("probe_kernel", 8, 32)
    return out

if __name__ == '__main__':
    args = sys.argv[1:]
    if '--diag' in args: DIAG = True; args.remove('--diag')
    for x in list(args):
        if x.startswith('-D'):
            k, _, val = x[2:].partition('='); OPT[k] = int(val or 1); args.remove(x)
    v = '-v' in args
    if v: args.remove('-v')
    open(args[0], 'w').write(build(v))
```

```python
import sys, struct, math
from asmlib import Asm

def f2u(x): return struct.unpack('<I', struct.pack('<f', x))[0]

N = 12500; E = 400000
NPB = 98; NB = 128
NC = 128; CH = 3128; HCH = CH // 2
RECREG = CH * 12
TBL_H = 0x310000
REC_OFF = 0x800000
OFFS_OFF = 0x1000000
LC_OFF = OFFS_OFF + 0x10000
SCR_OFF = 0x1100000
DIAG_OFF = 0x2800000
NEGL2E = f2u(-math.log2(math.e))
TINY = 0x0d800000
CBITS = (127 - 62) << 23
EPSP = f2u(1e-6 * 2.0 ** 62)

G_WG = 128; S_WG = 128; K1_GRID = G_WG + S_WG; K1_BLOCK = 1024; K1_LDS = 163840
K2_GRID = 256; K2_BLOCK = 1024
LMAX = 28; RST = 784
CNT = 0; OFFA = 512; DESC = 1024; ZROW = 1536; EPSR = ZROW + 256; FLAG = ZROW + 768; SYNC = FLAG + 4; FLAG2 = FLAG + 8; MISC = FLAG + 16
RB = 2560; HEAD = 80384; EARR = HEAD + 32768; NPOS = LMAX * 128 + 128; SARR = EARR + NPOS * 8; K2_LDS = SARR + NPOS * 4
assert RB + 99 * RST <= HEAD
WS_SIZE = 0x2800000
NR = 7

assert RST == NPB * 8
DIAG = False
OPT = {}

def ws_shift(a):
    if OPT.get('WSOFF'): a(f"s_add_u32 s26, s26, {OPT['WSOFF'] << 20}\ns_addc_u32 s27, s27, 0")

def srd(a, s, lo, hi, size):
    a(f"s_mov_b32 s{s}, {lo}\ns_and_b32 s{s+1}, {hi}, 0xffff\ns_mov_b32 s{s+2}, {size}\ns_mov_b32 s{s+3}, 0x20000")

def srd_off(a, s, plo, off, size):
    a(f"s_add_u32 s{s}, s{plo}, {off}\ns_addc_u32 s{s+1}, s{plo+1}, 0\ns_and_b32 s{s+1}, s{s+1}, 0xffff")
    a(f"s_mov_b32 s{s+2}, {size}\ns_mov_b32 s{s+3}, 0x20000")

def wave_red(a, v, op):
    for sh in (1, 2, 4, 8):
        a(f"v_{op}_dpp v{v}, v{v}, v{v} row_shr:{sh} row_mask:0xf bank_mask:0xf bound_ctrl:1")
    a(f"v_{op}_dpp v{v}, v{v}, v{v} row_bcast:15 row_mask:0xa bank_mask:0xf")
    a(f"v_{op}_dpp v{v}, v{v}, v{v} row_bcast:31 row_mask:0xc bank_mask:0xf")

def pk(op, d, *srcs, mod=''):
    return f"v_pk_{op}_f32 v[{d}:{d+1}], " + ", ".join(s if isinstance(s, str) else f"v[{s}:{s+1}]" for s in srcs) + mod

def pack_pair(a, h, l, o0, o1, sel0, sel1, cvt=True):
    if cvt: a(f"v_cvt_pk_bf16_f32 v{l}, v{l}, v{l+1}")
    a(f"""
    v_sub_u32_sdwa v{h}, v{h}, v{l} dst_sel:DWORD dst_unused:UNUSED_PAD src0_sel:DWORD src1_sel:WORD_0
    v_sub_u32_sdwa v{h+1}, v{h+1}, v{l} dst_sel:DWORD dst_unused:UNUSED_PAD src0_sel:DWORD src1_sel:WORD_1
    v_cvt_pk_bf16_f32 v{h}, v{h}, v{h+1}
    v_perm_b32 v{o0}, v{h}, v{l}, {sel0}
    v_perm_b32 v{o1}, v{h}, v{l}, {sel1}
    """)

class Stamps:
    def __init__(self, a, base): self.a = a; self.base = base; self.n = 0
    def __call__(self, cyc=False):
        if not DIAG: return
        s = self.base + self.n; self.n += 1
        assert s < 100
        op = 's_memtime' if (OPT.get('CYC') or cyc) else 's_memrealtime'
        self.a(f"{op} s[100:101]\ns_waitcnt lgkmcnt(0)\ns_mov_b32 s{s}, s100")
    def dump(self, kern, wg, swave, vt, srdreg):
        if not DIAG: return
        a = self.a
        a(f"s_load_dwordx2 s[26:27], s[0:1], 88\ns_waitcnt lgkmcnt(0)")
        srd_off(a, srdreg, 26, DIAG_OFF + kern * 0x100000, 0x100000)
        a(f"s_lshl_b32 s3, {wg}, 4\ns_add_u32 s3, s3, {swave}\ns_lshl_b32 s3, s3, 6")
        a(f"s_mov_b64 exec, 1\nv_mov_b32 v{vt}, s3")
        for i in range(self.n):
            a(f"v_mov_b32 v{vt+1}, s{self.base+i}\nbuffer_store_dword v{vt+1}, v{vt}, s[{srdreg}:{srdreg+3}], 0 offen offset:{4*i}\ns_nop 1")

def probe_stamp(a, slot, nm):
    if not OPT.get('PROBE') or OPT['PROBE'] >= 10: return
    a(f"""
    s_cmp_lg_u32 s2, 0
    s_cbranch_scc1 {nm}_NOPROBE
    s_memrealtime s[8:9]
    s_load_dwordx2 s[4:5], s[0:1], 88
    s_waitcnt lgkmcnt(0)
    s_add_u32 s4, s4, {DIAG_OFF + 0x300000 + slot*256}
    s_addc_u32 s5, s5, 0
    v_mov_b32 v2, s8
    v_mov_b32 v3, 0
    s_mov_b64 exec, 1
    global_store_dword v3, v2, s[4:5]
    s_mov_b64 exec, -1
    {nm}_NOPROBE:
    """)

def gen_probe(a):
    P = OPT['PROBE']
    if P < 10:
        a(f"""
        probe_kernel:
        s_cmp_lg_u32 s2, 0
        s_cbranch_scc1 P_END
        s_memrealtime s[8:9]
        s_load_dwordx2 s[4:5], s[0:1], 88
        s_waitcnt lgkmcnt(0)
        s_add_u32 s4, s4, {DIAG_OFF + 0x300000}
        s_addc_u32 s5, s5, 0
        v_mov_b32 v3, 0
        global_load_dword v1, v3, s[4:5]
        global_load_dword v2, v3, s[4:5] offset:256
        s_waitcnt vmcnt(0)
        v_readfirstlane_b32 s10, v1
        v_readfirstlane_b32 s11, v2
        s_nop 4
        s_sub_u32 s12, {'s11' if P == 2 else 's8'}, s10
        """)
        if P == 3:
            a("""
            s_sub_u32 s13, s11, s10
            v_mov_b32 v4, s12
            v_mov_b32 v5, s13
            global_store_dwordx2 v3, v[4:5], s[4:5] offset:512
            s_endpgm
            """)
    else:
        kern = OPT.get('PK', 0); idx = P - 10; nw = 16; w0 = OPT.get('PW0', 0); nwg = OPT.get('PNW', 256); kb = OPT.get('PB', 0)
        a(f"""
        probe_kernel:
        s_cmp_lg_u32 s2, 0
        s_cbranch_scc1 P_END
        s_memrealtime s[8:9]
        s_load_dwordx2 s[4:5], s[0:1], 88
        s_waitcnt lgkmcnt(0)
        s_add_u32 s4, s4, {DIAG_OFF}
        s_addc_u32 s5, s5, 0
        v_lshlrev_b32 v3, 10, v0
        v_mov_b32 v4, -1
        v_mov_b32 v5, 0
        """)
        for k in range(4):
            a(f"v_add_u32 v6, {kb*0x100000 + k*65536}, v3\nglobal_load_dword v1, v6, s[4:5]\ns_waitcnt vmcnt(0)\nv_min_u32 v4, v4, v1")
        for k in range(nwg // 64):
            for w in range(nw):
                a(f"v_add_u32 v6, {kern*0x100000 + (w0 + k*64)*1024 + w*64 + idx*4}, v3\nglobal_load_dword v1, v6, s[4:5]\ns_waitcnt vmcnt(0)\nv_max_u32 v5, v5, v1")
        a("v_not_b32 v4, v4")
        wave_red(a, 4, "max_u32"); wave_red(a, 5, "max_u32")
        a("""
        s_nop 1
        v_readlane_b32 s10, v4, 63
        v_readlane_b32 s11, v5, 63
        s_nop 4
        s_not_b32 s10, s10
        s_sub_u32 s12, s11, s10
        s_memrealtime s[8:9]
        s_waitcnt lgkmcnt(0)
        """)
    a(f"""
    s_min_u32 s12, s12, 20000
    s_mul_i32 s12, s12, {100 if P >= 10 else 10}
    P_SPIN:
    s_memrealtime s[14:15]
    s_waitcnt lgkmcnt(0)
    s_sub_u32 s13, s14, s8
    s_cmp_lt_u32 s13, s12
    s_cbranch_scc1 P_SPIN
    P_END:
    s_endpgm
    """)

def w_lane_off(a, d, t0, t1):
    a(f"""
    v_lshrrev_b32 v{t0}, 3, v1
    v_lshlrev_b32 v{t0}, 8, v{t0}
    v_bfe_u32 v{d}, v1, 4, 1
    v_lshlrev_b32 v{d}, 1, v{d}
    v_and_b32 v{t1}, 7, v1
    v_xor_b32 v{d}, v{d}, v{t1}
    v_lshl_add_u32 v{d}, v{d}, 4, v{t0}
    """)

def w_frag_off(a, d, t0, t1, vg):
    a(f"""
    v_bfe_u32 v{t0}, v1, 2, 2
    v_lshl_add_u32 v{d}, v{vg}, 3, v{t0}
    v_lshlrev_b32 v{d}, 7, v{d}
    v_and_b32 v{t1}, 3, v1
    v_lshl_add_u32 v{d}, v{t1}, 3, v{d}
    v_lshrrev_b32 v{t0}, 1, v{t0}
    v_and_b32 v{t1}, 1, v{vg}
    v_lshl_or_b32 v{t0}, v{t1}, 1, v{t0}
    v_lshl_add_u32 v{d}, v{t0}, 5, v{d}
    """)

def gen_k1(a):
    STP = {0: "", 1: " nt", 2: " sc1", 3: " sc0 sc1"}[OPT.get('STP', 2)]
    st = Stamps(a, 64)
    a("prep_kernel:")
    a(f"s_cmp_ge_u32 s2, {K1_GRID}\ns_cbranch_scc1 K1_END")
    probe_stamp(a, 0, "K1")
    if OPT.get('CPRE', 1):
        a(f"""
        s_cmp_ge_u32 s2, {OPT.get('CPREN', 16)}
        s_cbranch_scc1 K1_NOCPRE
        s_getpc_b64 s[4:5]
        K1_PC:
        v_lshlrev_b32 v2, 7, v0
        v_cmp_gt_u32 vcc, CODE_END-K1_PC, v2
        s_and_saveexec_b64 s[6:7], vcc
        s_cbranch_execz K1_CPRE_DONE
        v_mov_b32 v3, s5
        v_add_co_u32 v2, vcc, s4, v2
        v_addc_co_u32 v3, vcc, 0, v3, vcc
        global_load_dword v127, v[2:3], off
        K1_CPRE_DONE:
        s_mov_b64 exec, -1
        K1_NOCPRE:
        """)
    st()
    NT = " nt" if OPT.get('NT', 1) else ""
    a(f"""
    s_load_dwordx2 s[44:45], s[0:1], 88
    v_lshrrev_b32 v2, 6, v0
    v_and_b32 v1, 63, v0
    v_readfirstlane_b32 s50, v2
    s_mov_b32 s46, {SCR_OFF}
    s_mov_b32 s47, 0x20000
    s_cmp_lt_u32 s2, {S_WG}
    s_cbranch_scc1 K1_SORT
    """)
    XF = [8, 24]; ACC = 40; WF = 72; WA = 88; XA = 92; BW = 96; BR = 98
    XST = 65536; BNC = XST + 32768
    def acc(t, m, c): return ACC + ((t * 2 + m) * 2 + c) * 4
    a(f"""
    s_load_dwordx2 s[28:29], s[0:1], 0
    s_load_dwordx2 s[32:33], s[0:1], 40
    s_load_dwordx2 s[4:5], s[0:1], 64
    s_load_dwordx2 s[12:13], s[0:1], 32
    s_load_dwordx2 s[18:19], s[0:1], 56
    s_sub_u32 s53, s2, {S_WG}
    s_and_b32 s51, s53, 3
    s_lshl_b32 s51, s51, 5
    s_bfe_u32 s52, s53, 0x10002
    s_lshl_b32 s56, s52, 4
    s_add_u32 s51, s51, s56
    s_lshr_b32 s56, s53, 3
    s_add_u32 s51, s51, s56              ; bucket
    s_mul_i32 s54, s51, {NPB*256}
    s_add_u32 s58, s54, {NPB*256}
    s_min_u32 s30, s58, {N*256}
    s_mov_b32 s31, 0x20000
    s_mov_b32 s34, 32768
    s_mov_b32 s35, 0x20000
    s_lshl_b32 s55, s50, 11
    s_add_u32 s56, s54, s55
    s_add_u32 s55, s55, {XST}
    s_mov_b32 m0, s55
    v_lshrrev_b32 v6, 4, v1              ; l>>4
    v_and_b32 v7, 15, v1                 ; l&15
    v_xor_b32 v2, v6, v7
    v_lshlrev_b32 v2, 4, v2              ; ((l&15)^(l>>4))*16
    v_lshl_add_u32 v{XA}, v7, 8, v2
    v_lshl_add_u32 v2, v6, 8, v2
    s_and_b32 s57, s50, 1
    s_lshl_b32 s57, s57, 7
    v_xor_b32 v2, s57, v2
    v_add_u32 v8, s56, v2
    v_xor_b32 v9, 64, v8                 ;                  piece 2w+1
    """)
    w_lane_off(a, 4, 5, 48)
    a(f"""
    v_xor_b32 v5, 64, v4
    s_lshl_b32 s57, s50, 12
    s_bfe_u32 s59, s50, 0x10002
    s_lshl_b32 s59, s59, 7
    s_and_b32 s56, s50, 3
    s_lshl_b32 s56, s56, 13
    s_add_u32 s24, s59, s56
    s_add_u32 s25, s24, 1024
    s_add_u32 s26, s24, 2048
    s_add_u32 s27, s24, 3072
    s_cmp_lt_u32 s50, 8
    s_waitcnt lgkmcnt(0)
    buffer_load_dwordx4 v8, s[28:31], 0 offen{NT if OPT.get('XNT', 1) else ''} lds
    buffer_load_dwordx4 v9, s[28:31], 0 offen offset:1024{NT if OPT.get('XNT', 1) else ''} lds
    s_mov_b32 m0, s57
    s_cselect_b64 s[32:33], s[32:33], s[4:5]
    """)
    for i in range(4): a(f"buffer_load_dwordx4 v{4 + (i & 1)}, s[32:35], s{24+i} offen offset:{i*1024} lds")
    a(f"""
    s_bfe_u32 s52, s50, 0x10001
    s_lshr_b32 s56, s50, 2
    s_and_b32 s55, s50, 1
    s_mul_i32 s57, s52, {TBL_H}
    s_add_u32 s36, s44, s57
    s_addc_u32 s37, s45, 0
    s_mov_b64 s[38:39], s[30:31]
    v_and_b32 v48, 3, v1
    v_bfe_u32 v49, v1, 3, 2
    v_bfe_u32 v50, v1, 2, 2
    v_lshlrev_b32 v{WA}, 3, v48
    v_lshl_or_b32 v{WA}, v49, 5, v{WA}
    v_lshl_or_b32 v{WA}, v50, 7, v{WA}
    v_lshl_or_b32 v{WA}, v6, 10, v{WA}
    s_lshl_b32 s57, s55, 6
    s_lshl_b32 s59, s52, 14
    s_or_b32 s57, s57, s59
    v_xor_b32 v{WA}, s57, v{WA}
    v_xor_b32 v{WA+1}, 32, v{WA}
    s_lshl_b32 s57, s56, 13
    s_add_u32 s59, s57, {XST}
    v_add_u32 v{XA}, s59, v{XA}
    v_xor_b32 v{XA+1}, 64, v{XA}
    v_xor_b32 v{XA+2}, 128, v{XA}
    v_xor_b32 v{XA+3}, 192, v{XA}
    s_lshl_b32 s59, s50, 12
    s_add_u32 s59, s59, {BNC}
    v_and_b32 v48, 7, v1
    v_xor_b32 v49, v6, v48
    v_lshlrev_b32 v49, 4, v49
    v_lshl_add_u32 v49, v7, 7, v49
    v_add_u32 v{BW}, s59, v49
    v_xor_b32 v{BW+1}, 64, v{BW}
    v_lshrrev_b32 v50, 3, v1
    v_xor_b32 v49, v48, v50
    v_lshlrev_b32 v49, 4, v49
    v_lshl_add_u32 v49, v50, 7, v49
    v_add_u32 v{BR}, s59, v49
    s_add_u32 s57, s57, s54
    s_lshl_b32 s59, s55, 7
    s_add_u32 s57, s57, s59
    v_lshlrev_b32 v3, 8, v50
    v_lshl_add_u32 v3, v48, 4, v3
    v_add_u32 v3, s57, v3
    v_add_u32 v7, 4096, v3
    s_mov_b32 s20, {NEGL2E}
    s_mov_b32 s22, 0x05040100
    s_mov_b32 s23, 0x07060302
    s_xor_b32 s51, s51, 16
    s_mul_i32 s51, s51, {NPB*256}
    v_lshl_add_u32 v4, v0, 7, s51
    v_lshlrev_b32 v5, 8, v1
    v_mov_b32 v2, {TINY}
    s_mov_b32 s30, {N*256}
    s_waitcnt vmcnt(0)
    """)
    st()
    a("s_barrier")
    st()
    def prefetch():
        a(f"""
        s_cmp_lt_u32 s50, 4
        s_cbranch_scc0 K1_XPRE_DONE
        {"v_cmp_gt_u32 vcc, %d, v0; x" % (NPB*2) if not OPT.get('SPRE') else ""}
        {"s_mov_b64 exec, vcc" if not OPT.get('SPRE') else ""}
        {"buffer_load_dword v6, v4, s[28:31], 0 offen" + (' nt' if OPT.get('PRENT') else '') if not OPT.get('SPRE') else ""}
        s_mov_b64 exec, -1
        s_branch K1_PRE_DONE
        K1_XPRE_DONE:
        s_cmp_lt_u32 s53, 8
        s_cbranch_scc0 K1_PRE_DONE
        s_cmp_lt_u32 s50, 8
        s_cbranch_scc0 K1_PRE_DONE
        s_cmp_lt_u32 s50, 6
        s_cselect_b64 s[32:33], s[12:13], s[18:19]
        s_lshl_b32 s57, s55, 14
        s_bfe_u32 s59, s53, 0x10002
        s_lshl_b32 s59, s59, 7
        s_add_u32 s57, s57, s59
        buffer_load_dword v6, v5, s[32:35], s57 offen
        K1_PRE_DONE:
        """)
    if OPT.get('PRE', 1) == 1: prefetch()
    def gemm_body(nt, st):
        for t in range(nt):
            for ks in range(4): a(f"ds_read_b128 v[{XF[t]+4*ks}:{XF[t]+4*ks+3}], v{XA+ks} offset:{t*4096}")
        seq = [(ks, m, c) for ks in range(4) for m in range(2) for c in range(2)]
        def rd(s):
            ks, m, c = seq[s]; b = WF + 4 * (s % 4); o = m * 32768 + ks * 4096
            a(f"ds_read_b64_tr_b16 v[{b}:{b+1}], v{WA+c} offset:{o}\nds_read_b64_tr_b16 v[{b+2}:{b+3}], v{WA+c} offset:{o+512}")
        rd(0); rd(1)
        for s in range(0, 16, 2):
            if s + 2 < 16: rd(s + 2); rd(s + 3)
            a(f"s_waitcnt lgkmcnt({4 if s + 2 < 16 else 0})")
            for z in (s, s + 1):
                ks, m, c = seq[z]; b = WF + 4 * (z % 4)
                for t in range(nt):
                    d = acc(t, m, c); cc = "0" if ks == 0 else f"v[{d}:{d+3}]"
                    a(f"v_mfma_f32_16x16x32_bf16 v[{d}:{d+3}], v[{b}:{b+3}], v[{XF[t]+4*ks}:{XF[t]+4*ks+3}], {cc}")
        st()
        for t in range(nt):
            for c in range(2):
                O = XF[0] + 4 * (2 * t + c)
                for rp in (0, 2):
                    h = acc(t, 0, c) + rp; l = acc(t, 1, c) + rp
                    a(f"v_fma_f32 v{h}, v{h}, s20, v2\nv_fma_f32 v{h+1}, v{h+1}, s20, v2")
                    pack_pair(a, h, l, O + rp, O + rp + 1, "s22", "s23")
                a(f"ds_write_b128 v{BW+c}, v[{O}:{O+3}] offset:{t*2048}")
        a("s_waitcnt lgkmcnt(0)")
        nq = 4 if nt == 2 else 1
        for q in range(nq): a(f"ds_read_b128 v[{XF[1]+4*q}:{XF[1]+4*q+3}], v{BR} offset:{q*1024}")
        for q in range(nq):
            a(f"s_waitcnt lgkmcnt({nq-1-q})")
            a(f"buffer_store_dwordx4 v[{XF[1]+4*q}:{XF[1]+4*q+3}], v{3 if q < 2 else 7}, s[36:39], 0 offen offset:{(q&1)*2048}{STP}")
        st()
        if DIAG:
            a("s_waitcnt vmcnt(0)"); st(); st.dump(0, "s2", "s50", 2, 60)
        a("s_endpgm")
    a("s_cmp_ge_u32 s50, 12\ns_cbranch_scc1 K1_GEMM1")
    n0 = st.n
    gemm_body(2, st)
    a("K1_GEMM1:\n; last row tile pair: only rows 96, 97 exist")
    st.n = n0
    gemm_body(1, st)
    st = Stamps(a, 65)
    IMG = 1024
    DST = 8; SRC = 12; EA = 16; BK = 24; RK = 28; SN = 32
    a("K1_SORT:")
    a(f"""
    s_load_dwordx2 s[28:29], s[0:1], 24
    s_load_dwordx2 s[32:33], s[0:1], 16
    s_load_dwordx2 s[36:37], s[0:1], 8
    s_load_dwordx2 s[16:17], s[0:1], 48
    s_and_b32 s52, s2, 7
    s_lshl_b32 s52, s52, 4
    s_lshr_b32 s51, s2, 3
    s_add_u32 s51, s51, s52              ; chunk c
    s_mul_i32 s52, s51, {CH}
    v_lshl_add_u32 v2, v0, 2, s52
    s_sub_u32 s58, {E}, s52
    s_min_u32 s58, s58, {CH}
    s_lshr_b32 s53, s58, 2
    v_cmp_gt_u32 s[48:49], s53, v0
    v_lshlrev_b32 v4, 3, v2
    v_lshlrev_b32 v2, 2, v2
    s_mul_i32 s42, s58, 12
    s_mov_b32 s43, 0x20000
    s_mov_b32 s30, {E*4}
    s_mov_b32 s31, 0x20000
    s_mov_b64 s[34:35], s[30:31]
    s_mov_b32 s38, {E*8}
    s_mov_b32 s39, 0x20000
    s_mul_i32 s53, s51, {RECREG}
    s_add_u32 s53, s53, {REC_OFF}
    s_mov_b32 s54, 42800
    s_mov_b32 s55, {NPB}
    s_mov_b32 s56, {IMG}
    v_mov_b32 v5, 12
    v_lshlrev_b32 v6, 3, v1
    v_mov_b32 v40, 0
    v_mov_b32 v41, 0
    ds_write_b64 v6, v[40:41]
    s_mov_b64 exec, s[48:49]
    s_waitcnt lgkmcnt(0)
    buffer_load_dwordx4 v[{DST}:{DST+3}], v2, s[28:31], 0 offen{NT}
    s_add_u32 s40, s44, s53
    s_addc_u32 s41, s45, 0
    s_cmp_gt_u32 s50, 12
    s_barrier
    s_cbranch_scc1 K1_IDLE
    buffer_load_dwordx4 v[{SRC}:{SRC+3}], v2, s[32:35], 0 offen{NT}
    buffer_load_dwordx4 v[{EA}:{EA+3}], v4, s[36:39], 0 offen{NT}
    buffer_load_dwordx4 v[{EA+4}:{EA+7}], v4, s[36:39], 0 offen offset:16{NT}
    s_waitcnt vmcnt(3)
    """)
    st()
    for i in range(4):
        a(f"""
        v_mul_u32_u24 v{BK+i}, s54, v{DST+i}
        v_lshrrev_b32 v{BK+i}, 22, v{BK+i}           ; bucket
        v_mul_u32_u24 v{SN+i}, s55, v{BK+i}
        v_lshlrev_b32 v{BK+i}, 2, v{BK+i}
        ds_add_rtn_u32 v{RK+i}, v{BK+i}, v5
        v_sub_u32 v{SN+i}, v{DST+i}, v{SN+i}
        """)
    a("""
    s_mov_b64 exec, -1
    s_waitcnt lgkmcnt(0)
    s_barrier
    """)
    if OPT.get('FINE'): st()
    a("""
    ds_read_b64 v[40:41], v6
    s_waitcnt lgkmcnt(0)
    v_add_u32 v42, v40, v41
    v_add_u32 v43, v40, v41
    """)
    wave_red(a, 43, "add_u32")
    a(f"""
    v_sub_u32 v44, v43, v42
    v_add_u32 v45, v44, v40
    ds_write_b64 v6, v[44:45] offset:512
    s_mov_b64 exec, s[48:49]
    """)
    for i in range(4): a(f"ds_read_b32 v{BK+i}, v{BK+i} offset:512")
    a("s_waitcnt vmcnt(2)")
    for i in range(4): a(f"v_lshl_or_b32 v{SN+i}, v{SRC+i}, 8, v{SN+i}")
    for i in range(4):
        a(f"s_waitcnt lgkmcnt(3)\nv_add3_u32 v{RK+i}, v{BK+i}, v{RK+i}, s56\nds_write_b32 v{RK+i}, v{SN+i} offset:8")
    if OPT.get('FINE'): st(); a("s_waitcnt vmcnt(0)"); st()
    for i in range(4):
        if i % 2 == 0: a(f"s_waitcnt vmcnt({1 - i//2})")
        a(f"ds_write2_b32 v{BK+i}, v{EA+2*i}, v{EA+2*i+1} offset0:{IMG//4 - 256} offset1:{IMG//4 - 255}".replace(f"offset0:{IMG//4 - 256} offset1:{IMG//4 - 255}", "offset0:0 offset1:1").replace(f"v{BK+i},", f"v{RK+i},", 1))
    a(f"""
    s_mov_b64 exec, -1
    K1_NOINFO:
    v_lshlrev_b32 v7, 4, v0
    s_waitcnt lgkmcnt(0)
    s_barrier
    """)
    st()
    NCP = (RECREG + K1_BLOCK * 16 - 1) // (K1_BLOCK * 16)
    for i in range(NCP): a(f"ds_read_b128 v[{8+4*i}:{11+4*i}], v7 offset:{IMG + i*K1_BLOCK*16}")
    for i in range(1, NCP): a(f"v_add_u32 v{40+i}, {i*K1_BLOCK*16}, v7")
    for i in range(NCP):
        a(f"s_waitcnt lgkmcnt({NCP-1-i})")
        a(f"buffer_store_dwordx4 v[{8+4*i}:{11+4*i}], v{7 if i == 0 else 40+i}, s[40:43], 0 offen{STP}")
    st()
    if DIAG:
        a("s_waitcnt vmcnt(0)"); st(); st.base = 64; st.n += 1; st.dump(0, "s2", "s50", 2, 60)
    a(f"""
    K1_END:
    s_endpgm
    K1_IDLE:
    s_mov_b64 exec, -1
    s_cmp_eq_u32 s50, 14
    s_cbranch_scc0 K1_AUX
    s_barrier
    ds_read_b64 v[40:41], v6
    s_waitcnt lgkmcnt(0)
    v_add_u32 v42, v40, v41
    v_add_u32 v43, v40, v41
    """)
    wave_red(a, 43, "add_u32")
    a(f"""
    v_sub_u32 v44, v43, v42
    v_add_u32 v45, v44, v40
    s_mov_b32 s53, 43691
    v_mul_u32_u24 v40, s53, v40
    v_mul_u32_u24 v41, s53, v41
    v_lshrrev_b32 v40, 19, v40
    v_lshrrev_b32 v41, 19, v41
    v_lshl_or_b32 v44, v40, 16, v44
    v_lshl_or_b32 v45, v41, 16, v45
    s_lshl_b32 s53, s51, 2
    s_add_u32 s53, s53, {OFFS_OFF}
    v_lshl_add_u32 v7, v1, 10, s53
    buffer_store_dword v44, v7, s[44:47], 0 offen{STP if OPT.get('ISC') else ''}
    buffer_store_dword v45, v7, s[44:47], 0 offen offset:512{STP if OPT.get('ISC') else ''}
    s_branch K1_NOINFO
    K1_AUX:
    """)
    def spre():
        a(f"""
        s_cmp_eq_u32 s50, 13
        s_cbranch_scc0 K1_NOSPRE
        s_load_dwordx2 s[20:21], s[0:1], 0
        s_and_b32 s53, s2, 3
        s_lshl_b32 s53, s53, 5
        s_bfe_u32 s57, s2, 0x10002
        s_xor_b32 s57, s57, 1
        s_lshl_b32 s57, s57, 4
        s_add_u32 s53, s53, s57
        s_lshr_b32 s57, s2, 3
        s_add_u32 s53, s53, s57
        s_mul_i32 s53, s53, {NPB*256}
        s_add_u32 s22, s53, {NPB*256}
        s_min_u32 s22, s22, {N*256}
        s_mov_b32 s23, 0x20000
        v_lshl_add_u32 v10, v1, 7, s53
        v_add_u32 v11, 8192, v10
        v_add_u32 v12, 16384, v10
        v_add_u32 v13, 24576, v10
        s_waitcnt lgkmcnt(0)
        """)
        for k in range(4): a(f"buffer_load_dword v{60+k}, v{10+k}, s[20:23], 0 offen{' nt' if OPT.get('PRENT') else ''}")
        a("K1_NOSPRE:")
    if OPT.get('SPRE') == 1: spre()
    a("s_barrier")
    if OPT.get('SPRE') == 2: spre()
    a(f"""
    s_cmp_eq_u32 s50, 15
    s_cbranch_scc0 K1_NOINFO
    s_cmp_gt_u32 s51, 1
    s_cbranch_scc1 K1_NOINFO
    s_mov_b32 s18, 1024
    s_mov_b32 s19, 0x20000
    v_lshrrev_b32 v10, 4, v1
    v_and_b32 v11, 15, v1
    s_lshl_b32 s53, s51, 7
    v_lshl_add_u32 v12, v11, 3, s53
    v_lshl_add_u32 v12, v10, 1, v12      ; w_c element (h*64 + 4j + r')
    """)
    for k in range(4): a(f"buffer_load_ushort v{16+k}, v12, s[16:19], 0 offen offset:{256*k}")
    a(f"""
    v_mov_b32 v13, 0x7f000000
    s_mul_i32 s53, s51, {TBL_H}
    s_add_u32 s53, s53, {N*256}
    v_lshl_add_u32 v14, v1, 2, s53
    buffer_store_dword v13, v14, s[44:47], 0 offen{STP}
    v_and_b32 v12, 3, v1
    v_bfe_u32 v13, v1, 3, 2
    v_bfe_u32 v15, v1, 2, 2
    v_lshlrev_b32 v22, 3, v12
    v_lshl_or_b32 v22, v13, 5, v22
    v_lshl_or_b32 v22, v15, 7, v22
    v_lshl_or_b32 v22, v10, 10, v22
    v_add_u32 v22, {HEAD}, v22
    v_xor_b32 v23, v10, v11
    v_lshlrev_b32 v23, 4, v23
    v_lshl_add_u32 v23, v11, 8, v23
    v_add_u32 v23, {EARR}, v23
    s_lshl_b32 s53, s51, 10
    s_add_u32 s53, s53, {LC_OFF}
    v_lshl_add_u32 v14, v1, 4, s53
    s_mov_b32 s53, {NEGL2E}
    s_waitcnt vmcnt(1)
    """)
    for k in range(4): a(f"v_lshlrev_b32 v{16+k}, 16, v{16+k}\nv_mul_f32 v{16+k}, s53, v{16+k}")
    a(f"""
    v_cvt_pk_bf16_f32 v20, v16, v17
    v_cvt_pk_bf16_f32 v21, v18, v19
    buffer_store_dwordx4 v[20:23], v14, s[44:47], 0 offen{STP}
    s_branch K1_NOINFO
    """)

def gen_k2(a):
    OSTP = {0: "", 1: " nt", 2: " sc1", 3: " sc0 sc1"}[OPT.get('OSTP', 2)]
    st = Stamps(a, 84)
    S_WS, S_W, S_TBL, S_WC, S_X, S_OUT = 28, 36, 40, 48, 52, 56
    MK = 60
    sBase, sRST, sH, sR0, sW, sL, sRem, sNB, sRM, sT = 74, 75, 76, 77, 78, 79, 80, 81, 82, 83
    M0_, M1_, PAT, TMP, sMsk, sInf, RMM, L2E, SEL0, SEL1, EMK, EPS, sWo = 4, 6, 8, 10, 12, 13, 14, 16, 18, 19, 20, 22, 24
    REC = 64
    CA = 92
    XF = 32; WF = 48; ACC = 100
    WCS = EARR + 32768
    vRem, vRecA, vOne, vZ = 116, 117, 118, 19
    LD = 32; T = 64; V = 72; D = 80; ND = 84; W = 88; NUM = 92; DEN = 96; CEA = 100; EE = 104; R = 108
    IA, IB, vRow, vS = 116, 117, 118, 119
    vE, vEs, vJ16 = 20, 21, 22
    WC = 24; CC = 26; SEL = 28
    XR = 8; vXo = 12; vCntA = 13; vCe = 14; vTch = 23
    XFL = [2, 3, 4, 5, 15, 16, 17, 18]
    T1 = OPT.get('TOUCH1', 0); T2 = OPT.get('TOUCH2', 2)
    TBLSZ = (N + 1) * 256
    def rounds(n, lbl, body, first_check=3):
        for k in range(n):
            a(f"s_mov_b64 exec, s[{MK+2*k}:{MK+2*k+1}]")
            if k >= first_check: a(f"s_cbranch_execz {lbl}")
            a(body(k))
        a(f"{lbl}:\ns_mov_b64 exec, -1")
    def rec_masks(n):
        for k in range(n): a(f"v_cmp_lt_i32 s[{MK+2*k}:{MK+2*k+1}], {8*k}, v{vRem}")
    def rec_issue(n, lbl):
        rounds(n, lbl, lambda k: f"buffer_load_dwordx3 v[{REC+4*k}:{REC+4*k+2}], v{vRecA}, s[{S_WS}:{S_WS+3}], 0 offen offset:{96*k}")
    a("agg_kernel:")
    a(f"s_cmp_ge_u32 s2, {K2_GRID}\ns_cbranch_scc1 K2_END")
    probe_stamp(a, 1, "K2")
    st()
    a(f"""
    s_load_dwordx2 s[{S_WS}:{S_WS+1}], s[0:1], 88
    s_load_dwordx2 s[{S_X}:{S_X+1}], s[0:1], 0
    s_load_dwordx2 s[{S_W}:{S_W+1}], s[0:1], 32
    s_load_dwordx2 s[4:5], s[0:1], 56
    s_load_dwordx2 s[{S_OUT}:{S_OUT+1}], s[0:1], 72
    s_setprio 3
    v_lshrrev_b32 v2, 6, v0
    v_and_b32 v1, 63, v0
    v_readfirstlane_b32 s{sW}, v2
    s_bfe_u32 s{sH}, s2, 0x10002
    s_lshr_b32 s{sR0}, s2, 3
    s_and_b32 s3, s2, 3
    s_lshl_b32 s3, s3, 5
    s_add_u32 s{sR0}, s{sR0}, s3          ; bucket
    s_lshl_b32 s{sInf}, s{sR0}, 9
    s_add_u32 s{sInf}, s{sInf}, {OFFS_OFF}
    s_mul_i32 s{sR0}, s{sR0}, {NPB*256}   ; first row of the bucket * 256
    s_mov_b32 s{S_WS+2}, {WS_SIZE}
    s_mov_b32 s{S_WS+3}, 0x20000
    s_mov_b32 s3, {RECREG}
    v_lshrrev_b32 v2, 3, v0               ; segment / finalisation node
    v_and_b32 v15, 7, v0                  ; sub
    v_lshl_add_u32 v3, v2, 2, s{sInf}     ; info offset
    v_mul_u32_u24 v{vRecA}, s3, v2
    v_mad_u32_u24 v{vRecA}, v15, 12, v{vRecA}
    v_add_u32 v{vRecA}, {REC_OFF}, v{vRecA}
    v_lshrrev_b32 v6, 4, v1               ; l>>4
    v_and_b32 v7, 15, v1                  ; l&15
    s_lshl_b32 s3, s{sH}, 10
    s_add_u32 s3, s3, {LC_OFF}
    v_lshl_add_u32 v4, v1, 4, s3          ; lane constants
    v_mov_b32 v{vOne}, 4
    v_mov_b32 v{vZ}, 0
    s_cmp_lt_u32 s{sW}, 8
    s_cbranch_scc1 K2_GPRE
    s_cmp_lt_u32 s{sW}, 13
    s_cbranch_scc1 K2_PRE_DONE
    ; ---- waves 13..15: small LDS init (counters .. flags zeroed, eps row, trash row gate factor = 1)
    v_subrev_u32 v76, {13*64}, v0
    v_lshlrev_b32 v5, 4, v76
    v_subrev_u32 v77, {(ZROW+512)//16}, v76
    v_cmp_gt_u32 vcc, 16, v77
    v_mov_b32 v68, {EPSP}
    v_add_u32 v78, {RB + NPB*RST + 512 - MISC}, v5
    v_cndmask_b32 v68, 0, v68, vcc
    v_cmp_lt_u32 vcc, {MISC//16 - 1}, v76
    v_cmp_gt_u32 s[{TMP}:{TMP+1}], {MISC//16 + 16 - 128}, v77
    v_cndmask_b32 v68, v68, 1.0, vcc
    v_cndmask_b32 v5, v5, v78, vcc
    v_cmp_gt_u32 vcc, {MISC//16 + 16}, v76
    v_mov_b32 v69, v68
    v_mov_b32 v70, v68
    v_mov_b32 v71, v68
    s_mov_b64 exec, vcc
    ds_write_b128 v5, v[68:71]
    s_mov_b64 exec, -1
    K2_PRE_DONE:
    s_waitcnt lgkmcnt(0)
    buffer_load_dword v{vRem}, v3, s[{S_WS}:{S_WS+3}], 0 offen
    buffer_load_dwordx4 v[{WC}:{WC+3}], v4, s[{S_WS}:{S_WS+3}], 0 offen
    s_barrier
    s_waitcnt vmcnt(0)
    s_branch K2_INFO
    ; ---- waves 0..7 stage the bucket's x rows, the w_a | w_u halves and w_c
    K2_GPRE:
    v_xor_b32 v16, v6, v7
    v_lshlrev_b32 v16, 4, v16
    v_lshl_add_u32 v32, v6, 8, v16        ; row-linear pattern
    s_lshl_b32 s3, s{sW}, 12
    s_add_u32 s{sT}, s3, s{sR0}
    v_add_u32 v32, s{sT}, v32
    s_add_u32 s{sT}, s{sR0}, {NPB*256}
    s_min_u32 s{S_X+2}, s{sT}, {N*256}
    s_mov_b32 s{S_X+3}, 0x20000
    v_xor_b32 v33, 64, v32
    v_xor_b32 v34, 128, v32
    v_xor_b32 v35, 192, v32
    """.replace(f"    v_cmp_gt_u32 s[{TMP}:{TMP+1}], {MISC//16 + 16 - 128}, v77\n", ""))
    w_lane_off(a, 36, 37, 38)
    a(f"""
    v_xor_b32 v37, 64, v36
    s_mov_b32 s{S_W+2}, 32768
    s_mov_b32 s{S_W+3}, 0x20000
    s_add_u32 s{sRem}, s3, {EARR}
    s_mov_b32 m0, s{sRem}
    s_add_u32 s{sL}, s3, {HEAD}
    s_and_b32 s3, s{sW}, 3
    s_lshl_b32 s3, s3, 13
    s_lshl_b32 s{sT}, s{sH}, 7
    s_add_u32 s{sWo}, s3, s{sT}
    s_add_u32 s{sWo+1}, s{sWo}, 1024
    s_add_u32 s{sWo+2}, s{sWo}, 2048
    s_add_u32 s{sWo+3}, s{sWo}, 3072
    s_waitcnt lgkmcnt(0)
    buffer_load_dword v{vRem}, v3, s[{S_WS}:{S_WS+3}], 0 offen
    buffer_load_dwordx4 v[{WC}:{WC+3}], v4, s[{S_WS}:{S_WS+3}], 0 offen
    s_barrier
    s_cmp_lt_u32 s{sW}, 4
    """)
    for q in range(4): a(f"buffer_load_dwordx4 v{32+q}, s[{S_X}:{S_X+3}], 0 offen offset:{q*1024} lds")
    a(f"s_mov_b32 m0, s{sL}\ns_cselect_b64 s[{S_W}:{S_W+1}], s[{S_W}:{S_W+1}], s[4:5]")
    for i in range(4): a(f"buffer_load_dwordx4 v{36 + (i & 1)}, s[{S_W}:{S_W+3}], s{sWo+i} offen offset:{i*1024} lds")
    a(f"""
    s_waitcnt vmcnt(8)
    K2_INFO:
    s_mul_i32 s{sT}, s{sH}, {TBL_H}
    v_and_b32 v3, 0xffff, v{vRem}
    v_lshrrev_b32 v{vRem}, 16, v{vRem}
    v_add_u32 v{vRecA}, v3, v{vRecA}
    v_sub_u32 v{vRem}, v{vRem}, v15
    """)
    rec_masks(NR)
    a(f"""
    s_add_u32 s{S_TBL}, s{S_WS}, s{sT}
    s_addc_u32 s{S_TBL+1}, s{S_WS+1}, 0
    s_mov_b32 s{S_TBL+3}, 0x20000
    s_cmp_lt_u32 s{sW}, 8
    s_cbranch_scc0 K2_NOSIG
    s_waitcnt vmcnt(0)
    s_mov_b64 exec, 1
    ds_add_u32 v{vZ}, v{vOne} offset:{SYNC}
    K2_NOSIG:
    """)
    if OPT.get('FINE'): st()
    GF = OPT.get('GF', 4)
    if GF: a(f"s_cmp_lt_u32 s{sW}, {GF}\ns_cbranch_scc1 K2_RI")
    rec_issue(NR, "K2_RI")
    a(f"""
    s_setprio 0
    s_lshr_b32 s3, s2, 3
    s_mul_i32 s3, s3, 782
    s_mov_b32 s{sT}, {64*(8 - T1)}
    s_cmp_lt_u32 s{sW}, 8
    s_cselect_b32 s{sT}, s{sT}, {64*(16 - T2) - 64*T1}
    s_sub_u32 s3, s3, s{sT}
    v_add_lshl_u32 v{vTch}, v0, s3, 7
    s_mov_b32 s{S_TBL+2}, {TBLSZ}
    s_sub_u32 s{sL}, s{sW}, {8 - T1}
    s_cmp_lt_u32 s{sL}, {T1}
    s_cbranch_scc0 K2_NOT1
    buffer_load_dword v{vTch}, v{vTch}, s[{S_TBL}:{S_TBL+3}], 0 offen
    K2_NOT1:
    v_cmp_lt_i32 vcc, {NR*8}, v{vRem}
    s_mov_b32 s{sBase}, 0
    s_mov_b32 s{sNB}, 0
    s_mov_b32 s{sRST}, {RST}
    s_mov_b32 s{sMsk}, 0xffffff00
    s_mov_b64 exec, vcc
    ds_write_b32 v{vZ}, v{vOne} offset:{FLAG2}
    s_mov_b64 exec, -1
    s_mov_b32 s{L2E}, {NEGL2E}
    s_mov_b32 s{L2E+1}, {NEGL2E}
    s_mov_b32 s{SEL0}, 0x07060100
    s_mov_b32 s{SEL1}, 0x07060302
    s_mov_b64 s[{RMM}:{RMM+1}], 0
    v_lshl_add_u32 v{XR}, s{sH}, 3, v15
    v_lshlrev_b32 v18, 8, v2
    v_lshl_add_u32 v{vXo}, v{XR}, 4, v18
    v_and_b32 v3, 15, v2
    v_xor_b32 v{XR}, v{XR}, v3
    v_lshl_add_u32 v{XR}, v{XR}, 4, v18
    v_add_u32 v{XR}, {EARR}, v{XR}
    v_lshlrev_b32 v{vCntA}, 3, v1
    v_lshlrev_b32 v{vJ16}, 4, v7
    s_lshr_b32 s3, s{sW}, 1
    s_lshl_b32 s{sT}, s3, 12
    v_add_u32 v124, s{sT}, v{WC+3}
    v_xor_b32 v125, 64, v124
    v_xor_b32 v126, 128, v124
    v_xor_b32 v127, 192, v124
    s_and_b32 s{sT}, s{sW}, 1
    s_lshl_b32 s{sT}, s{sT}, 6
    v_bfe_u32 v3, v1, 2, 2
    v_xor_b32 v16, s{sT}, v{WC+2}
    v_xor_b32 v17, 32, v16
    v_lshl_add_u32 v2, s3, 4, v7          ; node
    v_cmp_gt_u32 vcc, {NPB}, v2
    s_lshl_b32 s{sT}, s{sT}, 1
    v_mad_u32_u24 v{vCe}, v6, 16, s{sT}
    s_mov_b64 s[{TMP}:{TMP+1}], vcc
    v_mad_u32_u24 v{vCe}, v2, s{sRST}, v{vCe}
    s_mov_b32 s{EMK}, 0x22221111
    s_mov_b32 s{EMK+1}, 0x88884444
    s_lshl_b32 s3, s{sW}, 2
    v_add_u32 v{vS}, s3, v6
    v_add_u32 v{vE}, s3, v3
    """)
    st()
    a(f"""
    K2_POLL:
    ds_read_b32 v18, v{vZ} offset:{SYNC}
    s_waitcnt lgkmcnt(0)
    v_readfirstlane_b32 s3, v18
    s_cmp_lt_u32 s3, 32
    s_cbranch_scc1 K2_POLL
    """)
    st()
    a(f"ds_read_b128 v[{XR}:{XR+3}], v{XR}")
    a(f"s_cmp_ge_u32 s{sW}, 14\ns_cbranch_scc1 K2_NOGEMM")
    for ks in range(4): a(f"ds_read_b128 v[{XF+4*ks}:{XF+4*ks+3}], v{124+ks}")
    seq = [(ks, m, c) for ks in range(4) for m in range(2) for c in range(2)]
    def rd(s):
        ks, m, c = seq[s]; b = WF + 4 * (s % 4); o = m * 16384 + ks * 4096
        a(f"ds_read_b64_tr_b16 v[{b}:{b+1}], v{16+c} offset:{o}\nds_read_b64_tr_b16 v[{b+2}:{b+3}], v{16+c} offset:{o+512}")
    rd(0); rd(1)
    a(f"v_mov_b32 v4, {f2u(-62.0)}\nv_mov_b32 v5, {f2u(-62.0)}\ns_mov_b32 s3, {f2u(60.0 / math.log2(math.e))}")
    for s in range(0, 16, 2):
        if s + 2 < 16: rd(s + 2); rd(s + 3)
        a(f"s_waitcnt lgkmcnt({4 if s + 2 < 16 else 0})")
        for z in (s, s + 1):
            ks, m, c = seq[z]; b = WF + 4 * (z % 4); d = ACC + (m * 2 + c) * 4
            a(f"v_mfma_f32_16x16x32_bf16 v[{d}:{d+3}], v[{b}:{b+3}], v[{XF+4*ks}:{XF+4*ks+3}], {'0' if ks == 0 else 'v[%d:%d]' % (d, d+3)}")
    a(f"""
    v_max3_f32 v2, |v{ACC}|, |v{ACC+1}|, |v{ACC+2}|
    v_max3_f32 v3, |v{ACC+3}|, |v{ACC+4}|, |v{ACC+5}|
    v_max3_f32 v2, v2, |v{ACC+6}|, |v{ACC+7}|
    v_max_f32 v2, v2, v3
    v_cmp_lt_f32 vcc, s3, v2
    """)
    for i in range(4): a(pk('fma', XF + 2 * i, ACC + 2 * i, f"s[{L2E}:{L2E+1}]", 4))
    a(f"s_and_b64 s[{RMM}:{RMM+1}], vcc, s[{TMP}:{TMP+1}]")
    for i in range(8): a(f"v_exp_f32 v{XF+i}, v{XF+i}")
    for i in range(4): a(f"v_cvt_pk_bf16_f32 v{ACC+8+2*i}, v{ACC+8+2*i}, v{ACC+9+2*i}")
    for i in range(8): a(f"v_perm_b32 v{WF+i}, v{XF+i}, v{ACC+8+(i&6)}, s{SEL0 + (i&1)}")
    a(f"""
    s_mov_b64 exec, s[{TMP}:{TMP+1}]
    ds_write_b128 v{vCe}, v[{WF}:{WF+3}] offset:{RB+512}
    ds_write_b128 v{vCe}, v[{WF+4}:{WF+7}] offset:{RB+576}
    s_mov_b64 exec, s[{RMM}:{RMM+1}]
    ds_write_b32 v{vZ}, v{vOne} offset:{FLAG}
    K2_NOGEMM:
    """)
    if GF:
        a(f"s_cmp_lt_u32 s{sW}, {GF}\ns_cbranch_scc0 K2_RI2")
        rec_issue(NR, "K2_RI2")
    st()
    a(f"s_cmp_lt_u32 s{sL}, {T1}\ns_cbranch_scc1 K2_W1\ns_waitcnt vmcnt(0)\nK2_W1:\ns_waitcnt vmcnt(1)")
    st()
    a("K2_BATCH:")
    rounds(NR, "K2_AT_DONE", lambda k: f"""
        v_lshlrev_b32_sdwa v{CA+k}, 2, v{REC+4*k+2} dst_sel:DWORD dst_unused:UNUSED_PAD src0_sel:DWORD src1_sel:BYTE_0
        ds_add_rtn_u32 v{REC+4*k+3}, v{CA+k}, v{vOne}""")
    a("s_waitcnt lgkmcnt(0)\ns_barrier")
    st()
    a(f"""
    ds_read_b64 v[2:3], v{vCntA}
    ds_read2_b32 v[16:17], v{vZ} offset0:{FLAG//4 - 512} offset1:{FLAG2//4 - 512}
    """.replace(f"ds_read2_b32 v[16:17], v{vZ} offset0:{FLAG//4 - 512} offset1:{FLAG2//4 - 512}", f"ds_read_b96 v[16:18], v{vZ} offset:{FLAG}"))
    if T2:
        a(f"""
        s_cmp_ge_u32 s{sW}, {16 - T2}
        s_cbranch_scc0 K2_NOTOUCH
        buffer_load_dword v{vTch}, v{vTch}, s[{S_TBL}:{S_TBL+3}], 0 offen
        K2_NOTOUCH:
        """)
    a(f"""
    s_waitcnt lgkmcnt(0)
    v_add_u32 v4, 4, v2
    v_add_u32 v5, 4, v3
    v_and_b32 v4, -8, v4
    v_and_b32 v5, -8, v5
    v_add_u32 v59, v4, v5
    v_add_u32 v58, v4, v5
    v_readfirstlane_b32 s{sRM}, v16
    v_readfirstlane_b32 s{sRem}, v18
    """)
    wave_red(a, 58, "add_u32")
    a(f"""
    v_sub_u32 v56, v58, v59
    v_readlane_b32 s{sT}, v58, 63
    v_add_u32 v56, {SARR}, v56
    v_add_u32 v57, v56, v4
    ds_write_b64 v{vCntA}, v[56:57] offset:{OFFA}
    s_cmp_gt_u32 s{sT}, {LMAX*512}
    s_cselect_b32 s{sRem}, 1, s{sRem}
    s_cmp_lg_u32 s{sRem}, 0
    s_cbranch_scc1 K2_SLOWINIT
    K2_DECIDED:
    s_add_u32 s{sL}, s{sT}, 511
    s_lshr_b32 s{sL}, s{sL}, 9
    """)
    if OPT.get('FINE'): st()
    rounds(NR, "K2_RD_DONE", lambda k: f"ds_read_b32 v{CA+k}, v{CA+k} offset:{OFFA}")
    a(f"""
    s_lshl_b32 s3, s{sL}, 3               ; L*8
    v_lshl_add_u32 v{vRow}, v{vS}, 9, v{vJ16}
    v_mul_u32_u24 v{vS}, s3, v{vS}
    s_lshl_b32 s3, s3, 1
    v_mul_u32_u24 v{vE}, s3, v{vE}
    v_add_u32 v{vS}, {SARR}, v{vS}
    v_add_u32 v{vE}, {EARR - ZROW}, v{vE}
    v_add_u32 v{vRow}, {HEAD - RB}, v{vRow}
    v_cndmask_b32 v{vE}, 0, v{vE}, s[{EMK}:{EMK+1}]
    v_lshl_add_u32 v62, v7, 3, v{vS}
    s_mov_b32 s{PAT}, {(EARR - 2*SARR) & 0xffffffff}
    s_cmp_gt_u32 s{sW}, 3
    s_cbranch_scc1 K2_NOAUX
    v_mov_b32 v124, 0
    v_mov_b32 v125, 0
    v_mov_b32 v122, {N*256 + NPB}
    s_cmp_lt_u32 s{sW}, 2
    s_cbranch_scc1 K2_AUXPAD
    s_lshl_b32 s{sRem}, s{sW}, 8
    s_add_u32 s{sRem}, s{sRem}, s{sT}
    s_add_u32 s{sRem}, s{sRem}, {SARR - 512}
    v_lshl_add_u32 v123, v1, 2, s{sRem}
    s_branch K2_AUXW
    K2_AUXPAD:
    s_cmp_eq_u32 s{sW}, 0
    s_cselect_b64 vcc, -1, 0
    v_cndmask_b32 v126, v3, v2, vcc
    v_cndmask_b32 v123, v57, v56, vcc
    v_add_u32 v123, v123, v126
    v_and_b32 v126, 4, v126
    v_cmp_ne_u32 vcc, 0, v126
    s_mov_b64 exec, vcc
    K2_AUXW:
    ds_write_b32 v123, v122
    v_lshl_add_u32 v123, v123, 1, s{PAT}
    ds_write_b64 v123, v[124:125]
    K2_NOAUX:
    s_waitcnt lgkmcnt(0)
    """)
    if OPT.get('FINE'): st()
    rounds(NR, "K2_SC_DONE", lambda k: f"v_add_u32 v{CA+k}, v{CA+k}, v{REC+4*k+3}\nds_write_b32 v{CA+k}, v{REC+4*k+2}")
    a(f"""
    s_cmp_eq_u32 s{sRM}, 4
    s_cbranch_scc1 K2_RMFIX
    K2_NORM:
    s_waitcnt lgkmcnt(0)
    s_barrier
    """)
    st()
    a(f"ds_read_b64 v[40:41], v{vS}")
    for p in range(1, 4): a(f"ds_read_b64 v[{R+2*p}:{R+2*p+1}], v{vS} offset:{8*p}")
    a(f"""
    ds_read2_b32 v[60:61], v62 offset0:0 offset1:2
    ds_read2_b32 v[62:63], v62 offset0:32 offset1:34
    ds_read_b64 v[{R}:{R+1}], v{vS} offset:32
    v_lshrrev_b32 v19, 3, v0
    v_and_b32 v14, 7, v0
    v_lshlrev_b32 v14, 5, v14             ; 32*m
    v_lshlrev_b32 v42, 2, v19
    v_mad_u32_u24 v19, v19, s{sRST}, v14
    s_waitcnt lgkmcnt(6)
    """)
    def first_gathers(ps):
        for p in ps:
            s0 = 40 if p == 0 else R + 2 * p
            a(f"""
            v_and_or_b32 v{IA}, v{s0}, s{sMsk}, v{vJ16}
            v_and_or_b32 v{IB}, v{s0+1}, s{sMsk}, v{vJ16}
            buffer_load_dwordx4 v[{LD+8*p}:{LD+8*p+3}], v{IA}, s[{S_TBL}:{S_TBL+3}], 0 offen
            buffer_load_dwordx4 v[{LD+8*p+4}:{LD+8*p+7}], v{IB}, s[{S_TBL}:{S_TBL+3}], 0 offen
            """)
    first_gathers([0])
    a(f"""
    v_and_b32 v41, 0x7f, v40
    v_mad_u32_u24 v41, v41, s{sRST}, v{vJ16}
    ds_read_b128 v[{CEA}:{CEA+3}], v41 offset:{RB+512}
    ds_read_b128 v[120:123], v19 offset:{RB+512}
    ds_read_b128 v[124:127], v19 offset:{RB+528}
    """)
    def side_work(tag):
        a(f"""
        s_cmp_lg_u32 s{sBase}, 0
        s_cbranch_scc1 K2_NOLATE{tag}
        v_add_u32 v{vXo}, s{sR0}, v{vXo}
        """)
        a(f"""
        v_mov_b32 v{CC}, {CBITS}
        v_mov_b32 v{CC+1}, {CBITS}
        v_mov_b32 v46, 0x3f80
        s_mov_b32 s{M0_}, 0x00100001
        s_mov_b32 s{M0_+1}, 0x10000100
        s_lshl_b64 s[{M1_}:{M1_+1}], s[{M0_}:{M0_+1}], 1
        s_lshl_b64 s[{TMP}:{TMP+1}], s[{M0_}:{M0_+1}], 2
        s_lshl_b64 vcc, s[{M0_}:{M0_+1}], 3
        v_cndmask_b32 v{SEL}, 0, v46, s[{M0_}:{M0_+1}]
        v_cndmask_b32 v{SEL+1}, 0, v46, s[{M1_}:{M1_+1}]
        v_cndmask_b32 v{SEL+2}, 0, v46, s[{TMP}:{TMP+1}]
        v_cndmask_b32 v{SEL+3}, 0, v46, vcc
        v_cndmask_b32 v{vEs}, 0, 64, s[{EMK}:{EMK+1}]
        K2_NOLATE{tag}:
        """)
        for i in range(4):
            a(f"v_lshlrev_b32 v{XFL[2*i]}, 16, v{XR+i}\nv_and_b32 v{XFL[2*i+1]}, 0xffff0000, v{XR+i}")
        a(f"""
        v_add_u32 v6, {ZROW}, v14
        s_waitcnt lgkmcnt({0 if tag == 'A' else 3})
        v_xor_b32 v60, v60, v61
        v_xor_b32 v62, v62, v63
        v_and_b32 v60, 0x7f, v60
        v_and_b32 v62, 0x7f, v62
        v_cmp_ne_u32 s[{M0_}:{M0_+1}], 0, v60
        v_cmp_ne_u32 s[{M1_}:{M1_+1}], 0, v62
        """)
        a("s_movk_i32 s3, 0x3f80")
        for i in range(8): a(f"v_dot2_f32_bf16 v{120+i}, v{120+i}, s3, v{XFL[i]}")
    a(f"s_cmp_lt_u32 s{sW}, 4\ns_cbranch_scc1 K2_SE\ns_setprio 1")
    side_work("A")
    a("K2_SE:")
    rounds(NR, "K2_SE_DONE", lambda k: f"v_lshl_add_u32 v{CA+k}, v{CA+k}, 1, s{PAT}\nds_write_b64 v{CA+k}, v[{REC+4*k}:{REC+4*k+1}]")
    a(f"""
    s_cmp_lt_u32 s{sW}, 4
    s_cbranch_scc0 K2_NODESC
    s_cmp_lg_u32 s{sW}, 0
    s_cbranch_scc1 K2_OLDSIDE
    s_max_u32 s{sRem}, s{sL}, 1
    v_cvt_f32_u32 v44, s{sRem}
    v_rcp_f32 v44, v44
    v_subrev_u32 v56, {SARR}, v56
    v_subrev_u32 v57, {SARR}, v57
    v_mul_f32 v44, {f2u(2.0**20)}, v44
    v_lshrrev_b32 v56, 3, v56
    v_lshrrev_b32 v57, 3, v57
    v_cvt_u32_f32 v44, v44
    v_lshrrev_b32 v58, 3, v58
    v_add_u32 v44, 2, v44
    s_sub_u32 s{sRem}, s{sRem}, 1
    """)
    for i, q in enumerate((56, 57, 58)):
        a(f"v_add_u32 v{48+i}, s{sRem}, v{q}\nv_mul_lo_u32 v{48+i}, v{48+i}, v44\nv_lshrrev_b32 v{48+i}, 20, v{48+i}")
    a(f"v_lshlrev_b32 v45, 1, v1\nv_mul_u32_u24 v45, s{sRST}, v45\nv_add_u32 v45, {RB}, v45\nv_mov_b32 v44, {EPSR}")
    for i in range(2):
        a(f"""
        v_mul_u32_u24 v46, s{sL}, v{48+i}
        v_cmp_ne_u32 vcc, v46, v{56+i}
        v_cmp_ne_u32 s[{TMP}:{TMP+1}], v{56+i}, v{57+i}
        s_and_b64 vcc, vcc, s[{TMP}:{TMP+1}]
        v_sub_u32 v47, v{49+i}, v{48+i}
        v_cndmask_b32 v46, v44, v45, vcc
        v_lshl_or_b32 v46, v{48+i}, 18, v46
        v_lshl_or_b32 v{52+i}, v47, 25, v46
        v_add_u32 v45, {RST}, v45
        """)
    a(f"""
    ds_write_b64 v{vCntA}, v[52:53] offset:{DESC}
    K2_OLDSIDE:
    """)
    side_work("B")
    a(f"""
    K2_NODESC:
    s_mov_b32 s{S_OUT+2}, {N*256}
    s_mov_b32 s{S_OUT+3}, 0x20000
    s_mov_b32 s{PAT}, 0x00010001
    s_mov_b32 s{PAT+1}, 0x00010001
    s_sub_u32 s{sRem}, s{sL}, 1
    s_and_b32 s{sT}, s{sRem}, 15
    s_lshl_b64 s[{TMP}:{TMP+1}], s[{PAT}:{PAT+1}], s{sT}
    s_cmp_lt_u32 s{sRem}, 16
    s_cselect_b64 vcc, s[{TMP}:{TMP+1}], 0
    s_cselect_b64 s[{TMP}:{TMP+1}], 0, s[{TMP}:{TMP+1}]
    s_or_b64 s[{M0_}:{M0_+1}], s[{M0_}:{M0_+1}], vcc
    s_or_b64 s[{M1_}:{M1_+1}], s[{M1_}:{M1_+1}], s[{TMP}:{TMP+1}]
    s_waitcnt lgkmcnt(0)
    s_barrier
    {f"s_mov_b64 exec, 1{chr(10)}buffer_load_dword v{vTch}, v{vXo}, s[{S_OUT}:{S_OUT+3}], 0 offen{chr(10)}s_mov_b64 exec, -1" if OPT.get('TLB') else ""}
    ds_read_b128 v[{EE}:{EE+3}], v{vE} offset:{ZROW}
    ds_read_b32 v7, v42 offset:{DESC}
    ds_read_b128 v[{NUM}:{NUM+3}], v{vJ16} offset:{ZROW}
    ds_read_b128 v[{DEN}:{DEN+3}], v{vJ16} offset:{ZROW}
    s_setprio 3
    """)
    st()
    first_gathers([1, 2, 3])
    a(f"""
    s_waitcnt lgkmcnt(0)
    v_and_b32 v19, 0x3ffff, v7
    v_add_u32 v19, v19, v14
    v_bfe_u32 v{D}, v7, 18, 7
    v_lshl_add_u32 v14, v{D}, 9, v14
    v_lshrrev_b32 v7, 25, v7
    v_cmp_ne_u32 vcc, 0, v7
    v_add_u32 v14, {HEAD}, v14
    s_cmp_eq_u32 s{sL}, 0
    v_cndmask_b32 v6, v6, v14, vcc
    s_cbranch_scc1 K2_LOOP_DONE
    """)
    if OPT.get('XHALF'): a(f"s_cmp_ge_u32 s{sW}, {OPT['XHALF']}\ns_cbranch_scc1 K2_LOOP_DONE")
    a(f"""
    s_sub_u32 s{sT}, s{sL}, 17
    s_cmp_gt_u32 s{sRem}, 3
    s_cselect_b32 s{S_TBL+2}, {TBLSZ}, 0
    s_waitcnt vmcnt(6)
    v_mfma_f32_16x16x16_bf16 v[{T}:{T+3}], v[{EE}:{EE+1}], v[{WC}:{WC+1}], v[{LD}:{LD+3}]
    v_mfma_f32_16x16x16_bf16 v[{T+4}:{T+7}], v[{EE+2}:{EE+3}], v[{WC}:{WC+1}], v[{LD+4}:{LD+7}]
    s_cmp_lg_u32 s{sRM}, 0
    s_nop 0
    ds_read_b128 v[{EE}:{EE+3}], v{vE} offset:{ZROW+16}
    s_nop 3
    """)
    st()
    if OPT.get('BOTH'): st(True)
    a(f"s_cbranch_scc1 K2_LOOP_1")
    a_real = a
    def afilt(txt):
        out = []
        for l in txt.strip('\n').split('\n'):
            t = l.strip()
            if OPT.get('XVMEM') and t.startswith('s_cselect_b32') and str(TBLSZ) in t: t = f"s_mov_b32 s{S_TBL+2}, 0"
            if OPT.get('XVMEM2') and t.startswith('buffer_load'): continue
            if OPT.get('XLDS') and t.startswith('ds_read') and 'offset:%d' % (RB+512) not in t: continue
            if OPT.get('XAND') and t.startswith('v_and_or'): continue
            if OPT.get('XFL') and t.startswith('s_and_b64'): t = f"s_cmp_eq_u32 s{sRem}, 0\ns_mov_b64 s[{TMP}:{TMP+1}], s[{PAT}:{PAT+1}]"
            if OPT.get('XSALU') and t.startswith(('s_lshr_b64', 's_cmp_gt_u32', 's_cselect_b32')): continue
            if OPT.get('XWAIT') and t.startswith('s_waitcnt'): continue
            if OPT.get('XMV') and t.startswith('v_mfma_f32_16x16x32'): continue
            if OPT.get('XMT') and t.startswith('v_mfma_f32_16x16x16'): continue
            if OPT.get('XPK') and t.startswith('v_pk_') and 'mov' not in t: continue
            if OPT.get('XTRANS') and t.startswith(('v_exp', 'v_rcp')): continue
            if OPT.get('VSHL') and t.startswith('v_mfma_f32_16x16x32'):
                import re
                m = re.findall(r'v\[(\d+):', t); d = int(m[0]); b = int(m[2])
                for r in range(4): out.append(f"v_lshlrev_b32 v{d+r}, 16, v{b+r}")
                continue
            out.append(t)
        a_real('\n'.join(out))
    def loop(rm):
        a = afilt
        a(f"K2_LOOP_{rm}:")
        for u in range(4):
            la = LD + 8 * u; lb = la + 4; na = LD + 8 * ((u + 1) % 4); nb = na + 4
            ru = R + 2 * u; rn = R + 2 * ((u + 1) % 4)
            if rm:
                a("s_waitcnt lgkmcnt(0)")
                for i in range(4): a(pk('add', T + 2 * i, T + 2 * i, CEA + (2 * i) % 4))
            ORD = OPT.get('ORD', 0)
            Mva = f"v_mfma_f32_16x16x32_bf16 v[{V}:{V+3}], v[{SEL}:{SEL+3}], v[{la}:{la+3}], 0"
            Mvb = f"v_mfma_f32_16x16x32_bf16 v[{V+4}:{V+7}], v[{SEL}:{SEL+3}], v[{lb}:{lb+3}], 0"
            Mta = f"v_mfma_f32_16x16x16_bf16 v[{T}:{T+3}], v[{EE}:{EE+1}], v[{WC}:{WC+1}], v[{na}:{na+3}]"
            Mtb = f"v_mfma_f32_16x16x16_bf16 v[{T+4}:{T+7}], v[{EE+2}:{EE+3}], v[{WC}:{WC+1}], v[{nb}:{nb+3}]"
            ex = [f"v_exp_f32 v{T+r}, v{T+r}" for r in range(8)]
            rc = [f"v_rcp_f32 v{D+r}, v{D+r}" for r in range(4)]
            ao = [f"v_and_or_b32 v{IA}, v{ru}, s{sMsk}, v{vJ16}", f"v_and_or_b32 v{IB}, v{ru+1}, s{sMsk}, v{vJ16}"]
            gl = [f"buffer_load_dwordx4 v[{la}:{la+3}], v{IA}, s[{S_TBL}:{S_TBL+3}], 0 offen", f"buffer_load_dwordx4 v[{lb}:{lb+3}], v{IB}, s[{S_TBL}:{S_TBL+3}], 0 offen"]
            d = [pk('fma', T + 2 * i, T + 2 * i, CC if rm else CEA + (2 * i) % 4, CC, mod=' clamp') for i in range(4)]
            DD = [pk('mul', D + i, T + i, T + 4 + i) for i in (0, 2)]
            nd = [pk('add', ND + i, T + i, T + 4 + i) for i in (0, 2)]
            w1 = [pk('mul', W + i, V + i, T + 4 + i) for i in (0, 2)]
            w2 = [pk('fma', W + i, V + 4 + i, T + i, W + i) for i in (0, 2)]
            den = [pk('fma', DEN + i, ND + i, D + i, DEN + i) for i in (0, 2)]
            num = [pk('fma', NUM + i, W + i, D + i, NUM + i) for i in (0, 2)]
            W1 = "s_waitcnt lgkmcnt(0)"; W2 = "s_waitcnt vmcnt(6)"
            sa = f"s_and_b64 s[{TMP}:{TMP+1}], s[{M0_}:{M0_+1}], s[{PAT}:{PAT+1}]"
            A = [Mva, ex[0], ex[1], Mvb] + ex[2:]
            B = [Mta, rc[0], rc[1], Mtb, rc[2], rc[3]]
            if ORD == 0: L = A + [W1] + ao + gl + d + DD + nd + w1 + w2 + [W2] + B + [sa] + den + num
            if ORD == 1: L = A + [W1] + d + DD + nd + w1 + w2 + ao + gl + [W2] + B + [sa] + den + num
            if ORD == 2: L = A + [W1] + [d[0], d[2], d[1], d[3], DD[0], w1[0], DD[1], w1[1], nd[0], w2[0], nd[1], w2[1]] + ao + gl + [W2] + B + [sa] + den + num
            if ORD == 3: L = A + [W1] + ao + d[:2] + gl[:1] + d[2:] + gl[1:] + DD + nd + w1 + w2 + [W2] + B + [sa] + den + num
            if ORD == 4: L = A + [W1] + d + DD + nd + w1 + w2 + ["s_waitcnt vmcnt(4)"] + B + [sa] + den + num + ao + gl
            if ORD == 5: L = [Mva, ex[0], Mvb] + ex[1:] + [W1] + d + DD + w1 + w2 + ao + gl + nd + [W2] + [Mta, rc[0], rc[1], Mtb, rc[2], rc[3]] + [sa] + den + num
            if ORD == 6: L = A + [W1] + d + DD + nd + w1 + w2 + ["s_waitcnt vmcnt(4)"] + [Mta, rc[0], ao[0], rc[1], Mtb, rc[2], ao[1], rc[3]] + gl + [sa] + den + num
            if ORD == 7: L = [W1, Mva, ao[0], ex[0], Mvb, ao[1], ex[1]] + gl + ex[2:] + d + DD + nd + w1 + w2 + [W2] + B + [sa] + den + num
            a("\n".join(L))
            a(f"""
            s_cbranch_scc1 K2_FL_{rm}_{u}
            K2_BK_{rm}_{u}:
            ds_read_b64 v[{rn}:{rn+1}], v{vS} offset:{8*(u+5)}
            ds_read_b128 v[{EE}:{EE+3}], v{vE} offset:{ZROW + 16*(u+2)}
            s_lshr_b64 s[{M0_}:{M0_+1}], s[{M0_}:{M0_+1}], 1
            s_sub_u32 s{sRem}, s{sRem}, 1
            s_cmp_gt_u32 s{sRem}, 3
            s_cselect_b32 s{S_TBL+2}, {TBLSZ}, 0
            """)
            if u == 3:
                a(f"""
                v_add_u32 v{vS}, 32, v{vS}
                v_add_u32 v{vE}, v{vEs}, v{vE}
                s_cmp_eq_u32 s{sRem}, s{sT}
                s_cselect_b64 s[{M0_}:{M0_+1}], s[{M1_}:{M1_+1}], s[{M0_}:{M0_+1}]
                s_cmp_ge_u32 s{sRem}, {OPT.get('F1', 16)}
                s_cbranch_scc1 K2_LOOP_{rm}
                s_setprio 2
                s_cmp_ge_u32 s{sRem}, {OPT.get('F2', 8)}
                s_cbranch_scc1 K2_LOOP_{rm}
                s_setprio 1
                s_cmp_ge_u32 s{sRem}, {OPT.get('F3', 4)}
                s_cbranch_scc1 K2_LOOP_{rm}
                s_setprio 0
                s_branch K2_LOOP_{rm}
                """)
        for u in range(4):
            rn = R + 2 * ((u + 1) % 4)
            a(f"""
            K2_FL_{rm}_{u}:
            s_mul_i32 exec_lo, s{TMP}, 0xffff
            s_mul_i32 exec_hi, s{TMP+1}, 0xffff
            ds_write_b128 v{vRow}, v[{NUM}:{NUM+3}] offset:{RB}
            ds_write_b128 v{vRow}, v[{DEN}:{DEN+3}] offset:{RB+256}
            v_and_b32 v{IA}, 0x7f, v{rn}
            v_mad_u32_u24 v{vRow}, v{IA}, s{sRST}, v{vJ16}
            s_cmp_lg_u32 s{sRem}, 0
            ds_read_b128 v[{CEA}:{CEA+3}], v{vRow} offset:{RB+512}
            """)
            a(f"ds_read_b128 v[{NUM}:{NUM+3}], v{vJ16} offset:{ZROW}\nds_read_b128 v[{DEN}:{DEN+3}], v{vJ16} offset:{ZROW+512}")
            a(f"s_mov_b64 exec, -1\ns_cbranch_scc1 K2_BK_{rm}_{u}")
            if not (rm == 0 and u == 3): a("s_branch K2_LOOP_DONE")
    if OPT.get('ALIGN', 1): a(".p2align 6")
    loop(0)
    a("K2_LOOP_DONE:\ns_setprio 0")
    st()
    if OPT.get('BOTH'): st(True)
    a(f"""
    v_cmp_gt_u32 s[{TMP}:{TMP+1}], s{sRST}, v0
    s_waitcnt vmcnt(0) lgkmcnt(0)
    s_barrier
    """)
    st()
    a(f"""
    s_mov_b64 exec, s[{TMP}:{TMP+1}]
    ds_read_b128 v[40:43], v19 offset:256
    ds_read_b128 v[72:75], v6 offset:256
    ds_read_b128 v[44:47], v19 offset:272
    ds_read_b128 v[76:79], v6 offset:272
    ds_read_b128 v[32:35], v19
    ds_read_b128 v[64:67], v6
    ds_read_b128 v[36:39], v19 offset:16
    ds_read_b128 v[68:71], v6 offset:16
    v_cmp_lt_u32 vcc, 1, v7
    s_or_b32 s3, s{sNB}, s{sBase}
    s_cselect_b64 s[{M0_}:{M0_+1}], -1, vcc
    s_waitcnt lgkmcnt(4)
    """)
    for i in range(4, 8): a(pk('add', 32 + 2 * i, 32 + 2 * i, 64 + 2 * i))
    a(f"s_cmp_lg_u64 s[{M0_}:{M0_+1}], 0\ns_cbranch_scc1 K2_RARE_FIN")
    for i in range(8): a(f"v_rcp_f32 v{40+i}, v{40+i}")
    a("s_waitcnt lgkmcnt(0)")
    for i in range(4): a(pk('add', 32 + 2 * i, 32 + 2 * i, 64 + 2 * i))
    a("K2_FINAL:")
    for i in range(4): a(pk('fma', 32 + 2 * i, 32 + 2 * i, 40 + 2 * i, 120 + 2 * i))
    for i in range(8): a(f"v_max_f32 v{32+i}, v{XFL[i]}, v{32+i}")
    for i in range(4): a(f"v_cvt_pk_bf16_f32 v{40+i}, v{32+2*i}, v{33+2*i}")
    a(f"buffer_store_dwordx4 v[40:43], v{vXo}, s[{S_OUT}:{S_OUT+3}], 0 offen{OSTP}")
    if DIAG:
        a("s_waitcnt vmcnt(0)"); st(); st.dump(1, "s2", f"s{sW}", 2, S_WS)
    a("K2_END:\ns_endpgm")
    a(f"""
    K2_RMFIX:
    s_cmp_ge_u32 s{sW}, 14
    s_cbranch_scc1 K2_NORM
    v_mov_b32 v4, {TINY}
    v_mov_b32 v5, {TINY}
    s_mov_b32 s{SEL0}, 0x05040100
    """)
    for i in range(4): a(pk('fma', ACC + 2 * i, ACC + 2 * i, f"s[{L2E}:{L2E+1}]", 4))
    for i in range(4): pack_pair(a, ACC + 2 * i, ACC + 8 + 2 * i, WF + 2 * i, WF + 2 * i + 1, f"s{SEL0}", f"s{SEL1}", cvt=False)
    a(f"""
    s_lshr_b32 s3, s{sW}, 1
    v_lshl_add_u32 v4, s3, 4, v7
    v_cmp_gt_u32 vcc, {NPB}, v4
    s_mov_b64 exec, vcc
    ds_write_b128 v{vCe}, v[{WF}:{WF+3}] offset:{RB+512}
    ds_write_b128 v{vCe}, v[{WF+4}:{WF+7}] offset:{RB+576}
    s_mov_b64 exec, -1
    s_branch K2_NORM
    """)
    loop(1)
    a(f"""
    K2_SLOWINIT:
    s_cmp_lg_u32 s{sNB}, 0
    s_cbranch_scc1 K2_DECIDED
    v_lshl_add_u32 v2, v1, 3, s{sInf}
    buffer_load_dwordx2 v[2:3], v2, s[{S_WS}:{S_WS+3}], 0 offen
    s_waitcnt vmcnt(0)
    v_lshrrev_b32 v2, 16, v2
    v_lshrrev_b32 v3, 16, v3
    v_max_u32 v2, v2, v3
    """)
    wave_red(a, 2, "max_u32")
    a(f"""
    v_readlane_b32 s3, v2, 63
    s_add_u32 s3, s3, 23
    s_mul_i32 s3, s3, 43691
    s_lshr_b32 s{sNB}, s3, 20
    """)
    for k in range(3, NR): a(f"s_mov_b64 s[{MK+2*k}:{MK+2*k+1}], 0")
    a(f"""
    s_barrier
    v_mov_b32 v2, 0
    v_mov_b32 v3, 0
    ds_write_b64 v{vCntA}, v[2:3]
    s_waitcnt lgkmcnt(0)
    s_barrier
    s_branch K2_BATCH
    K2_RARE_FIN:
    s_waitcnt lgkmcnt(0)
    """)
    for i in range(4): a(pk('add', 32 + 2 * i, 32 + 2 * i, 64 + 2 * i))
    a(f"""
    s_cbranch_vccz K2_HEADS_DONE
    K2_MORE_HEADS:
    s_mov_b64 exec, vcc
    v_add_u32 v14, 512, v14
    v_subrev_u32 v7, 1, v7
    ds_read_b128 v[64:67], v14
    ds_read_b128 v[68:71], v14 offset:16
    ds_read_b128 v[72:75], v14 offset:256
    ds_read_b128 v[76:79], v14 offset:272
    v_cmp_lt_u32 vcc, 1, v7
    s_waitcnt lgkmcnt(0)
    """)
    for i in range(8): a(pk('add', 32 + 2 * i, 32 + 2 * i, 64 + 2 * i))
    a(f"""
    s_cbranch_vccnz K2_MORE_HEADS
    s_mov_b64 exec, s[{TMP}:{TMP+1}]
    K2_HEADS_DONE:
    s_cmp_eq_u32 s{sNB}, 0
    s_cbranch_scc1 K2_RCP
    s_sub_u32 s{sNB}, s{sNB}, 1
    s_lshl_b32 s3, s2, 16
    s_add_u32 s3, s3, {SCR_OFF}
    v_lshl_add_u32 v48, v0, 6, s3
    s_cmp_eq_u32 s{sBase}, 0
    s_cbranch_scc1 K2_NOLOAD
    """)
    for i in range(4): a(f"buffer_load_dwordx4 v[{64+4*i}:{67+4*i}], v48, s[{S_WS}:{S_WS+3}], 0 offen offset:{16*i}")
    a("s_waitcnt vmcnt(0)")
    for i in range(8): a(pk('add', 32 + 2 * i, 32 + 2 * i, 64 + 2 * i))
    a(f"""
    K2_NOLOAD:
    s_cmp_lg_u32 s{sNB}, 0
    s_cbranch_scc1 K2_NEXT
    K2_RCP:
    """)
    for i in range(8): a(f"v_rcp_f32 v{40+i}, v{40+i}")
    a("s_nop 0\ns_branch K2_FINAL\nK2_NEXT:")
    a(f"s_mov_b32 s{EPS}, {EPSP}\ns_mov_b32 s{EPS+1}, {EPSP}")
    for i in range(4): a(pk('add', 40 + 2 * i, 40 + 2 * i, f"s[{EPS}:{EPS+1}]", mod=" neg_lo:[0,1] neg_hi:[0,1]"))
    for i in range(4): a(f"buffer_store_dwordx4 v[{32+4*i}:{35+4*i}], v48, s[{S_WS}:{S_WS+3}], 0 offen offset:{16*i}")
    a(f"""
    s_mov_b64 exec, -1
    s_waitcnt vmcnt(0) lgkmcnt(0)
    s_barrier
    v_lshrrev_b32 v2, 3, v0
    v_lshl_add_u32 v3, v2, 2, s{sInf}
    buffer_load_dword v{vRem}, v3, s[{S_WS}:{S_WS+3}], 0 offen
    s_add_u32 s{sBase}, s{sBase}, 24
    s_mov_b32 s3, {RECREG}
    v_mul_u32_u24 v{vRecA}, s3, v2
    v_and_b32 v15, 7, v0
    v_add_u32 v15, s{sBase}, v15
    v_mad_u32_u24 v{vRecA}, v15, 12, v{vRecA}
    v_add_u32 v{vRecA}, {REC_OFF}, v{vRecA}
    v_mov_b32 v{vOne}, 4
    v_mov_b32 v{vZ}, 0
    v_lshrrev_b32 v6, 4, v1
    v_and_b32 v7, 15, v1
    s_lshl_b32 s3, s{sW}, 2
    v_bfe_u32 v16, v1, 2, 2
    v_add_u32 v{vS}, s3, v6
    v_add_u32 v{vE}, s3, v16
    v_mov_b32 v2, 0
    v_mov_b32 v3, 0
    ds_write_b64 v{vCntA}, v[2:3]
    s_mov_b32 s{S_TBL+2}, {TBLSZ}
    s_cmp_eq_u32 s{sRM}, 0
    s_cbranch_scc1 K2_NB_NOFLAG
    v_mov_b32 v5, 5
    ds_write_b32 v{vZ}, v5 offset:{FLAG}
    K2_NB_NOFLAG:
    s_waitcnt vmcnt(0)
    v_and_b32 v3, 0xffff, v{vRem}
    v_lshrrev_b32 v{vRem}, 16, v{vRem}
    v_add_u32 v{vRecA}, v3, v{vRecA}
    v_sub_u32 v{vRem}, v{vRem}, v15
    """)
    rec_masks(3); rec_issue(3, "K2_RI_SLOW")
    a("s_waitcnt vmcnt(0) lgkmcnt(0)\ns_barrier\ns_branch K2_BATCH\nCODE_END:")

HEADER = open('standalone__edge_featured_mpnn_gatedgcn__graph.s.ref').read().split('; Override launch')[0]

def kd(name, vgpr, sgpr):
    return f""".amdhsa_kernel {name}
  .amdhsa_next_free_vgpr {vgpr}
  .amdhsa_next_free_sgpr {sgpr}
  .amdhsa_accum_offset {(vgpr + 3) // 4 * 4}
  .amdhsa_group_segment_fixed_size 0
  .amdhsa_kernarg_size 96
  .amdhsa_user_sgpr_count 2
  .amdhsa_user_sgpr_kernarg_segment_ptr 1
  .amdhsa_system_sgpr_workgroup_id_x 1
.end_amdhsa_kernel
"""

def build(verbose=False):
    out = HEADER
    out += "; Two launches: prep_kernel (x @ [w_b | w_v] -> gather tables; edges partitioned by destination bucket),\n"
    out += "; agg_kernel (per bucket and feature half: gates, normalised aggregation, residual output).\n"
    out += f"; @launch kernel=prep_kernel grid=({K1_GRID},1,1) block=({K1_BLOCK},1,1) lds={K1_LDS}\n"
    out += f"; @launch kernel=agg_kernel grid=({K2_GRID},1,1) block=({K2_BLOCK},1,1) lds={K2_LDS}\n"
    ks = [("prep_kernel", gen_k1), ("agg_kernel", gen_k2)]
    if OPT.get('PROBE'):
        out += "; @launch kernel=probe_kernel grid=(1,1,1) block=(64,1,1) lds=0\n"; ks.append(("probe_kernel", gen_probe))
    out += '.amdgcn_target "amdgcn-amd-amdhsa--gfx950"\n.text\n'
    for name, g in ks:
        a = Asm(); g(a)
        out += f".globl {name}\n.p2align 8\n.type {name},@function\n" + a.finish(verbose)
    out += '.section .rodata,"a"\n.p2align 6\n' + kd("prep_kernel", 128 if OPT.get("CPRE", 1) else 104, 102 if DIAG else 64) + '.p2align 6\n' + kd("agg_kernel", 128, 102 if DIAG else 84)
    if OPT.get('PROBE'): out += '.p2align 6\n' + kd("probe_kernel", 8, 32)
    return out

if __name__ == '__main__':
    args = sys.argv[1:]
    if '--diag' in args: DIAG = True; args.remove('--diag')
    for x in list(args):
        if x.startswith('-D'):
            k, _, val = x[2:].partition('='); OPT[k] = int(val or 1); args.remove(x)
    v = '-v' in args
    if v: args.remove('-v')
    open(args[0], 'w').write(build(v))
```

```python
import sys, struct, math
from asmlib import Asm

def f2u(x): return struct.unpack('<I', struct.pack('<f', x))[0]

N = 12500; E = 400000
NPB = 98; NB = 128
NC = 128; CH = 3128; HCH = CH // 2
RECREG = CH * 12
TBL_H = 0x310000
REC_OFF = 0x800000
OFFS_OFF = 0x1000000
LC_OFF = OFFS_OFF + 0x10000
SCR_OFF = 0x1100000
DIAG_OFF = 0x2800000
NEGL2E = f2u(-math.log2(math.e))
TINY = 0x0d800000
CBITS = (127 - 62) << 23
EPSP = f2u(1e-6 * 2.0 ** 62)

G_WG = 128; S_WG = 128; K1_GRID = G_WG + S_WG; K1_BLOCK = 1024; K1_LDS = 163840
K2_GRID = 256; K2_BLOCK = 1024
LMAX = 28; RST = 784
CNT = 0; OFFA = 512; DESC = 1024; ZROW = 1536; EPSR = ZROW + 256; FLAG = ZROW + 768; SYNC = FLAG + 4; FLAG2 = FLAG + 8; MISC = FLAG + 16
RB = 2560; HEAD = 80384; EARR = HEAD + 32768; NPOS = LMAX * 128 + 128; SARR = EARR + NPOS * 8; K2_LDS = SARR + NPOS * 4
assert RB + 99 * RST <= HEAD
WS_SIZE = 0x2800000
NR = 7

assert RST == NPB * 8
DIAG = False
OPT = {}

def ws_shift(a):
    if OPT.get('WSOFF'): a(f"s_add_u32 s26, s26, {OPT['WSOFF'] << 20}\ns_addc_u32 s27, s27, 0")

def srd(a, s, lo, hi, size):
    a(f"s_mov_b32 s{s}, {lo}\ns_and_b32 s{s+1}, {hi}, 0xffff\ns_mov_b32 s{s+2}, {size}\ns_mov_b32 s{s+3}, 0x20000")

def srd_off(a, s, plo, off, size):
    a(f"s_add_u32 s{s}, s{plo}, {off}\ns_addc_u32 s{s+1}, s{plo+1}, 0\ns_and_b32 s{s+1}, s{s+1}, 0xffff")
    a(f"s_mov_b32 s{s+2}, {size}\ns_mov_b32 s{s+3}, 0x20000")

def wave_red(a, v, op):
    for sh in (1, 2, 4, 8):
        a(f"v_{op}_dpp v{v}, v{v}, v{v} row_shr:{sh} row_mask:0xf bank_mask:0xf bound_ctrl:1")
    a(f"v_{op}_dpp v{v}, v{v}, v{v} row_bcast:15 row_mask:0xa bank_mask:0xf")
    a(f"v_{op}_dpp v{v}, v{v}, v{v} row_bcast:31 row_mask:0xc bank_mask:0xf")

def pk(op, d, *srcs, mod=''):
    return f"v_pk_{op}_f32 v[{d}:{d+1}], " + ", ".join(s if isinstance(s, str) else f"v[{s}:{s+1}]" for s in srcs) + mod

def pack_pair(a, h, l, o0, o1, sel0, sel1, cvt=True):
    if cvt: a(f"v_cvt_pk_bf16_f32 v{l}, v{l}, v{l+1}")
    a(f"""
    v_sub_u32_sdwa v{h}, v{h}, v{l} dst_sel:DWORD dst_unused:UNUSED_PAD src0_sel:DWORD src1_sel:WORD_0
    v_sub_u32_sdwa v{h+1}, v{h+1}, v{l} dst_sel:DWORD dst_unused:UNUSED_PAD src0_sel:DWORD src1_sel:WORD_1
    v_cvt_pk_bf16_f32 v{h}, v{h}, v{h+1}
    v_perm_b32 v{o0}, v{h}, v{l}, {sel0}
    v_perm_b32 v{o1}, v{h}, v{l}, {sel1}
    """)

class Stamps:
    def __init__(self, a, base): self.a = a; self.base = base; self.n = 0
    def __call__(self, cyc=False):
        if not DIAG: return
        s = self.base + self.n; self.n += 1
        assert s < 100
        op = 's_memtime' if (OPT.get('CYC') or cyc) else 's_memrealtime'
        self.a(f"{op} s[100:101]\ns_waitcnt lgkmcnt(0)\ns_mov_b32 s{s}, s100")
    def dump(self, kern, wg, swave, vt, srdreg):
        if not DIAG: return
        a = self.a
        a(f"s_load_dwordx2 s[26:27], s[0:1], 88\ns_waitcnt lgkmcnt(0)")
        srd_off(a, srdreg, 26, DIAG_OFF + kern * 0x100000, 0x100000)
        a(f"s_lshl_b32 s3, {wg}, 4\ns_add_u32 s3, s3, {swave}\ns_lshl_b32 s3, s3, 6")
        a(f"s_mov_b64 exec, 1\nv_mov_b32 v{vt}, s3")
        for i in range(self.n):
            a(f"v_mov_b32 v{vt+1}, s{self.base+i}\nbuffer_store_dword v{vt+1}, v{vt}, s[{srdreg}:{srdreg+3}], 0 offen offset:{4*i}\ns_nop 1")

def probe_stamp(a, slot, nm):
    if not OPT.get('PROBE') or OPT['PROBE'] >= 10: return
    a(f"""
    s_cmp_lg_u32 s2, 0
    s_cbranch_scc1 {nm}_NOPROBE
    s_memrealtime s[8:9]
    s_load_dwordx2 s[4:5], s[0:1], 88
    s_waitcnt lgkmcnt(0)
    s_add_u32 s4, s4, {DIAG_OFF + 0x300000 + slot*256}
    s_addc_u32 s5, s5, 0
    v_mov_b32 v2, s8
    v_mov_b32 v3, 0
    s_mov_b64 exec, 1
    global_store_dword v3, v2, s[4:5]
    s_mov_b64 exec, -1
    {nm}_NOPROBE:
    """)

def gen_probe(a):
    P = OPT['PROBE']
    if P < 10:
        a(f"""
        probe_kernel:
        s_cmp_lg_u32 s2, 0
        s_cbranch_scc1 P_END
        s_memrealtime s[8:9]
        s_load_dwordx2 s[4:5], s[0:1], 88
        s_waitcnt lgkmcnt(0)
        s_add_u32 s4, s4, {DIAG_OFF + 0x300000}
        s_addc_u32 s5, s5, 0
        v_mov_b32 v3, 0
        global_load_dword v1, v3, s[4:5]
        global_load_dword v2, v3, s[4:5] offset:256
        s_waitcnt vmcnt(0)
        v_readfirstlane_b32 s10, v1
        v_readfirstlane_b32 s11, v2
        s_nop 4
        s_sub_u32 s12, {'s11' if P == 2 else 's8'}, s10
        """)
        if P == 3:
            a("""
            s_sub_u32 s13, s11, s10
            v_mov_b32 v4, s12
            v_mov_b32 v5, s13
            global_store_dwordx2 v3, v[4:5], s[4:5] offset:512
            s_endpgm
            """)
    else:
        kern = OPT.get('PK', 0); idx = P - 10; nw = 16; w0 = OPT.get('PW0', 0); nwg = OPT.get('PNW', 256); kb = OPT.get('PB', 0)
        a(f"""
        probe_kernel:
        s_cmp_lg_u32 s2, 0
        s_cbranch_scc1 P_END
        s_memrealtime s[8:9]
        s_load_dwordx2 s[4:5], s[0:1], 88
        s_waitcnt lgkmcnt(0)
        s_add_u32 s4, s4, {DIAG_OFF}
        s_addc_u32 s5, s5, 0
        v_lshlrev_b32 v3, 10, v0
        v_mov_b32 v4, -1
        v_mov_b32 v5, 0
        """)
        for k in range(4):
            a(f"v_add_u32 v6, {kb*0x100000 + k*65536}, v3\nglobal_load_dword v1, v6, s[4:5]\ns_waitcnt vmcnt(0)\nv_min_u32 v4, v4, v1")
        for k in range(nwg // 64):
            for w in range(nw):
                a(f"v_add_u32 v6, {kern*0x100000 + (w0 + k*64)*1024 + w*64 + idx*4}, v3\nglobal_load_dword v1, v6, s[4:5]\ns_waitcnt vmcnt(0)\nv_max_u32 v5, v5, v1")
        a("v_not_b32 v4, v4")
        wave_red(a, 4, "max_u32"); wave_red(a, 5, "max_u32")
        a("""
        s_nop 1
        v_readlane_b32 s10, v4, 63
        v_readlane_b32 s11, v5, 63
        s_nop 4
        s_not_b32 s10, s10
        s_sub_u32 s12, s11, s10
        s_memrealtime s[8:9]
        s_waitcnt lgkmcnt(0)
        """)
    a(f"""
    s_min_u32 s12, s12, 20000
    s_mul_i32 s12, s12, {100 if P >= 10 else 10}
    P_SPIN:
    s_memrealtime s[14:15]
    s_waitcnt lgkmcnt(0)
    s_sub_u32 s13, s14, s8
    s_cmp_lt_u32 s13, s12
    s_cbranch_scc1 P_SPIN
    P_END:
    s_endpgm
    """)

def w_lane_off(a, d, t0, t1):
    a(f"""
    v_lshrrev_b32 v{t0}, 3, v1
    v_lshlrev_b32 v{t0}, 8, v{t0}
    v_bfe_u32 v{d}, v1, 4, 1
    v_lshlrev_b32 v{d}, 1, v{d}
    v_and_b32 v{t1}, 7, v1
    v_xor_b32 v{d}, v{d}, v{t1}
    v_lshl_add_u32 v{d}, v{d}, 4, v{t0}
    """)

def w_frag_off(a, d, t0, t1, vg):
    a(f"""
    v_bfe_u32 v{t0}, v1, 2, 2
    v_lshl_add_u32 v{d}, v{vg}, 3, v{t0}
    v_lshlrev_b32 v{d}, 7, v{d}
    v_and_b32 v{t1}, 3, v1
    v_lshl_add_u32 v{d}, v{t1}, 3, v{d}
    v_lshrrev_b32 v{t0}, 1, v{t0}
    v_and_b32 v{t1}, 1, v{vg}
    v_lshl_or_b32 v{t0}, v{t1}, 1, v{t0}
    v_lshl_add_u32 v{d}, v{t0}, 5, v{d}
    """)

def gen_k1(a):
    STP = {0: "", 1: " nt", 2: " sc1", 3: " sc0 sc1"}[OPT.get('STP', 2)]
    st = Stamps(a, 64)
    a("prep_kernel:")
    a(f"s_cmp_ge_u32 s2, {K1_GRID}\ns_cbranch_scc1 K1_END")
    probe_stamp(a, 0, "K1")
    if OPT.get('CPRE', 1):
        a(f"""
        s_cmp_ge_u32 s2, {OPT.get('CPREN', 16)}
        s_cbranch_scc1 K1_NOCPRE
        s_getpc_b64 s[4:5]
        K1_PC:
        v_lshlrev_b32 v2, 7, v0
        v_cmp_gt_u32 vcc, CODE_END-K1_PC, v2
        s_and_saveexec_b64 s[6:7], vcc
        s_cbranch_execz K1_CPRE_DONE
        v_mov_b32 v3, s5
        v_add_co_u32 v2, vcc, s4, v2
        v_addc_co_u32 v3, vcc, 0, v3, vcc
        global_load_dword v127, v[2:3], off
        K1_CPRE_DONE:
        s_mov_b64 exec, -1
        K1_NOCPRE:
        """)
    st()
    NT = " nt" if OPT.get('NT', 1) else ""
    a(f"""
    s_load_dwordx2 s[44:45], s[0:1], 88
    v_lshrrev_b32 v2, 6, v0
    v_and_b32 v1, 63, v0
    v_readfirstlane_b32 s50, v2
    s_mov_b32 s46, {SCR_OFF}
    s_mov_b32 s47, 0x20000
    s_cmp_lt_u32 s2, {S_WG}
    s_cbranch_scc1 K1_SORT
    """)
    XF = [8, 24]; ACC = 40; WF = 72; WA = 88; XA = 92; BW = 96; BR = 98
    XST = 65536; BNC = XST + 32768
    def acc(t, m, c): return ACC + ((t * 2 + m) * 2 + c) * 4
    a(f"""
    s_load_dwordx2 s[28:29], s[0:1], 0
    s_load_dwordx2 s[32:33], s[0:1], 40
    s_load_dwordx2 s[4:5], s[0:1], 64
    s_load_dwordx2 s[12:13], s[0:1], 32
    s_load_dwordx2 s[18:19], s[0:1], 56
    s_sub_u32 s53, s2, {S_WG}
    s_and_b32 s51, s53, 3
    s_lshl_b32 s51, s51, 5
    s_bfe_u32 s52, s53, 0x10002
    s_lshl_b32 s56, s52, 4
    s_add_u32 s51, s51, s56
    s_lshr_b32 s56, s53, 3
    s_add_u32 s51, s51, s56              ; bucket
    s_mul_i32 s54, s51, {NPB*256}
    s_add_u32 s58, s54, {NPB*256}
    s_min_u32 s30, s58, {N*256}
    s_mov_b32 s31, 0x20000
    s_mov_b32 s34, 32768
    s_mov_b32 s35, 0x20000
    s_lshl_b32 s55, s50, 11
    s_add_u32 s56, s54, s55
    s_add_u32 s55, s55, {XST}
    s_mov_b32 m0, s55
    v_lshrrev_b32 v6, 4, v1              ; l>>4
    v_and_b32 v7, 15, v1                 ; l&15
    v_xor_b32 v2, v6, v7
    v_lshlrev_b32 v2, 4, v2              ; ((l&15)^(l>>4))*16
    v_lshl_add_u32 v{XA}, v7, 8, v2
    v_lshl_add_u32 v2, v6, 8, v2
    s_and_b32 s57, s50, 1
    s_lshl_b32 s57, s57, 7
    v_xor_b32 v2, s57, v2
    v_add_u32 v8, s56, v2
    v_xor_b32 v9, 64, v8                 ;                  piece 2w+1
    """)
    w_lane_off(a, 4, 5, 48)
    a(f"""
    v_xor_b32 v5, 64, v4
    s_lshl_b32 s57, s50, 12
    s_bfe_u32 s59, s50, 0x10002
    s_lshl_b32 s59, s59, 7
    s_and_b32 s56, s50, 3
    s_lshl_b32 s56, s56, 13
    s_add_u32 s24, s59, s56
    s_add_u32 s25, s24, 1024
    s_add_u32 s26, s24, 2048
    s_add_u32 s27, s24, 3072
    s_cmp_lt_u32 s50, 8
    s_waitcnt lgkmcnt(0)
    buffer_load_dwordx4 v8, s[28:31], 0 offen{NT if OPT.get('XNT', 0) else ''} lds
    buffer_load_dwordx4 v9, s[28:31], 0 offen offset:1024{NT if OPT.get('XNT', 0) else ''} lds
    s_mov_b32 m0, s57
    s_cselect_b64 s[32:33], s[32:33], s[4:5]
    """)
    for i in range(4): a(f"buffer_load_dwordx4 v{4 + (i & 1)}, s[32:35], s{24+i} offen offset:{i*1024} lds")
    a(f"""
    s_bfe_u32 s52, s50, 0x10001
    s_lshr_b32 s56, s50, 2
    s_and_b32 s55, s50, 1
    s_mul_i32 s57, s52, {TBL_H}
    s_add_u32 s36, s44, s57
    s_addc_u32 s37, s45, 0
    s_mov_b64 s[38:39], s[30:31]
    v_and_b32 v48, 3, v1
    v_bfe_u32 v49, v1, 3, 2
    v_bfe_u32 v50, v1, 2, 2
    v_lshlrev_b32 v{WA}, 3, v48
    v_lshl_or_b32 v{WA}, v49, 5, v{WA}
    v_lshl_or_b32 v{WA}, v50, 7, v{WA}
    v_lshl_or_b32 v{WA}, v6, 10, v{WA}
    s_lshl_b32 s57, s55, 6
    s_lshl_b32 s59, s52, 14
    s_or_b32 s57, s57, s59
    v_xor_b32 v{WA}, s57, v{WA}
    v_xor_b32 v{WA+1}, 32, v{WA}
    s_lshl_b32 s57, s56, 13
    s_add_u32 s59, s57, {XST}
    v_add_u32 v{XA}, s59, v{XA}
    v_xor_b32 v{XA+1}, 64, v{XA}
    v_xor_b32 v{XA+2}, 128, v{XA}
    v_xor_b32 v{XA+3}, 192, v{XA}
    s_lshl_b32 s59, s50, 12
    s_add_u32 s59, s59, {BNC}
    v_and_b32 v48, 7, v1
    v_xor_b32 v49, v6, v48
    v_lshlrev_b32 v49, 4, v49
    v_lshl_add_u32 v49, v7, 7, v49
    v_add_u32 v{BW}, s59, v49
    v_xor_b32 v{BW+1}, 64, v{BW}
    v_lshrrev_b32 v50, 3, v1
    v_xor_b32 v49, v48, v50
    v_lshlrev_b32 v49, 4, v49
    v_lshl_add_u32 v49, v50, 7, v49
    v_add_u32 v{BR}, s59, v49
    s_add_u32 s57, s57, s54
    s_lshl_b32 s59, s55, 7
    s_add_u32 s57, s57, s59
    v_lshlrev_b32 v3, 8, v50
    v_lshl_add_u32 v3, v48, 4, v3
    v_add_u32 v3, s57, v3
    v_add_u32 v7, 4096, v3
    s_mov_b32 s20, {NEGL2E}
    s_mov_b32 s22, 0x05040100
    s_mov_b32 s23, 0x07060302
    s_xor_b32 s51, s51, 16
    s_mul_i32 s51, s51, {NPB*256}
    v_lshl_add_u32 v4, v0, 7, s51
    v_lshlrev_b32 v5, 8, v1
    v_mov_b32 v2, {TINY}
    s_mov_b32 s30, {N*256}
    s_waitcnt vmcnt(0)
    """)
    st()
    a("s_barrier")
    st()
    def prefetch():
        a(f"""
        s_cmp_lt_u32 s50, 4
        s_cbranch_scc0 K1_XPRE_DONE
        {"v_cmp_gt_u32 vcc, %d, v0; x" % (NPB*2) if not OPT.get('SPRE', 3) else ""}
        {"s_mov_b64 exec, vcc" if not OPT.get('SPRE', 3) else ""}
        {"buffer_load_dword v6, v4, s[28:31], 0 offen" + (' nt' if OPT.get('PRENT') else '') if not OPT.get('SPRE', 3) else ""}
        s_mov_b64 exec, -1
        s_branch K1_PRE_DONE
        K1_XPRE_DONE:
        s_cmp_lt_u32 s53, 8
        s_cbranch_scc0 K1_PRE_DONE
        s_cmp_lt_u32 s50, 8
        s_cbranch_scc0 K1_PRE_DONE
        s_cmp_lt_u32 s50, 6
        s_cselect_b64 s[32:33], s[12:13], s[18:19]
        s_lshl_b32 s57, s55, 14
        s_bfe_u32 s59, s53, 0x10002
        s_lshl_b32 s59, s59, 7
        s_add_u32 s57, s57, s59
        buffer_load_dword v6, v5, s[32:35], s57 offen
        K1_PRE_DONE:
        """)
    if OPT.get('PRE', 1) == 1: prefetch()
    def gemm_body(nt, st):
        for t in range(nt):
            for ks in range(4): a(f"ds_read_b128 v[{XF[t]+4*ks}:{XF[t]+4*ks+3}], v{XA+ks} offset:{t*4096}")
        seq = [(ks, m, c) for ks in range(4) for m in range(2) for c in range(2)]
        def rd(s):
            ks, m, c = seq[s]; b = WF + 4 * (s % 4); o = m * 32768 + ks * 4096
            a(f"ds_read_b64_tr_b16 v[{b}:{b+1}], v{WA+c} offset:{o}\nds_read_b64_tr_b16 v[{b+2}:{b+3}], v{WA+c} offset:{o+512}")
        rd(0); rd(1)
        for s in range(0, 16, 2):
            if s + 2 < 16: rd(s + 2); rd(s + 3)
            a(f"s_waitcnt lgkmcnt({4 if s + 2 < 16 else 0})")
            for z in (s, s + 1):
                ks, m, c = seq[z]; b = WF + 4 * (z % 4)
                for t in range(nt):
                    d = acc(t, m, c); cc = "0" if ks == 0 else f"v[{d}:{d+3}]"
                    a(f"v_mfma_f32_16x16x32_bf16 v[{d}:{d+3}], v[{b}:{b+3}], v[{XF[t]+4*ks}:{XF[t]+4*ks+3}], {cc}")
        st()
        for t in range(nt):
            for c in range(2):
                O = XF[0] + 4 * (2 * t + c)
                for rp in (0, 2):
                    h = acc(t, 0, c) + rp; l = acc(t, 1, c) + rp
                    a(f"v_fma_f32 v{h}, v{h}, s20, v2\nv_fma_f32 v{h+1}, v{h+1}, s20, v2")
                    pack_pair(a, h, l, O + rp, O + rp + 1, "s22", "s23")
                a(f"ds_write_b128 v{BW+c}, v[{O}:{O+3}] offset:{t*2048}")
        a("s_waitcnt lgkmcnt(0)")
        nq = 4 if nt == 2 else 1
        for q in range(nq): a(f"ds_read_b128 v[{XF[1]+4*q}:{XF[1]+4*q+3}], v{BR} offset:{q*1024}")
        for q in range(nq):
            a(f"s_waitcnt lgkmcnt({nq-1-q})")
            a(f"buffer_store_dwordx4 v[{XF[1]+4*q}:{XF[1]+4*q+3}], v{3 if q < 2 else 7}, s[36:39], 0 offen offset:{(q&1)*2048}{STP}")
        st()
        if DIAG:
            a("s_waitcnt vmcnt(0)"); st(); st.dump(0, "s2", "s50", 2, 60)
        a("s_endpgm")
    a("s_cmp_ge_u32 s50, 12\ns_cbranch_scc1 K1_GEMM1")
    n0 = st.n
    gemm_body(2, st)
    a("K1_GEMM1:\n; last row tile pair: only rows 96, 97 exist")
    st.n = n0
    gemm_body(1, st)
    st = Stamps(a, 65)
    IMG = 1024
    DST = 8; SRC = 12; EA = 16; BK = 24; RK = 28; SN = 32
    a("K1_SORT:")
    a(f"""
    s_load_dwordx2 s[28:29], s[0:1], 24
    s_load_dwordx2 s[32:33], s[0:1], 16
    s_load_dwordx2 s[36:37], s[0:1], 8
    s_load_dwordx2 s[16:17], s[0:1], 48
    s_and_b32 s52, s2, 7
    s_lshl_b32 s52, s52, 4
    s_lshr_b32 s51, s2, 3
    s_add_u32 s51, s51, s52              ; chunk c
    s_mul_i32 s52, s51, {CH}
    v_lshl_add_u32 v2, v0, 2, s52
    s_sub_u32 s58, {E}, s52
    s_min_u32 s58, s58, {CH}
    s_lshr_b32 s53, s58, 2
    v_cmp_gt_u32 s[48:49], s53, v0
    v_lshlrev_b32 v4, 3, v2
    v_lshlrev_b32 v2, 2, v2
    s_mul_i32 s42, s58, 12
    s_mov_b32 s43, 0x20000
    s_mov_b32 s30, {E*4}
    s_mov_b32 s31, 0x20000
    s_mov_b64 s[34:35], s[30:31]
    s_mov_b32 s38, {E*8}
    s_mov_b32 s39, 0x20000
    s_mul_i32 s53, s51, {RECREG}
    s_add_u32 s53, s53, {REC_OFF}
    s_mov_b32 s54, 42800
    s_mov_b32 s55, {NPB}
    s_mov_b32 s56, {IMG}
    v_mov_b32 v5, 12
    v_lshlrev_b32 v6, 3, v1
    v_mov_b32 v40, 0
    v_mov_b32 v41, 0
    ds_write_b64 v6, v[40:41]
    s_mov_b64 exec, s[48:49]
    s_waitcnt lgkmcnt(0)
    buffer_load_dwordx4 v[{DST}:{DST+3}], v2, s[28:31], 0 offen{NT}
    s_add_u32 s40, s44, s53
    s_addc_u32 s41, s45, 0
    s_cmp_gt_u32 s50, 12
    s_barrier
    s_cbranch_scc1 K1_IDLE
    buffer_load_dwordx4 v[{SRC}:{SRC+3}], v2, s[32:35], 0 offen{NT}
    buffer_load_dwordx4 v[{EA}:{EA+3}], v4, s[36:39], 0 offen{NT}
    buffer_load_dwordx4 v[{EA+4}:{EA+7}], v4, s[36:39], 0 offen offset:16{NT}
    s_waitcnt vmcnt(3)
    """)
    st()
    for i in range(4):
        a(f"""
        v_mul_u32_u24 v{BK+i}, s54, v{DST+i}
        v_lshrrev_b32 v{BK+i}, 22, v{BK+i}           ; bucket
        v_mul_u32_u24 v{SN+i}, s55, v{BK+i}
        v_lshlrev_b32 v{BK+i}, 2, v{BK+i}
        ds_add_rtn_u32 v{RK+i}, v{BK+i}, v5
        v_sub_u32 v{SN+i}, v{DST+i}, v{SN+i}
        """)
    a("""
    s_mov_b64 exec, -1
    s_waitcnt lgkmcnt(0)
    s_barrier
    """)
    if OPT.get('FINE'): st()
    a("""
    ds_read_b64 v[40:41], v6
    s_waitcnt lgkmcnt(0)
    v_add_u32 v42, v40, v41
    v_add_u32 v43, v40, v41
    """)
    wave_red(a, 43, "add_u32")
    a(f"""
    v_sub_u32 v44, v43, v42
    v_add_u32 v45, v44, v40
    ds_write_b64 v6, v[44:45] offset:512
    s_mov_b64 exec, s[48:49]
    """)
    for i in range(4): a(f"ds_read_b32 v{BK+i}, v{BK+i} offset:512")
    a("s_waitcnt vmcnt(2)")
    for i in range(4): a(f"v_lshl_or_b32 v{SN+i}, v{SRC+i}, 8, v{SN+i}")
    for i in range(4):
        a(f"s_waitcnt lgkmcnt(3)\nv_add3_u32 v{RK+i}, v{BK+i}, v{RK+i}, s56\nds_write_b32 v{RK+i}, v{SN+i} offset:8")
    if OPT.get('FINE'): st(); a("s_waitcnt vmcnt(0)"); st()
    for i in range(4):
        if i % 2 == 0: a(f"s_waitcnt vmcnt({1 - i//2})")
        a(f"ds_write2_b32 v{BK+i}, v{EA+2*i}, v{EA+2*i+1} offset0:{IMG//4 - 256} offset1:{IMG//4 - 255}".replace(f"offset0:{IMG//4 - 256} offset1:{IMG//4 - 255}", "offset0:0 offset1:1").replace(f"v{BK+i},", f"v{RK+i},", 1))
    a(f"""
    s_mov_b64 exec, -1
    K1_NOINFO:
    v_lshlrev_b32 v7, 4, v0
    s_waitcnt lgkmcnt(0)
    s_barrier
    """)
    st()
    NCP = (RECREG + K1_BLOCK * 16 - 1) // (K1_BLOCK * 16)
    for i in range(NCP): a(f"ds_read_b128 v[{8+4*i}:{11+4*i}], v7 offset:{IMG + i*K1_BLOCK*16}")
    for i in range(1, NCP): a(f"v_add_u32 v{40+i}, {i*K1_BLOCK*16}, v7")
    for i in range(NCP):
        a(f"s_waitcnt lgkmcnt({NCP-1-i})")
        a(f"buffer_store_dwordx4 v[{8+4*i}:{11+4*i}], v{7 if i == 0 else 40+i}, s[40:43], 0 offen{STP}")
    st()
    if DIAG:
        a("s_waitcnt vmcnt(0)"); st(); st.base = 64; st.n += 1; st.dump(0, "s2", "s50", 2, 60)
    a(f"""
    K1_END:
    s_endpgm
    K1_IDLE:
    s_mov_b64 exec, -1
    s_cmp_eq_u32 s50, 14
    s_cbranch_scc0 K1_AUX
    s_barrier
    ds_read_b64 v[40:41], v6
    s_waitcnt lgkmcnt(0)
    v_add_u32 v42, v40, v41
    v_add_u32 v43, v40, v41
    """)
    wave_red(a, 43, "add_u32")
    a(f"""
    v_sub_u32 v44, v43, v42
    v_add_u32 v45, v44, v40
    s_mov_b32 s53, 43691
    v_mul_u32_u24 v40, s53, v40
    v_mul_u32_u24 v41, s53, v41
    v_lshrrev_b32 v40, 19, v40
    v_lshrrev_b32 v41, 19, v41
    v_lshl_or_b32 v44, v40, 16, v44
    v_lshl_or_b32 v45, v41, 16, v45
    s_lshl_b32 s53, s51, 2
    s_add_u32 s53, s53, {OFFS_OFF}
    v_lshl_add_u32 v7, v1, 10, s53
    buffer_store_dword v44, v7, s[44:47], 0 offen{STP if OPT.get('ISC') else ''}
    buffer_store_dword v45, v7, s[44:47], 0 offen offset:512{STP if OPT.get('ISC') else ''}
    s_branch K1_NOINFO
    K1_AUX:
    """)
    def spre():
        a(f"""
        s_cmp_eq_u32 s50, 13
        s_cbranch_scc0 K1_NOSPRE
        s_load_dwordx2 s[20:21], s[0:1], 0
        s_and_b32 s53, s2, 3
        s_lshl_b32 s53, s53, 5
        s_bfe_u32 s57, s2, 0x10002
        s_xor_b32 s57, s57, 1
        s_lshl_b32 s57, s57, 4
        s_add_u32 s53, s53, s57
        s_lshr_b32 s57, s2, 3
        s_add_u32 s53, s53, s57
        s_mul_i32 s53, s53, {NPB*256}
        s_add_u32 s22, s53, {NPB*256}
        s_min_u32 s22, s22, {N*256}
        s_mov_b32 s23, 0x20000
        v_lshl_add_u32 v10, v1, 7, s53
        v_add_u32 v11, 8192, v10
        v_add_u32 v12, 16384, v10
        v_add_u32 v13, 24576, v10
        s_waitcnt lgkmcnt(0)
        """)
        for k in range(4): a(f"buffer_load_dword v{60+k}, v{10+k}, s[20:23], 0 offen{' nt' if OPT.get('PRENT') else ''}")
        a("K1_NOSPRE:")
    if OPT.get('SPRE', 3) == 1: spre()
    a("s_barrier")
    if OPT.get('SPRE', 3) == 2: spre()
    a(f"""
    s_cmp_eq_u32 s50, 15
    s_cbranch_scc0 K1_NOINFO
    s_cmp_gt_u32 s51, 1
    s_cbranch_scc1 K1_NOINFO
    s_mov_b32 s18, 1024
    s_mov_b32 s19, 0x20000
    v_lshrrev_b32 v10, 4, v1
    v_and_b32 v11, 15, v1
    s_lshl_b32 s53, s51, 7
    v_lshl_add_u32 v12, v11, 3, s53
    v_lshl_add_u32 v12, v10, 1, v12      ; w_c element (h*64 + 4j + r')
    """)
    for k in range(4): a(f"buffer_load_ushort v{16+k}, v12, s[16:19], 0 offen offset:{256*k}")
    a(f"""
    v_mov_b32 v13, 0x7f000000
    s_mul_i32 s53, s51, {TBL_H}
    s_add_u32 s53, s53, {N*256}
    v_lshl_add_u32 v14, v1, 2, s53
    buffer_store_dword v13, v14, s[44:47], 0 offen{STP}
    v_and_b32 v12, 3, v1
    v_bfe_u32 v13, v1, 3, 2
    v_bfe_u32 v15, v1, 2, 2
    v_lshlrev_b32 v22, 3, v12
    v_lshl_or_b32 v22, v13, 5, v22
    v_lshl_or_b32 v22, v15, 7, v22
    v_lshl_or_b32 v22, v10, 10, v22
    v_add_u32 v22, {HEAD}, v22
    v_xor_b32 v23, v10, v11
    v_lshlrev_b32 v23, 4, v23
    v_lshl_add_u32 v23, v11, 8, v23
    v_add_u32 v23, {EARR}, v23
    s_lshl_b32 s53, s51, 10
    s_add_u32 s53, s53, {LC_OFF}
    v_lshl_add_u32 v14, v1, 4, s53
    s_mov_b32 s53, {NEGL2E}
    s_waitcnt vmcnt(1)
    """)
    for k in range(4): a(f"v_lshlrev_b32 v{16+k}, 16, v{16+k}\nv_mul_f32 v{16+k}, s53, v{16+k}")
    a(f"""
    v_cvt_pk_bf16_f32 v20, v16, v17
    v_cvt_pk_bf16_f32 v21, v18, v19
    buffer_store_dwordx4 v[20:23], v14, s[44:47], 0 offen{STP}
    s_branch K1_NOINFO
    """)

def gen_k2(a):
    OSTP = {0: "", 1: " nt", 2: " sc1", 3: " sc0 sc1"}[OPT.get('OSTP', 2)]
    st = Stamps(a, 84)
    S_WS, S_W, S_TBL, S_WC, S_X, S_OUT = 28, 36, 40, 48, 52, 56
    MK = 60
    sBase, sRST, sH, sR0, sW, sL, sRem, sNB, sRM, sT = 74, 75, 76, 77, 78, 79, 80, 81, 82, 83
    M0_, M1_, PAT, TMP, sMsk, sInf, RMM, L2E, SEL0, SEL1, EMK, EPS, sWo = 4, 6, 8, 10, 12, 13, 14, 16, 18, 19, 20, 22, 24
    REC = 64
    CA = 92
    ACC = 32; XFB = [92, 100]; WFB = [108, 112, 120, 124]; XA = 26
    WCS = EARR + 32768
    vRem, vRecA, vOne, vZ = 116, 117, 118, 19
    LD = 32; T = 64; V = 72; D = 80; ND = 84; W = 88; NUM = 92; DEN = 96; CEA = 100; EE = 104; R = 108
    IA, IB, vRow, vS = 116, 117, 118, 119
    vE, vEs, vJ16 = 20, 21, 22
    WC = 24; CC = 26; SEL = 28
    XR = 8; vXo = 12; vCntA = 13; vCe = 14; vTch = 23
    XFL = [2, 3, 4, 5, 15, 16, 17, 18]
    T1 = OPT.get('TOUCH1', 0); T2 = OPT.get('TOUCH2', 2)
    TBLSZ = (N + 1) * 256
    def rounds(n, lbl, body, first_check=3):
        for k in range(n):
            a(f"s_mov_b64 exec, s[{MK+2*k}:{MK+2*k+1}]")
            if k >= first_check: a(f"s_cbranch_execz {lbl}")
            a(body(k))
        a(f"{lbl}:\ns_mov_b64 exec, -1")
    def rec_masks(n):
        for k in range(n): a(f"v_cmp_lt_i32 s[{MK+2*k}:{MK+2*k+1}], {8*k}, v{vRem}")
    def rec_issue(n, lbl):
        rounds(n, lbl, lambda k: f"buffer_load_dwordx3 v[{REC+4*k}:{REC+4*k+2}], v{vRecA}, s[{S_WS}:{S_WS+3}], 0 offen offset:{96*k}")
    a("agg_kernel:")
    a(f"s_cmp_ge_u32 s2, {K2_GRID}\ns_cbranch_scc1 K2_END")
    probe_stamp(a, 1, "K2")
    st()
    a(f"""
    s_load_dwordx2 s[{S_WS}:{S_WS+1}], s[0:1], 88
    s_load_dwordx2 s[{S_X}:{S_X+1}], s[0:1], 0
    s_load_dwordx2 s[{S_W}:{S_W+1}], s[0:1], 32
    s_load_dwordx2 s[4:5], s[0:1], 56
    s_load_dwordx2 s[{S_OUT}:{S_OUT+1}], s[0:1], 72
    v_lshrrev_b32 v2, 6, v0
    v_and_b32 v1, 63, v0
    v_readfirstlane_b32 s{sW}, v2
    s_bfe_u32 s{sH}, s2, 0x10002
    s_lshr_b32 s{sR0}, s2, 3
    s_and_b32 s3, s2, 3
    s_lshl_b32 s3, s3, 5
    s_add_u32 s{sR0}, s{sR0}, s3          ; bucket
    s_lshl_b32 s{sInf}, s{sR0}, 9
    s_add_u32 s{sInf}, s{sInf}, {OFFS_OFF}
    s_mul_i32 s{sR0}, s{sR0}, {NPB*256}   ; first row of the bucket * 256
    s_mov_b32 s{S_WS+2}, {WS_SIZE}
    s_mov_b32 s{S_WS+3}, 0x20000
    s_mov_b32 s3, {RECREG}
    v_lshrrev_b32 v2, 3, v0               ; segment / finalisation node
    v_and_b32 v15, 7, v0                  ; sub
    v_lshl_add_u32 v3, v2, 2, s{sInf}     ; info offset
    v_mul_u32_u24 v{vRecA}, s3, v2
    v_mad_u32_u24 v{vRecA}, v15, 12, v{vRecA}
    v_add_u32 v{vRecA}, {REC_OFF}, v{vRecA}
    v_lshrrev_b32 v6, 4, v1               ; l>>4
    v_and_b32 v7, 15, v1                  ; l&15
    s_lshl_b32 s3, s{sH}, 10
    s_add_u32 s3, s3, {LC_OFF}
    v_lshl_add_u32 v4, v1, 4, s3          ; lane constants
    v_mov_b32 v{vOne}, 4
    v_mov_b32 v{vZ}, 0
    s_cmp_lt_u32 s{sW}, 8
    s_cbranch_scc1 K2_GPRE
    s_cmp_lt_u32 s{sW}, 13
    s_cbranch_scc1 K2_PRE_DONE
    ; ---- waves 13..15: small LDS init (counters .. flags zeroed, eps row, trash row gate factor = 1)
    v_subrev_u32 v76, {13*64}, v0
    v_lshlrev_b32 v5, 4, v76
    v_subrev_u32 v77, {(ZROW+512)//16}, v76
    v_cmp_gt_u32 vcc, 16, v77
    v_mov_b32 v68, {EPSP}
    v_add_u32 v78, {RB + NPB*RST + 512 - MISC}, v5
    v_cndmask_b32 v68, 0, v68, vcc
    v_cmp_lt_u32 vcc, {MISC//16 - 1}, v76
    v_cmp_gt_u32 s[{TMP}:{TMP+1}], {MISC//16 + 16 - 128}, v77
    v_cndmask_b32 v68, v68, 1.0, vcc
    v_cndmask_b32 v5, v5, v78, vcc
    v_cmp_gt_u32 vcc, {MISC//16 + 16}, v76
    v_mov_b32 v69, v68
    v_mov_b32 v70, v68
    v_mov_b32 v71, v68
    s_mov_b64 exec, vcc
    ds_write_b128 v5, v[68:71]
    s_mov_b64 exec, -1
    K2_PRE_DONE:
    s_waitcnt lgkmcnt(0)
    buffer_load_dword v{vRem}, v3, s[{S_WS}:{S_WS+3}], 0 offen
    buffer_load_dwordx4 v[{WC}:{WC+3}], v4, s[{S_WS}:{S_WS+3}], 0 offen
    s_barrier
    {'s_setprio 3' if OPT.get('P0', 1) else ''}
    s_waitcnt vmcnt(0)
    s_branch K2_INFO
    ; ---- waves 0..7 stage the bucket's x rows, the w_a | w_u halves and w_c
    K2_GPRE:
    v_xor_b32 v16, v6, v7
    v_lshlrev_b32 v16, 4, v16
    v_lshl_add_u32 v32, v6, 8, v16        ; row-linear pattern
    s_lshl_b32 s3, s{sW}, 12
    s_add_u32 s{sT}, s3, s{sR0}
    v_add_u32 v32, s{sT}, v32
    s_add_u32 s{sT}, s{sR0}, {NPB*256}
    s_min_u32 s{S_X+2}, s{sT}, {N*256}
    s_mov_b32 s{S_X+3}, 0x20000
    v_xor_b32 v33, 64, v32
    v_xor_b32 v34, 128, v32
    v_xor_b32 v35, 192, v32
    """.replace(f"    v_cmp_gt_u32 s[{TMP}:{TMP+1}], {MISC//16 + 16 - 128}, v77\n", ""))
    w_lane_off(a, 36, 37, 38)
    a(f"""
    v_xor_b32 v37, 64, v36
    s_mov_b32 s{S_W+2}, 32768
    s_mov_b32 s{S_W+3}, 0x20000
    s_add_u32 s{sRem}, s3, {EARR}
    s_mov_b32 m0, s{sRem}
    s_add_u32 s{sL}, s3, {HEAD}
    s_and_b32 s3, s{sW}, 3
    s_lshl_b32 s3, s3, 13
    s_lshl_b32 s{sT}, s{sH}, 7
    s_add_u32 s{sWo}, s3, s{sT}
    s_add_u32 s{sWo+1}, s{sWo}, 1024
    s_add_u32 s{sWo+2}, s{sWo}, 2048
    s_add_u32 s{sWo+3}, s{sWo}, 3072
    s_waitcnt lgkmcnt(0)
    buffer_load_dword v{vRem}, v3, s[{S_WS}:{S_WS+3}], 0 offen
    buffer_load_dwordx4 v[{WC}:{WC+3}], v4, s[{S_WS}:{S_WS+3}], 0 offen
    s_barrier
    {'s_setprio 3' if OPT.get('P0', 1) else ''}
    s_cmp_lt_u32 s{sW}, 4
    """)
    for q in range(4): a(f"buffer_load_dwordx4 v{32+q}, s[{S_X}:{S_X+3}], 0 offen offset:{q*1024} lds")
    a(f"s_mov_b32 m0, s{sL}\ns_cselect_b64 s[{S_W}:{S_W+1}], s[{S_W}:{S_W+1}], s[4:5]")
    for i in range(4): a(f"buffer_load_dwordx4 v{36 + (i & 1)}, s[{S_W}:{S_W+3}], s{sWo+i} offen offset:{i*1024} lds")
    a(f"""
    s_waitcnt vmcnt(8)
    K2_INFO:
    s_mul_i32 s{sT}, s{sH}, {TBL_H}
    v_and_b32 v3, 0xffff, v{vRem}
    v_lshrrev_b32 v{vRem}, 16, v{vRem}
    v_add_u32 v{vRecA}, v3, v{vRecA}
    v_sub_u32 v{vRem}, v{vRem}, v15
    """)
    rec_masks(NR)
    a(f"""
    s_add_u32 s{S_TBL}, s{S_WS}, s{sT}
    s_addc_u32 s{S_TBL+1}, s{S_WS+1}, 0
    s_mov_b32 s{S_TBL+3}, 0x20000
    s_cmp_lt_u32 s{sW}, 8
    s_cbranch_scc0 K2_NOSIG
    s_waitcnt vmcnt(0)
    s_mov_b64 exec, 1
    ds_add_u32 v{vZ}, v{vOne} offset:{SYNC}
    K2_NOSIG:
    """)
    if OPT.get('FINE'): st()
    GF = 0
    if GF: a(f"s_cmp_lt_u32 s{sW}, {GF}\ns_cbranch_scc1 K2_RI")
    rec_issue(NR, "K2_RI")
    a(f"""
    s_setprio 0
    s_lshr_b32 s3, s2, 3
    s_mul_i32 s3, s3, 782
    s_mov_b32 s{sT}, {64*(8 - T1)}
    s_cmp_lt_u32 s{sW}, 8
    s_cselect_b32 s{sT}, s{sT}, {64*(16 - T2) - 64*T1}
    s_sub_u32 s3, s3, s{sT}
    v_add_lshl_u32 v{vTch}, v0, s3, 7
    s_mov_b32 s{S_TBL+2}, {TBLSZ}
    s_sub_u32 s{sL}, s{sW}, {8 - T1}
    s_cmp_lt_u32 s{sL}, {T1}
    s_cbranch_scc0 K2_NOT1
    buffer_load_dword v{vTch}, v{vTch}, s[{S_TBL}:{S_TBL+3}], 0 offen
    K2_NOT1:
    v_cmp_lt_i32 vcc, {NR*8}, v{vRem}
    s_mov_b32 s{sBase}, 0
    s_mov_b32 s{sNB}, 0
    s_mov_b32 s{sRST}, {RST}
    s_mov_b32 s{sMsk}, 0xffffff00
    s_mov_b64 exec, vcc
    ds_write_b32 v{vZ}, v{vOne} offset:{FLAG2}
    s_mov_b64 exec, -1
    s_mov_b32 s{L2E}, {NEGL2E}
    s_mov_b32 s{L2E+1}, {NEGL2E}
    s_mov_b32 s{SEL0}, 0x07060100
    s_mov_b32 s{SEL1}, 0x07060302
    s_mov_b64 s[{RMM}:{RMM+1}], 0
    v_lshl_add_u32 v{XR}, s{sH}, 3, v15
    v_lshlrev_b32 v18, 8, v2
    v_lshl_add_u32 v{vXo}, v{XR}, 4, v18
    v_and_b32 v3, 15, v2
    v_xor_b32 v{XR}, v{XR}, v3
    v_lshl_add_u32 v{XR}, v{XR}, 4, v18
    v_add_u32 v{XR}, {EARR}, v{XR}
    v_lshlrev_b32 v{vCntA}, 3, v1
    v_lshlrev_b32 v{vJ16}, 4, v7
    v_bfe_u32 v3, v1, 2, 2
    s_mov_b32 s{EMK}, 0x22221111
    s_mov_b32 s{EMK+1}, 0x88884444
    s_lshl_b32 s3, s{sW}, 2
    v_add_u32 v{vS}, s3, v6
    v_add_u32 v{vE}, s3, v3
    """)
    st()
    a(f"""
    K2_POLL:
    ds_read_b32 v18, v{vZ} offset:{SYNC}
    s_waitcnt lgkmcnt(0)
    v_readfirstlane_b32 s3, v18
    s_cmp_lt_u32 s3, 32
    s_cbranch_scc1 K2_POLL
    """)
    st()
    a(f"ds_read_b128 v[{XR}:{XR+3}], v{XR}")
    a(f"""
    s_bitcmp1_b32 s{sW}, 2
    s_cbranch_scc1 K2_NOGEMM
    s_lshr_b32 s3, s{sW}, 2
    s_bfe_u32 s{sT}, s{sW}, 0x10001
    s_or_b32 s3, s3, s{sT}                ; p
    s_and_b32 s{sT}, s{sW}, 1
    s_lshl_b32 s{sT}, s{sT}, 6
    v_xor_b32 v16, s{sT}, v{WC+2}
    s_lshl_b32 s{sRem}, s3, 13
    v_add_u32 v{XA}, s{sRem}, v{WC+3}
    v_xor_b32 v17, 32, v16
    v_xor_b32 v{XA+1}, 64, v{XA}
    v_xor_b32 v{XA+2}, 128, v{XA}
    v_xor_b32 v{XA+3}, 192, v{XA}
    """)
    def acc(t, m, c): return ACC + ((t * 2 + m) * 2 + c) * 4
    seq = [(ks, m, c) for ks in range(4) for m in range(2) for c in range(2)]
    def rx(ks):
        for t in range(2): a(f"ds_read_b128 v[{XFB[ks&1]+4*t}:{XFB[ks&1]+4*t+3}], v{XA+ks} offset:{t*4096}")
    def rd(s):
        ks, m, c = seq[s]; b = WFB[s % 4]; o = m * 16384 + ks * 4096
        a(f"ds_read_b64_tr_b16 v[{b}:{b+1}], v{16+c} offset:{o}\nds_read_b64_tr_b16 v[{b+2}:{b+3}], v{16+c} offset:{o+512}")
    rx(0); rd(0); rd(1)
    a(f"""
    v_lshl_add_u32 v2, s3, 5, v7
    v_cmp_gt_u32 vcc, {NPB}, v2
    s_lshl_b32 s{sT}, s{sT}, 1
    v_mad_u32_u24 v{vCe}, v6, 16, s{sT}
    s_mov_b64 s[{TMP}:{TMP+1}], vcc
    v_cmp_gt_u32 vcc, {NPB-16}, v2
    v_mad_u32_u24 v{vCe}, v2, s{sRST}, v{vCe}
    v_mov_b32 v4, {f2u(-62.0)}
    s_mov_b64 s[{M0_}:{M0_+1}], vcc
    v_mov_b32 v5, {f2u(-62.0)}
    s_mov_b32 s3, {f2u(60.0 / math.log2(math.e))}
    """)
    for s in range(0, 16, 2):
        n = 0
        if s + 2 < 16:
            if s % 4 == 2: rx(s // 4 + 1); n += 2
            rd(s + 2); rd(s + 3); n += 4
        a(f"s_waitcnt lgkmcnt({n})")
        for z in (s, s + 1):
            ks, m, c = seq[z]; b = WFB[z % 4]
            for t in range(2):
                d = acc(t, m, c); x = XFB[ks & 1] + 4 * t
                a(f"v_mfma_f32_16x16x32_bf16 v[{d}:{d+3}], v[{b}:{b+3}], v[{x}:{x+3}], {'0' if ks == 0 else 'v[%d:%d]' % (d, d+3)}")
    for t in range(2):
        A = acc(t, 0, 0); U = acc(t, 1, 0); X = 92; O = 108; mk = TMP if t == 0 else M0_
        a(f"""
        v_max3_f32 v2, |v{A}|, |v{A+1}|, |v{A+2}|
        v_max3_f32 v3, |v{A+3}|, |v{A+4}|, |v{A+5}|
        v_max3_f32 v2, v2, |v{A+6}|, |v{A+7}|
        v_max_f32 v2, v2, v3
        v_cmp_lt_f32 vcc, s3, v2
        """)
        for i in range(4): a(pk('fma', X + 2 * i, A + 2 * i, f"s[{L2E}:{L2E+1}]", 4))
        a(f"s_and_b64 vcc, vcc, s[{mk}:{mk+1}]\ns_or_b64 s[{RMM}:{RMM+1}], s[{RMM}:{RMM+1}], vcc")
        for i in range(8): a(f"v_exp_f32 v{X+i}, v{X+i}")
        for i in range(4): a(f"v_cvt_pk_bf16_f32 v{U+2*i}, v{U+2*i}, v{U+2*i+1}")
        for i in range(8): a(f"v_perm_b32 v{O+i}, v{X+i}, v{U+(i&6)}, s{SEL0 + (i&1)}")
        a(f"""
        s_mov_b64 exec, s[{mk}:{mk+1}]
        ds_write_b128 v{vCe}, v[{O}:{O+3}] offset:{RB+512+t*16*RST}
        ds_write_b128 v{vCe}, v[{O+4}:{O+7}] offset:{RB+576+t*16*RST}
        s_mov_b64 exec, -1
        """)
    a(f"""
    s_mov_b64 exec, s[{RMM}:{RMM+1}]
    ds_write_b32 v{vZ}, v{vOne} offset:{FLAG}
    K2_NOGEMM:
    """)
    if GF:
        a(f"s_cmp_lt_u32 s{sW}, {GF}\ns_cbranch_scc0 K2_RI2")
        rec_issue(NR, "K2_RI2")
    st()
    a(f"s_cmp_lt_u32 s{sL}, {T1}\ns_cbranch_scc1 K2_W1\ns_waitcnt vmcnt(0)\nK2_W1:\ns_waitcnt vmcnt(1)")
    st()
    a("K2_BATCH:")
    rounds(NR, "K2_AT_DONE", lambda k: f"""
        v_lshlrev_b32_sdwa v{CA+k}, 2, v{REC+4*k+2} dst_sel:DWORD dst_unused:UNUSED_PAD src0_sel:DWORD src1_sel:BYTE_0
        ds_add_rtn_u32 v{REC+4*k+3}, v{CA+k}, v{vOne}""")
    a("s_waitcnt lgkmcnt(0)\ns_barrier")
    st()
    a(f"""
    ds_read_b64 v[2:3], v{vCntA}
    ds_read2_b32 v[16:17], v{vZ} offset0:{FLAG//4 - 512} offset1:{FLAG2//4 - 512}
    """.replace(f"ds_read2_b32 v[16:17], v{vZ} offset0:{FLAG//4 - 512} offset1:{FLAG2//4 - 512}", f"ds_read_b96 v[16:18], v{vZ} offset:{FLAG}"))
    if T2:
        a(f"""
        s_cmp_ge_u32 s{sW}, {16 - T2}
        s_cbranch_scc0 K2_NOTOUCH
        buffer_load_dword v{vTch}, v{vTch}, s[{S_TBL}:{S_TBL+3}], 0 offen
        K2_NOTOUCH:
        """)
    a(f"""
    s_waitcnt lgkmcnt(0)
    v_add_u32 v4, 4, v2
    v_add_u32 v5, 4, v3
    v_and_b32 v4, -8, v4
    v_and_b32 v5, -8, v5
    v_add_u32 v103, v4, v5
    v_add_u32 v106, v4, v5
    v_readfirstlane_b32 s{sRM}, v16
    v_readfirstlane_b32 s{sRem}, v18
    """)
    wave_red(a, 106, "add_u32")
    a(f"""
    v_sub_u32 v104, v106, v103
    v_readlane_b32 s{sT}, v106, 63
    v_add_u32 v104, {SARR}, v104
    v_add_u32 v105, v104, v4
    ds_write_b64 v{vCntA}, v[104:105] offset:{OFFA}
    s_cmp_gt_u32 s{sT}, {LMAX*512}
    s_cselect_b32 s{sRem}, 1, s{sRem}
    s_cmp_lg_u32 s{sRem}, 0
    s_cbranch_scc1 K2_SLOWINIT
    K2_DECIDED:
    s_add_u32 s{sL}, s{sT}, 511
    s_lshr_b32 s{sL}, s{sL}, 9
    """)
    if OPT.get('FINE'): st()
    rounds(NR, "K2_RD_DONE", lambda k: f"ds_read_b32 v{CA+k}, v{CA+k} offset:{OFFA}")
    a(f"""
    s_lshl_b32 s3, s{sL}, 3               ; L*8
    v_lshl_add_u32 v{vRow}, v{vS}, 9, v{vJ16}
    v_mul_u32_u24 v{vS}, s3, v{vS}
    s_lshl_b32 s3, s3, 1
    v_mul_u32_u24 v{vE}, s3, v{vE}
    v_add_u32 v{vS}, {SARR}, v{vS}
    v_add_u32 v{vE}, {EARR - ZROW}, v{vE}
    v_add_u32 v{vRow}, {HEAD - RB}, v{vRow}
    v_cndmask_b32 v{vE}, 0, v{vE}, s[{EMK}:{EMK+1}]
    v_lshl_add_u32 v107, v7, 3, v{vS}
    s_mov_b32 s{PAT}, {(EARR - 2*SARR) & 0xffffffff}
    s_cmp_gt_u32 s{sW}, 3
    s_cbranch_scc1 K2_NOAUX
    v_mov_b32 v124, 0
    v_mov_b32 v125, 0
    v_mov_b32 v122, {N*256 + NPB}
    s_cmp_lt_u32 s{sW}, 2
    s_cbranch_scc1 K2_AUXPAD
    s_lshl_b32 s{sRem}, s{sW}, 8
    s_add_u32 s{sRem}, s{sRem}, s{sT}
    s_add_u32 s{sRem}, s{sRem}, {SARR - 512}
    v_lshl_add_u32 v123, v1, 2, s{sRem}
    s_branch K2_AUXW
    K2_AUXPAD:
    s_cmp_eq_u32 s{sW}, 0
    s_cselect_b64 vcc, -1, 0
    v_cndmask_b32 v126, v3, v2, vcc
    v_cndmask_b32 v123, v105, v104, vcc
    v_add_u32 v123, v123, v126
    v_and_b32 v126, 4, v126
    v_cmp_ne_u32 vcc, 0, v126
    s_mov_b64 exec, vcc
    K2_AUXW:
    ds_write_b32 v123, v122
    v_lshl_add_u32 v123, v123, 1, s{PAT}
    ds_write_b64 v123, v[124:125]
    K2_NOAUX:
    s_waitcnt lgkmcnt(0)
    """)
    if OPT.get('FINE'): st()
    rounds(NR, "K2_SC_DONE", lambda k: f"v_add_u32 v{CA+k}, v{CA+k}, v{REC+4*k+3}\nds_write_b32 v{CA+k}, v{REC+4*k+2}")
    a(f"""
    s_cmp_eq_u32 s{sRM}, 4
    s_cbranch_scc1 K2_RMFIX
    K2_NORM:
    s_waitcnt lgkmcnt(0)
    s_barrier
    """)
    st()
    a(f"ds_read_b64 v[40:41], v{vS}")
    for p in range(1, 4): a(f"ds_read_b64 v[{R+2*p}:{R+2*p+1}], v{vS} offset:{8*p}")
    a(f"""
    ds_read2_b32 v[60:61], v107 offset0:0 offset1:2
    ds_read2_b32 v[62:63], v107 offset0:32 offset1:34
    ds_read_b64 v[{R}:{R+1}], v{vS} offset:32
    v_lshrrev_b32 v19, 3, v0
    v_and_b32 v14, 7, v0
    v_lshlrev_b32 v14, 5, v14             ; 32*m
    v_lshlrev_b32 v42, 2, v19
    v_mad_u32_u24 v19, v19, s{sRST}, v14
    s_waitcnt lgkmcnt(6)
    """)
    def first_gathers(ps):
        for p in ps:
            s0 = 40 if p == 0 else R + 2 * p
            a(f"""
            v_and_or_b32 v{IA}, v{s0}, s{sMsk}, v{vJ16}
            v_and_or_b32 v{IB}, v{s0+1}, s{sMsk}, v{vJ16}
            buffer_load_dwordx4 v[{LD+8*p}:{LD+8*p+3}], v{IA}, s[{S_TBL}:{S_TBL+3}], 0 offen
            buffer_load_dwordx4 v[{LD+8*p+4}:{LD+8*p+7}], v{IB}, s[{S_TBL}:{S_TBL+3}], 0 offen
            """)
    first_gathers([0])
    a(f"""
    v_and_b32 v41, 0x7f, v40
    v_mad_u32_u24 v41, v41, s{sRST}, v{vJ16}
    ds_read_b128 v[{CEA}:{CEA+3}], v41 offset:{RB+512}
    ds_read_b128 v[120:123], v19 offset:{RB+512}
    ds_read_b128 v[124:127], v19 offset:{RB+528}
    """)
    def side_work(tag):
        a(f"""
        s_cmp_lg_u32 s{sBase}, 0
        s_cbranch_scc1 K2_NOLATE{tag}
        v_add_u32 v{vXo}, s{sR0}, v{vXo}
        """)
        a(f"""
        v_mov_b32 v{CC}, {CBITS}
        v_mov_b32 v{CC+1}, {CBITS}
        v_mov_b32 v46, 0x3f80
        s_mov_b32 s{M0_}, 0x00100001
        s_mov_b32 s{M0_+1}, 0x10000100
        s_lshl_b64 s[{M1_}:{M1_+1}], s[{M0_}:{M0_+1}], 1
        s_lshl_b64 s[{TMP}:{TMP+1}], s[{M0_}:{M0_+1}], 2
        s_lshl_b64 vcc, s[{M0_}:{M0_+1}], 3
        v_cndmask_b32 v{SEL}, 0, v46, s[{M0_}:{M0_+1}]
        v_cndmask_b32 v{SEL+1}, 0, v46, s[{M1_}:{M1_+1}]
        v_cndmask_b32 v{SEL+2}, 0, v46, s[{TMP}:{TMP+1}]
        v_cndmask_b32 v{SEL+3}, 0, v46, vcc
        v_cndmask_b32 v{vEs}, 0, 64, s[{EMK}:{EMK+1}]
        K2_NOLATE{tag}:
        """)
        for i in range(4):
            a(f"v_lshlrev_b32 v{XFL[2*i]}, 16, v{XR+i}\nv_and_b32 v{XFL[2*i+1]}, 0xffff0000, v{XR+i}")
        a(f"""
        v_add_u32 v6, {ZROW}, v14
        s_waitcnt lgkmcnt({0 if tag == 'A' else 3})
        v_xor_b32 v60, v60, v61
        v_xor_b32 v62, v62, v63
        v_and_b32 v60, 0x7f, v60
        v_and_b32 v62, 0x7f, v62
        v_cmp_ne_u32 s[{M0_}:{M0_+1}], 0, v60
        v_cmp_ne_u32 s[{M1_}:{M1_+1}], 0, v62
        """)
        a("s_movk_i32 s3, 0x3f80")
        for i in range(8): a(f"v_dot2_f32_bf16 v{120+i}, v{120+i}, s3, v{XFL[i]}")
    a(f"s_cmp_lt_u32 s{sW}, 4\ns_cbranch_scc1 K2_SE\ns_setprio 1")
    side_work("A")
    a("K2_SE:")
    rounds(NR, "K2_SE_DONE", lambda k: f"v_lshl_add_u32 v{CA+k}, v{CA+k}, 1, s{PAT}\nds_write_b64 v{CA+k}, v[{REC+4*k}:{REC+4*k+1}]")
    a(f"""
    s_cmp_lt_u32 s{sW}, 4
    s_cbranch_scc0 K2_NODESC
    s_cmp_lg_u32 s{sW}, 0
    s_cbranch_scc1 K2_OLDSIDE
    s_max_u32 s{sRem}, s{sL}, 1
    v_cvt_f32_u32 v44, s{sRem}
    v_rcp_f32 v44, v44
    v_subrev_u32 v56, {SARR}, v104
    v_subrev_u32 v57, {SARR}, v105
    v_mul_f32 v44, {f2u(2.0**20)}, v44
    v_lshrrev_b32 v56, 3, v56
    v_lshrrev_b32 v57, 3, v57
    v_cvt_u32_f32 v44, v44
    v_lshrrev_b32 v58, 3, v106
    v_add_u32 v44, 2, v44
    s_sub_u32 s{sRem}, s{sRem}, 1
    """)
    for i, q in enumerate((56, 57, 58)):
        a(f"v_add_u32 v{48+i}, s{sRem}, v{q}\nv_mul_lo_u32 v{48+i}, v{48+i}, v44\nv_lshrrev_b32 v{48+i}, 20, v{48+i}")
    a(f"v_lshlrev_b32 v45, 1, v1\nv_mul_u32_u24 v45, s{sRST}, v45\nv_add_u32 v45, {RB}, v45\nv_mov_b32 v44, {EPSR}")
    for i in range(2):
        a(f"""
        v_mul_u32_u24 v46, s{sL}, v{48+i}
        v_cmp_ne_u32 vcc, v46, v{56+i}
        v_cmp_ne_u32 s[{TMP}:{TMP+1}], v{56+i}, v{57+i}
        s_and_b64 vcc, vcc, s[{TMP}:{TMP+1}]
        v_sub_u32 v47, v{49+i}, v{48+i}
        v_cndmask_b32 v46, v44, v45, vcc
        v_lshl_or_b32 v46, v{48+i}, 18, v46
        v_lshl_or_b32 v{52+i}, v47, 25, v46
        v_add_u32 v45, {RST}, v45
        """)
    a(f"""
    ds_write_b64 v{vCntA}, v[52:53] offset:{DESC}
    K2_OLDSIDE:
    """)
    side_work("B")
    a(f"""
    K2_NODESC:
    s_mov_b32 s{S_OUT+2}, {N*256}
    s_mov_b32 s{S_OUT+3}, 0x20000
    s_mov_b32 s{PAT}, 0x00010001
    s_mov_b32 s{PAT+1}, 0x00010001
    s_sub_u32 s{sRem}, s{sL}, 1
    s_and_b32 s{sT}, s{sRem}, 15
    s_lshl_b64 s[{TMP}:{TMP+1}], s[{PAT}:{PAT+1}], s{sT}
    s_cmp_lt_u32 s{sRem}, 16
    s_cselect_b64 vcc, s[{TMP}:{TMP+1}], 0
    s_cselect_b64 s[{TMP}:{TMP+1}], 0, s[{TMP}:{TMP+1}]
    s_or_b64 s[{M0_}:{M0_+1}], s[{M0_}:{M0_+1}], vcc
    s_or_b64 s[{M1_}:{M1_+1}], s[{M1_}:{M1_+1}], s[{TMP}:{TMP+1}]
    s_waitcnt lgkmcnt(0)
    s_barrier
    {f"s_mov_b64 exec, 1{chr(10)}buffer_load_dword v{vTch}, v{vXo}, s[{S_OUT}:{S_OUT+3}], 0 offen{chr(10)}s_mov_b64 exec, -1" if OPT.get('TLB') else ""}
    ds_read_b128 v[{EE}:{EE+3}], v{vE} offset:{ZROW}
    ds_read_b32 v7, v42 offset:{DESC}
    ds_read_b128 v[{NUM}:{NUM+3}], v{vJ16} offset:{ZROW}
    ds_read_b128 v[{DEN}:{DEN+3}], v{vJ16} offset:{ZROW}
    s_setprio 3
    """)
    st()
    first_gathers([1, 2, 3])
    a(f"""
    s_waitcnt lgkmcnt(0)
    v_and_b32 v19, 0x3ffff, v7
    v_add_u32 v19, v19, v14
    v_bfe_u32 v{D}, v7, 18, 7
    v_lshl_add_u32 v14, v{D}, 9, v14
    v_lshrrev_b32 v7, 25, v7
    v_cmp_ne_u32 vcc, 0, v7
    v_add_u32 v14, {HEAD}, v14
    s_cmp_eq_u32 s{sL}, 0
    v_cndmask_b32 v6, v6, v14, vcc
    s_cbranch_scc1 K2_LOOP_DONE
    """)
    if OPT.get('XHALF'): a(f"s_cmp_ge_u32 s{sW}, {OPT['XHALF']}\ns_cbranch_scc1 K2_LOOP_DONE")
    a(f"""
    s_sub_u32 s{sT}, s{sL}, 17
    s_cmp_gt_u32 s{sRem}, 3
    s_cselect_b32 s{S_TBL+2}, {TBLSZ}, 0
    s_waitcnt vmcnt(6)
    v_mfma_f32_16x16x16_bf16 v[{T}:{T+3}], v[{EE}:{EE+1}], v[{WC}:{WC+1}], v[{LD}:{LD+3}]
    v_mfma_f32_16x16x16_bf16 v[{T+4}:{T+7}], v[{EE+2}:{EE+3}], v[{WC}:{WC+1}], v[{LD+4}:{LD+7}]
    s_cmp_lg_u32 s{sRM}, 0
    s_nop 0
    ds_read_b128 v[{EE}:{EE+3}], v{vE} offset:{ZROW+16}
    s_nop 3
    """)
    st()
    if OPT.get('BOTH'): st(True)
    a(f"s_cbranch_scc1 K2_LOOP_1")
    a_real = a
    def afilt(txt):
        out = []
        for l in txt.strip('\n').split('\n'):
            t = l.strip()
            if OPT.get('XVMEM') and t.startswith('s_cselect_b32') and str(TBLSZ) in t: t = f"s_mov_b32 s{S_TBL+2}, 0"
            if OPT.get('XVMEM2') and t.startswith('buffer_load'): continue
            if OPT.get('XLDS') and t.startswith('ds_read') and 'offset:%d' % (RB+512) not in t: continue
            if OPT.get('XAND') and t.startswith('v_and_or'): continue
            if OPT.get('XFL') and t.startswith('s_and_b64'): t = f"s_cmp_eq_u32 s{sRem}, 0\ns_mov_b64 s[{TMP}:{TMP+1}], s[{PAT}:{PAT+1}]"
            if OPT.get('XSALU') and t.startswith(('s_lshr_b64', 's_cmp_gt_u32', 's_cselect_b32')): continue
            if OPT.get('XWAIT') and t.startswith('s_waitcnt'): continue
            if OPT.get('XMV') and t.startswith('v_mfma_f32_16x16x32'): continue
            if OPT.get('XMT') and t.startswith('v_mfma_f32_16x16x16'): continue
            if OPT.get('XPK') and t.startswith('v_pk_') and 'mov' not in t: continue
            if OPT.get('XTRANS') and t.startswith(('v_exp', 'v_rcp')): continue
            if OPT.get('VSHL') and t.startswith('v_mfma_f32_16x16x32'):
                import re
                m = re.findall(r'v\[(\d+):', t); d = int(m[0]); b = int(m[2])
                for r in range(4): out.append(f"v_lshlrev_b32 v{d+r}, 16, v{b+r}")
                continue
            out.append(t)
        a_real('\n'.join(out))
    def loop(rm):
        a = afilt
        a(f"K2_LOOP_{rm}:")
        for u in range(4):
            la = LD + 8 * u; lb = la + 4; na = LD + 8 * ((u + 1) % 4); nb = na + 4
            ru = R + 2 * u; rn = R + 2 * ((u + 1) % 4)
            if rm:
                a("s_waitcnt lgkmcnt(0)")
                for i in range(4): a(pk('add', T + 2 * i, T + 2 * i, CEA + (2 * i) % 4))
            ORD = OPT.get('ORD', 0)
            Mva = f"v_mfma_f32_16x16x32_bf16 v[{V}:{V+3}], v[{SEL}:{SEL+3}], v[{la}:{la+3}], 0"
            Mvb = f"v_mfma_f32_16x16x32_bf16 v[{V+4}:{V+7}], v[{SEL}:{SEL+3}], v[{lb}:{lb+3}], 0"
            Mta = f"v_mfma_f32_16x16x16_bf16 v[{T}:{T+3}], v[{EE}:{EE+1}], v[{WC}:{WC+1}], v[{na}:{na+3}]"
            Mtb = f"v_mfma_f32_16x16x16_bf16 v[{T+4}:{T+7}], v[{EE+2}:{EE+3}], v[{WC}:{WC+1}], v[{nb}:{nb+3}]"
            ex = [f"v_exp_f32 v{T+r}, v{T+r}" for r in range(8)]
            rc = [f"v_rcp_f32 v{D+r}, v{D+r}" for r in range(4)]
            ao = [f"v_and_or_b32 v{IA}, v{ru}, s{sMsk}, v{vJ16}", f"v_and_or_b32 v{IB}, v{ru+1}, s{sMsk}, v{vJ16}"]
            gl = [f"buffer_load_dwordx4 v[{la}:{la+3}], v{IA}, s[{S_TBL}:{S_TBL+3}], 0 offen", f"buffer_load_dwordx4 v[{lb}:{lb+3}], v{IB}, s[{S_TBL}:{S_TBL+3}], 0 offen"]
            d = [pk('fma', T + 2 * i, T + 2 * i, CC if rm else CEA + (2 * i) % 4, CC, mod=' clamp') for i in range(4)]
            DD = [pk('mul', D + i, T + i, T + 4 + i) for i in (0, 2)]
            nd = [pk('add', ND + i, T + i, T + 4 + i) for i in (0, 2)]
            w1 = [pk('mul', W + i, V + i, T + 4 + i) for i in (0, 2)]
            w2 = [pk('fma', W + i, V + 4 + i, T + i, W + i) for i in (0, 2)]
            den = [pk('fma', DEN + i, ND + i, D + i, DEN + i) for i in (0, 2)]
            num = [pk('fma', NUM + i, W + i, D + i, NUM + i) for i in (0, 2)]
            W1 = "s_waitcnt lgkmcnt(0)"; W2 = "s_waitcnt vmcnt(6)"
            sa = f"s_and_b64 s[{TMP}:{TMP+1}], s[{M0_}:{M0_+1}], s[{PAT}:{PAT+1}]"
            A = [Mva, ex[0], ex[1], Mvb] + ex[2:]
            B = [Mta, rc[0], rc[1], Mtb, rc[2], rc[3]]
            if ORD == 0: L = A + [W1] + ao + gl + d + DD + nd + w1 + w2 + [W2] + B + [sa] + den + num
            if ORD == 1: L = A + [W1] + d + DD + nd + w1 + w2 + ao + gl + [W2] + B + [sa] + den + num
            if ORD == 2: L = A + [W1] + [d[0], d[2], d[1], d[3], DD[0], w1[0], DD[1], w1[1], nd[0], w2[0], nd[1], w2[1]] + ao + gl + [W2] + B + [sa] + den + num
            if ORD == 3: L = A + [W1] + ao + d[:2] + gl[:1] + d[2:] + gl[1:] + DD + nd + w1 + w2 + [W2] + B + [sa] + den + num
            if ORD == 4: L = A + [W1] + d + DD + nd + w1 + w2 + ["s_waitcnt vmcnt(4)"] + B + [sa] + den + num + ao + gl
            if ORD == 5: L = [Mva, ex[0], Mvb] + ex[1:] + [W1] + d + DD + w1 + w2 + ao + gl + nd + [W2] + [Mta, rc[0], rc[1], Mtb, rc[2], rc[3]] + [sa] + den + num
            if ORD == 6: L = A + [W1] + d + DD + nd + w1 + w2 + ["s_waitcnt vmcnt(4)"] + [Mta, rc[0], ao[0], rc[1], Mtb, rc[2], ao[1], rc[3]] + gl + [sa] + den + num
            if ORD == 7: L = [W1, Mva, ao[0], ex[0], Mvb, ao[1], ex[1]] + gl + ex[2:] + d + DD + nd + w1 + w2 + [W2] + B + [sa] + den + num
            a("\n".join(L))
            a(f"""
            s_cbranch_scc1 K2_FL_{rm}_{u}
            K2_BK_{rm}_{u}:
            ds_read_b64 v[{rn}:{rn+1}], v{vS} offset:{8*(u+5)}
            ds_read_b128 v[{EE}:{EE+3}], v{vE} offset:{ZROW + 16*(u+2)}
            s_lshr_b64 s[{M0_}:{M0_+1}], s[{M0_}:{M0_+1}], 1
            s_sub_u32 s{sRem}, s{sRem}, 1
            s_cmp_gt_u32 s{sRem}, 3
            s_cselect_b32 s{S_TBL+2}, {TBLSZ}, 0
            """)
            if u == 3:
                a(f"""
                v_add_u32 v{vS}, 32, v{vS}
                v_add_u32 v{vE}, v{vEs}, v{vE}
                s_cmp_eq_u32 s{sRem}, s{sT}
                s_cselect_b64 s[{M0_}:{M0_+1}], s[{M1_}:{M1_+1}], s[{M0_}:{M0_+1}]
                s_cmp_ge_u32 s{sRem}, {OPT.get('F1', 16)}
                s_cbranch_scc1 K2_LOOP_{rm}
                s_setprio 2
                s_cmp_ge_u32 s{sRem}, {OPT.get('F2', 8)}
                s_cbranch_scc1 K2_LOOP_{rm}
                s_setprio 1
                s_cmp_ge_u32 s{sRem}, {OPT.get('F3', 4)}
                s_cbranch_scc1 K2_LOOP_{rm}
                s_setprio 0
                s_branch K2_LOOP_{rm}
                """)
        for u in range(4):
            rn = R + 2 * ((u + 1) % 4)
            a(f"""
            K2_FL_{rm}_{u}:
            s_mul_i32 exec_lo, s{TMP}, 0xffff
            s_mul_i32 exec_hi, s{TMP+1}, 0xffff
            ds_write_b128 v{vRow}, v[{NUM}:{NUM+3}] offset:{RB}
            ds_write_b128 v{vRow}, v[{DEN}:{DEN+3}] offset:{RB+256}
            v_and_b32 v{IA}, 0x7f, v{rn}
            v_mad_u32_u24 v{vRow}, v{IA}, s{sRST}, v{vJ16}
            s_cmp_lg_u32 s{sRem}, 0
            ds_read_b128 v[{CEA}:{CEA+3}], v{vRow} offset:{RB+512}
            """)
            a(f"ds_read_b128 v[{NUM}:{NUM+3}], v{vJ16} offset:{ZROW}\nds_read_b128 v[{DEN}:{DEN+3}], v{vJ16} offset:{ZROW+512}")
            a(f"s_mov_b64 exec, -1\ns_cbranch_scc1 K2_BK_{rm}_{u}")
            if not (rm == 0 and u == 3): a("s_branch K2_LOOP_DONE")
    if OPT.get('ALIGN', 1): a(".p2align 6")
    loop(0)
    a("K2_LOOP_DONE:\ns_setprio 0")
    st()
    if OPT.get('BOTH'): st(True)
    a(f"""
    v_cmp_gt_u32 s[{TMP}:{TMP+1}], s{sRST}, v0
    s_waitcnt vmcnt(0) lgkmcnt(0)
    s_barrier
    """)
    st()
    a(f"""
    s_mov_b64 exec, s[{TMP}:{TMP+1}]
    ds_read_b128 v[40:43], v19 offset:256
    ds_read_b128 v[72:75], v6 offset:256
    ds_read_b128 v[44:47], v19 offset:272
    ds_read_b128 v[76:79], v6 offset:272
    ds_read_b128 v[32:35], v19
    ds_read_b128 v[64:67], v6
    ds_read_b128 v[36:39], v19 offset:16
    ds_read_b128 v[68:71], v6 offset:16
    v_cmp_lt_u32 vcc, 1, v7
    s_or_b32 s3, s{sNB}, s{sBase}
    s_cselect_b64 s[{M0_}:{M0_+1}], -1, vcc
    s_waitcnt lgkmcnt(4)
    """)
    for i in range(4, 8): a(pk('add', 32 + 2 * i, 32 + 2 * i, 64 + 2 * i))
    a(f"s_cmp_lg_u64 s[{M0_}:{M0_+1}], 0\ns_cbranch_scc1 K2_RARE_FIN")
    for i in range(8): a(f"v_rcp_f32 v{40+i}, v{40+i}")
    a("s_waitcnt lgkmcnt(0)")
    for i in range(4): a(pk('add', 32 + 2 * i, 32 + 2 * i, 64 + 2 * i))
    a("K2_FINAL:")
    for i in range(4): a(pk('fma', 32 + 2 * i, 32 + 2 * i, 40 + 2 * i, 120 + 2 * i))
    for i in range(8): a(f"v_max_f32 v{32+i}, v{XFL[i]}, v{32+i}")
    for i in range(4): a(f"v_cvt_pk_bf16_f32 v{40+i}, v{32+2*i}, v{33+2*i}")
    a(f"buffer_store_dwordx4 v[40:43], v{vXo}, s[{S_OUT}:{S_OUT+3}], 0 offen{OSTP}")
    if DIAG:
        a("s_waitcnt vmcnt(0)"); st(); st.dump(1, "s2", f"s{sW}", 2, S_WS)
    a("K2_END:\ns_endpgm")
    a(f"""
    K2_RMFIX:
    s_bitcmp1_b32 s{sW}, 2
    s_cbranch_scc1 K2_NORM
    v_mov_b32 v4, {TINY}
    v_mov_b32 v5, {TINY}
    s_lshr_b32 s3, s{sW}, 2
    s_bfe_u32 s{SEL0}, s{sW}, 0x10001
    s_or_b32 s3, s3, s{SEL0}
    s_mov_b32 s{SEL0}, 0x05040100
    v_lshl_add_u32 v2, s3, 5, v7
    """)
    for t in range(2):
        A = acc(t, 0, 0); U = acc(t, 1, 0); O = 108
        for i in range(4): a(pk('fma', A + 2 * i, A + 2 * i, f"s[{L2E}:{L2E+1}]", 4))
        for i in range(4): pack_pair(a, A + 2 * i, U + 2 * i, O + 2 * i, O + 2 * i + 1, f"s{SEL0}", f"s{SEL1}", cvt=False)
        a(f"""
        v_cmp_gt_u32 vcc, {NPB - 16*t}, v2
        s_mov_b64 exec, vcc
        ds_write_b128 v{vCe}, v[{O}:{O+3}] offset:{RB+512+t*16*RST}
        ds_write_b128 v{vCe}, v[{O+4}:{O+7}] offset:{RB+576+t*16*RST}
        s_mov_b64 exec, -1
        """)
    a("s_branch K2_NORM")
    loop(1)
    a(f"""
    K2_SLOWINIT:
    s_cmp_lg_u32 s{sNB}, 0
    s_cbranch_scc1 K2_DECIDED
    v_lshl_add_u32 v2, v1, 3, s{sInf}
    buffer_load_dwordx2 v[2:3], v2, s[{S_WS}:{S_WS+3}], 0 offen
    s_waitcnt vmcnt(0)
    v_lshrrev_b32 v2, 16, v2
    v_lshrrev_b32 v3, 16, v3
    v_max_u32 v2, v2, v3
    """)
    wave_red(a, 2, "max_u32")
    a(f"""
    v_readlane_b32 s3, v2, 63
    s_add_u32 s3, s3, 23
    s_mul_i32 s3, s3, 43691
    s_lshr_b32 s{sNB}, s3, 20
    """)
    for k in range(3, NR): a(f"s_mov_b64 s[{MK+2*k}:{MK+2*k+1}], 0")
    a(f"""
    s_barrier
    v_mov_b32 v2, 0
    v_mov_b32 v3, 0
    ds_write_b64 v{vCntA}, v[2:3]
    s_waitcnt lgkmcnt(0)
    s_barrier
    s_branch K2_BATCH
    K2_RARE_FIN:
    s_waitcnt lgkmcnt(0)
    """)
    for i in range(4): a(pk('add', 32 + 2 * i, 32 + 2 * i, 64 + 2 * i))
    a(f"""
    s_cbranch_vccz K2_HEADS_DONE
    K2_MORE_HEADS:
    s_mov_b64 exec, vcc
    v_add_u32 v14, 512, v14
    v_subrev_u32 v7, 1, v7
    ds_read_b128 v[64:67], v14
    ds_read_b128 v[68:71], v14 offset:16
    ds_read_b128 v[72:75], v14 offset:256
    ds_read_b128 v[76:79], v14 offset:272
    v_cmp_lt_u32 vcc, 1, v7
    s_waitcnt lgkmcnt(0)
    """)
    for i in range(8): a(pk('add', 32 + 2 * i, 32 + 2 * i, 64 + 2 * i))
    a(f"""
    s_cbranch_vccnz K2_MORE_HEADS
    s_mov_b64 exec, s[{TMP}:{TMP+1}]
    K2_HEADS_DONE:
    s_cmp_eq_u32 s{sNB}, 0
    s_cbranch_scc1 K2_RCP
    s_sub_u32 s{sNB}, s{sNB}, 1
    s_lshl_b32 s3, s2, 16
    s_add_u32 s3, s3, {SCR_OFF}
    v_lshl_add_u32 v48, v0, 6, s3
    s_cmp_eq_u32 s{sBase}, 0
    s_cbranch_scc1 K2_NOLOAD
    """)
    for i in range(4): a(f"buffer_load_dwordx4 v[{64+4*i}:{67+4*i}], v48, s[{S_WS}:{S_WS+3}], 0 offen offset:{16*i}")
    a("s_waitcnt vmcnt(0)")
    for i in range(8): a(pk('add', 32 + 2 * i, 32 + 2 * i, 64 + 2 * i))
    a(f"""
    K2_NOLOAD:
    s_cmp_lg_u32 s{sNB}, 0
    s_cbranch_scc1 K2_NEXT
    K2_RCP:
    """)
    for i in range(8): a(f"v_rcp_f32 v{40+i}, v{40+i}")
    a("s_nop 0\ns_branch K2_FINAL\nK2_NEXT:")
    a(f"s_mov_b32 s{EPS}, {EPSP}\ns_mov_b32 s{EPS+1}, {EPSP}")
    for i in range(4): a(pk('add', 40 + 2 * i, 40 + 2 * i, f"s[{EPS}:{EPS+1}]", mod=" neg_lo:[0,1] neg_hi:[0,1]"))
    for i in range(4): a(f"buffer_store_dwordx4 v[{32+4*i}:{35+4*i}], v48, s[{S_WS}:{S_WS+3}], 0 offen offset:{16*i}")
    a(f"""
    s_mov_b64 exec, -1
    s_waitcnt vmcnt(0) lgkmcnt(0)
    s_barrier
    v_lshrrev_b32 v2, 3, v0
    v_lshl_add_u32 v3, v2, 2, s{sInf}
    buffer_load_dword v{vRem}, v3, s[{S_WS}:{S_WS+3}], 0 offen
    s_add_u32 s{sBase}, s{sBase}, 24
    s_mov_b32 s3, {RECREG}
    v_mul_u32_u24 v{vRecA}, s3, v2
    v_and_b32 v15, 7, v0
    v_add_u32 v15, s{sBase}, v15
    v_mad_u32_u24 v{vRecA}, v15, 12, v{vRecA}
    v_add_u32 v{vRecA}, {REC_OFF}, v{vRecA}
    v_mov_b32 v{vOne}, 4
    v_mov_b32 v{vZ}, 0
    v_lshrrev_b32 v6, 4, v1
    v_and_b32 v7, 15, v1
    s_lshl_b32 s3, s{sW}, 2
    v_bfe_u32 v16, v1, 2, 2
    v_add_u32 v{vS}, s3, v6
    v_add_u32 v{vE}, s3, v16
    v_mov_b32 v2, 0
    v_mov_b32 v3, 0
    ds_write_b64 v{vCntA}, v[2:3]
    s_mov_b32 s{S_TBL+2}, {TBLSZ}
    s_cmp_eq_u32 s{sRM}, 0
    s_cbranch_scc1 K2_NB_NOFLAG
    v_mov_b32 v5, 5
    ds_write_b32 v{vZ}, v5 offset:{FLAG}
    K2_NB_NOFLAG:
    s_waitcnt vmcnt(0)
    v_and_b32 v3, 0xffff, v{vRem}
    v_lshrrev_b32 v{vRem}, 16, v{vRem}
    v_add_u32 v{vRecA}, v3, v{vRecA}
    v_sub_u32 v{vRem}, v{vRem}, v15
    """)
    rec_masks(3); rec_issue(3, "K2_RI_SLOW")
    a("s_waitcnt vmcnt(0) lgkmcnt(0)\ns_barrier\ns_branch K2_BATCH\nCODE_END:")

HEADER = open('standalone__edge_featured_mpnn_gatedgcn__graph.s.ref').read().split('; Override launch')[0]

def kd(name, vgpr, sgpr):
    return f""".amdhsa_kernel {name}
  .amdhsa_next_free_vgpr {vgpr}
  .amdhsa_next_free_sgpr {sgpr}
  .amdhsa_accum_offset {(vgpr + 3) // 4 * 4}
  .amdhsa_group_segment_fixed_size 0
  .amdhsa_kernarg_size 96
  .amdhsa_user_sgpr_count 2
  .amdhsa_user_sgpr_kernarg_segment_ptr 1
  .amdhsa_system_sgpr_workgroup_id_x 1
.end_amdhsa_kernel
"""

def build(verbose=False):
    out = HEADER
    out += "; Two launches: prep_kernel (x @ [w_b | w_v] -> gather tables; edges partitioned by destination bucket),\n"
    out += "; agg_kernel (per bucket and feature half: gates, normalised aggregation, residual output).\n"
    out += f"; @launch kernel=prep_kernel grid=({K1_GRID},1,1) block=({K1_BLOCK},1,1) lds={K1_LDS}\n"
    out += f"; @launch kernel=agg_kernel grid=({K2_GRID},1,1) block=({K2_BLOCK},1,1) lds={K2_LDS}\n"
    ks = [("prep_kernel", gen_k1), ("agg_kernel", gen_k2)]
    if OPT.get('PROBE'):
        out += "; @launch kernel=probe_kernel grid=(1,1,1) block=(64,1,1) lds=0\n"; ks.append(("probe_kernel", gen_probe))
    out += '.amdgcn_target "amdgcn-amd-amdhsa--gfx950"\n.text\n'
    for name, g in ks:
        a = Asm(); g(a)
        out += f".globl {name}\n.p2align 8\n.type {name},@function\n" + a.finish(verbose)
    out += '.section .rodata,"a"\n.p2align 6\n' + kd("prep_kernel", 128 if OPT.get("CPRE", 1) else 104, 102 if DIAG else 64) + '.p2align 6\n' + kd("agg_kernel", 128, 102 if DIAG else 84)
    if OPT.get('PROBE'): out += '.p2align 6\n' + kd("probe_kernel", 8, 32)
    return out

if __name__ == '__main__':
    args = sys.argv[1:]
    if '--diag' in args: DIAG = True; args.remove('--diag')
    for x in list(args):
        if x.startswith('-D'):
            k, _, val = x[2:].partition('='); OPT[k] = int(val or 1); args.remove(x)
    v = '-v' in args
    if v: args.remove('-v')
    open(args[0], 'w').write(build(v))
```
